```python
import torch

def _softmax(x, axis=-1):
    return torch.softmax(x, dim=axis)

def _gelu(x):
    return torch.nn.functional.gelu(x, approximate='tanh')

def _silu(x):
    return torch.nn.functional.silu(x)

def _sigmoid(x):
    return torch.sigmoid(x)

def _layernorm(x, axis=-1, eps=1e-05):
    m = x.mean(dim=axis, keepdim=True)
    v = x.var(dim=axis, keepdim=True, unbiased=False)
    return (x - m) / torch.sqrt(v + eps)

def _scatter_add(tgt, idx, src, axis=0):
    return tgt.clone().index_add_(axis, idx, src)

def _segment_sum(src, seg, n):
    out = torch.zeros((n,) + src.shape[1:], dtype=src.dtype)
    return out.index_add_(0, seg, src)

def _pad(x, pw):
    flat = tuple((v for pair in reversed(pw) for v in pair))
    return torch.nn.functional.pad(x, flat)
kernel_name = 'gather_scatter__tensor_product_equiv_mace__graph'

def setup_inputs():

    _w = lambda a: (lambda t: t.to(torch.bfloat16) if t.is_floating_point() else t)(torch.as_tensor(a))
    N, deg = (10000, 32)
    Lmax, C, De = (1, 128, 4)
    M = (Lmax + 1) ** 2
    E = N * deg
    src = (lambda lo, hi, *s: torch.randint(lo, hi, s))(0, N, E).to(torch.int64)
    dst = (lambda lo, hi, *s: torch.randint(lo, hi, s))(0, N, E).to(torch.int64)
    r = (lambda *s: torch.randn(*s, dtype=torch.bfloat16) * 0.05)(E, 3).to(float)
    r = r / (torch.linalg.norm(r, dim=-1, keepdim=True).to(float) + 1e-06)
    rx, ry, rz = (r[:, 0].clone(), r[:, 1].clone(), r[:, 2].clone())
    x2, y2, z2 = (rx * rx, ry * ry, rz * rz)
    sh_list = [torch.ones_like(rx), rx, ry, rz, rx * ry, ry * rz, 2.0 * z2 - x2 - y2, rx * rz, x2 - y2, ry * (3.0 * x2 - y2), rx * ry * rz, ry * (4.0 * z2 - x2 - y2), rz * (2.0 * z2 - 3.0 * x2 - 3.0 * y2), rx * (4.0 * z2 - x2 - y2), rz * (x2 - y2), rx * (x2 - 3.0 * y2)]
    sh16 = torch.stack(sh_list, dim=-1).to(float)
    pad = max(0, M - 16)
    sh_full = torch.cat([sh16, torch.zeros((E, pad), dtype=float)], dim=-1)[:, :M]
    cg = ((lambda *s: torch.randn(*s, dtype=torch.bfloat16) * 0.05)(M, M, M) * (1.0 / float(M))).to(float)
    return {'x': _w(((lambda *s: torch.randn(*s, dtype=torch.bfloat16) * 0.05)(N, M, C) * 0.3).to(float)), 'src': _w(src), 'dst': _w(dst), 'sh': _w(sh_full.to(float)), 'edge_attr': _w(((lambda *s: torch.randn(*s, dtype=torch.bfloat16) * 0.05)(E, De) * 0.3).to(float)), 'cg': _w(cg), 'w_r': _w(((lambda *s: torch.randn(*s, dtype=torch.bfloat16) * 0.05)(De, C) * (1.0 / float(De) ** 0.5)).to(float)), 'w_out': _w(((lambda *s: torch.randn(*s, dtype=torch.bfloat16) * 0.05)(C, C) * (1.0 / float(C) ** 0.5)).to(float))}

def reference(x, src, dst, sh, edge_attr, cg, w_r, w_out):
    N = x.shape[0]
    M = x.shape[1]
    C = x.shape[2]
    h = x[src]
    tp = torch.einsum('uvw,euc,ev->ewc', cg, h, sh)
    rw = edge_attr @ w_r
    msg = tp * rw[:, None, :]
    msg2 = msg.reshape(-1, M * C)
    agg = _segment_sum(msg2, dst, N).reshape(N, M, C)
    out = torch.einsum('nmc,cd->nmd', agg, w_out)
    return out
```

```python
import sys

NAME = "gather_scatter__tensor_product_equiv_mace__graph"
N = 10000
E = 320000
CHUNK = 1280
NCHUNK = E // CHUNK
REC_BYTES = 20
WS_REC = 0
WS_TAB = 0x700000
WS_WIMG = 0x780000

out = []
def o(s=""):
    out.append(s)

HEADER = open("cdna_kernels/%s.s.ref" % NAME).read().split("\n")
hdr = [l for l in HEADER if l.startswith(";") and "@launch" not in l and "Override" not in l and "grid=ceil" not in l]

CAP = 1536
NKMAX = 40 + CAP // 32
L_AGG = 0
L_S = L_AGG + 40 * 2048
L_SOFF = L_S + (CAP + 32) * 32
L_KD = L_SOFF + NKMAX * 128
L_CG = L_KD + NKMAX * 8
L_CNT = L_CG + 2048
L_TABS = L_CNT + 256
L_FLAG = L_TABS + 256
L_END = L_FLAG + 16
K2_LDS = (L_END + 255) // 256 * 256
OOB = 0x7f000000

K1_THREADS = 640
K1_LDS = 1024 + 1024 + CHUNK * REC_BYTES
K1L_HIST = 0
K1L_OFFS = 1024
K1L_STG = 2048

for l in hdr:
    o(l)
o("; @launch kernel=gs_bin_kernel grid=(256,1,1) block=(%d,1,1) lds=%d" % (K1_THREADS, K1_LDS))
o("; @launch kernel=%s_kernel grid=(256,1,1) block=(1024,1,1) lds=%d" % (NAME, K2_LDS))
o('.amdgcn_target "amdgcn-amd-amdhsa--gfx950"')
o(".text")

def dpp_scan(v):
    for sh in (1, 2, 4, 8):
        o("    s_nop 1")
        o("    v_add_u32_dpp %s, %s, %s row_shr:%d row_mask:0xf bank_mask:0xf bound_ctrl:0" % (v, v, v, sh))
    o("    s_nop 1")
    o("    v_add_u32_dpp %s, %s, %s row_bcast:15 row_mask:0xa bank_mask:0xf" % (v, v, v))
    o("    s_nop 1")
    o("    v_add_u32_dpp %s, %s, %s row_bcast:31 row_mask:0xc bank_mask:0xf" % (v, v, v))
    o("    s_nop 1")

o(".globl gs_bin_kernel")
o(".p2align 8")
o(".type gs_bin_kernel,@function")
o("gs_bin_kernel:")
o("    s_cmp_ge_u32 s2, 254")
o("    s_cbranch_scc1 K1_done")
o("    s_load_dwordx16 s[4:19], s[0:1], 0")
o("    s_load_dwordx2 s[22:23], s[0:1], 80")
o("    s_cmp_ge_u32 s2, %d" % NCHUNK)
o("    s_cbranch_scc1 K1_wimg")
o("    s_mul_i32 s3, s2, %d" % CHUNK)
o("    v_lshl_add_u32 v1, v0, 1, s3")
o("    v_lshlrev_b32 v2, 2, v1               ; *4")
o("    v_lshlrev_b32 v3, 3, v1               ; *8")
o("    v_lshlrev_b32 v20, 2, v0              ; tid*4")
o("    v_mov_b32 v21, 0")
o("    v_mov_b32 v22, 1")
o("    s_waitcnt lgkmcnt(0)")
o("    global_load_dwordx2 v[4:5], v2, s[8:9]      ; dst")
o("    global_load_dwordx2 v[6:7], v2, s[6:7]      ; src")
o("    global_load_dwordx4 v[8:11], v3, s[10:11]   ; sh")
o("    global_load_dwordx4 v[12:15], v3, s[12:13]  ; ea")
o("    v_cmp_gt_u32 vcc, 256, v0")
o("    s_and_saveexec_b64 s[24:25], vcc")
o("    ds_write_b32 v20, v21 offset:%d" % K1L_HIST)
o("    s_mov_b64 exec, s[24:25]")
o("    s_waitcnt lgkmcnt(0)")
o("    s_barrier")
o("    s_waitcnt vmcnt(3)")
o("    v_and_b32 v16, 255, v4")
o("    v_and_b32 v17, 255, v5")
o("    v_lshlrev_b32 v16, 2, v16")
o("    v_lshlrev_b32 v17, 2, v17")
o("    ds_add_rtn_u32 v18, v16, v22 offset:%d" % K1L_HIST)
o("    ds_add_rtn_u32 v19, v17, v22 offset:%d" % K1L_HIST)
o("    v_lshrrev_b32 v4, 8, v4")
o("    v_lshrrev_b32 v5, 8, v5")
o("    s_waitcnt lgkmcnt(0)")
o("    s_barrier")
o("    v_cmp_gt_u32 vcc, 64, v0")
o("    s_and_saveexec_b64 s[24:25], vcc")
o("    s_cbranch_execz K1_scan_done")
o("    v_lshlrev_b32 v23, 4, v0")
o("    ds_read_b128 v[24:27], v23 offset:%d" % K1L_HIST)
o("    s_waitcnt lgkmcnt(0)")
o("    v_add_u32 v28, v24, v25")
o("    v_add_u32 v29, v28, v26")
o("    v_add_u32 v30, v29, v27")
o("    v_mov_b32 v31, v30")
dpp_scan("v31")
o("    v_sub_u32 v32, v31, v30")
o("    v_add_u32 v33, v32, v24")
o("    v_add_u32 v34, v32, v28")
o("    v_add_u32 v35, v32, v29")
o("    ds_write_b128 v23, v[32:35] offset:%d" % K1L_OFFS)
o("    v_lshl_or_b32 v36, v24, 16, v32")
o("    v_lshl_or_b32 v37, v25, 16, v33")
o("    v_lshl_or_b32 v38, v26, 16, v34")
o("    v_lshl_or_b32 v39, v27, 16, v35")
o("    s_lshl_b32 s3, s2, 10")
o("    s_add_u32 s3, s3, 0x%x" % WS_TAB)
o("    v_add_u32 v23, s3, v23")
o("    global_store_dwordx4 v23, v[36:39], s[22:23]")
o("    s_waitcnt lgkmcnt(0)")
o("K1_scan_done:")
o("    s_mov_b64 exec, s[24:25]")
o("    s_barrier")
o("    ds_read_b32 v24, v16 offset:%d" % K1L_OFFS)
o("    ds_read_b32 v25, v17 offset:%d" % K1L_OFFS)
o("    s_waitcnt vmcnt(0)")
o("    v_lshl_or_b32 v4, v4, 16, v6")
o("    v_lshl_or_b32 v5, v5, 16, v7")
o("    s_waitcnt lgkmcnt(0)")
o("    v_add_u32 v24, v24, v18")
o("    v_add_u32 v25, v25, v19")
o("    v_mul_u32_u24 v24, %d, v24" % REC_BYTES)
o("    v_mul_u32_u24 v25, %d, v25" % REC_BYTES)
b = K1L_STG // 4
assert b + 4 < 256 or True
o("    v_add_u32 v24, %d, v24" % K1L_STG)
o("    v_add_u32 v25, %d, v25" % K1L_STG)
o("    ds_write2_b32 v24, v8, v9 offset0:0 offset1:1")
o("    ds_write2_b32 v24, v12, v13 offset0:2 offset1:3")
o("    ds_write_b32 v24, v4 offset:16")
o("    ds_write2_b32 v25, v10, v11 offset0:0 offset1:1")
o("    ds_write2_b32 v25, v14, v15 offset0:2 offset1:3")
o("    ds_write_b32 v25, v5 offset:16")
o("    s_waitcnt lgkmcnt(0)")
o("    s_barrier")
o("    v_lshlrev_b32 v23, 4, v0")
o("    ds_read_b128 v[4:7], v23 offset:%d" % K1L_STG)
o("    ds_read_b128 v[8:11], v23 offset:%d" % (K1L_STG + K1_THREADS * 16))
o("    s_mul_i32 s3, s2, %d" % (CHUNK * REC_BYTES))
o("    v_add_u32 v24, s3, v23")
o("    v_add_u32 v25, %d, v24" % (K1_THREADS * 16))
o("    v_add_u32 v26, %d, v24" % (2 * K1_THREADS * 16))
o("    v_cmp_gt_u32 vcc, %d, v0" % (CHUNK * REC_BYTES // 16 - 2 * K1_THREADS))
o("    s_waitcnt lgkmcnt(1)")
o("    global_store_dwordx4 v24, v[4:7], s[22:23]")
o("    s_waitcnt lgkmcnt(0)")
o("    global_store_dwordx4 v25, v[8:11], s[22:23]")
o("    s_and_saveexec_b64 s[24:25], vcc")
o("    s_cbranch_execz K1_done")
o("    ds_read_b128 v[12:15], v23 offset:%d" % (K1L_STG + 2 * K1_THREADS * 16))
o("    s_waitcnt lgkmcnt(0)")
o("    global_store_dwordx4 v26, v[12:15], s[22:23]")
o("    s_endpgm")
o("K1_wimg:")
o("    v_cmp_gt_u32 vcc, 512, v0")
o("    s_and_saveexec_b64 s[24:25], vcc")
o("    s_cbranch_execz K1_done")
o("    s_sub_u32 s3, s2, %d                  ; dp" % NCHUNK)
o("    v_bfe_u32 v1, v0, 8, 1                ; t")
o("    v_bfe_u32 v2, v0, 6, 2                ; s")
o("    v_bfe_u32 v3, v0, 4, 1                ; q&1")
o("    v_bfe_u32 v4, v0, 5, 1                ; q>>1")
o("    v_bfe_u32 v5, v0, 2, 2                ; i>>2")
o("    v_and_b32 v6, 3, v0                   ; i&3")
o("    v_lshlrev_b32 v7, 6, v3               ; (q&1)*64")
o("    v_lshl_add_u32 v7, v2, 1, v7")
o("    v_add_u32 v7, v7, v4                  ; c0")
o("    v_lshlrev_b32 v8, 3, v5")
o("    v_lshl_add_u32 v8, v1, 2, v8")
o("    v_add_u32 v8, v8, v6")
o("    s_lshl_b32 s26, s3, 5")
o("    v_add_u32 v8, s26, v8                 ; d")
o("    v_lshlrev_b32 v8, 1, v8")
o("    v_lshl_add_u32 v8, v7, 8, v8")
o("    v_add_u32 v9, 0x2000, v8              ; + 4*2048")
o("    s_waitcnt lgkmcnt(0)")
for j in range(8):
    base = "v8" if j < 4 else "v9"
    offs = (j & 3) * 2048
    reg = 16 + j
    op = "global_load_ushort"
    if offs < 4096:
        o("    %s v%d, %s, s[18:19] offset:%d" % (op, reg, base, offs))
    else:
        o("    v_add_u32 v10, 0x1000, %s" % base)
        o("    %s v%d, v10, s[18:19] offset:%d" % (op, reg, offs - 4096))
o("    s_lshl_b32 s26, s3, 13")
o("    s_add_u32 s26, s26, 0x%x" % WS_WIMG)
o("    v_lshl_add_u32 v11, v0, 4, s26")
o("    s_waitcnt vmcnt(0)")
for p in range(4):
    o("    v_lshl_or_b32 v%d, v%d, 16, v%d" % (12 + p, 17 + 2 * p, 16 + 2 * p))
o("    global_store_dwordx4 v11, v[12:15], s[22:23]")
o("K1_done:")
o("    s_endpgm")

KN = NAME + "_kernel"
o(".globl %s" % KN)
o(".p2align 8")
o(".type %s,@function" % KN)
o("%s:" % KN)
WR = 0
vR = 32
vD = 64
vWR = 96
vP = 8
vS = 16
vCG = 20
vKD = 22
vA = 24
vKN = 6
vLaneOff = 1
vSoffC = 2
vSC = 3
vAggC = 4
vCgC = 5

o("    s_cmp_ge_u32 s2, 256")
o("    s_cbranch_scc1 K2_done")
o("    s_load_dwordx16 s[4:19], s[0:1], 0")
o("    s_load_dwordx2 s[20:21], s[0:1], 64")
o("    s_load_dwordx2 s[22:23], s[0:1], 80")
o("    v_and_b32 v%d, 63, v0                 ; lane" % 8)
o("    v_lshrrev_b32 v9, 6, v0")
o("    s_nop 0")
o("    v_readfirstlane_b32 s40, v9")
o("    v_and_b32 v9, 15, v8                  ; col")
o("    v_lshrrev_b32 v10, 4, v8              ; g")
o("    v_lshlrev_b32 v%d, 4, v9              ; laneoff = col*16" % vLaneOff)
o("    v_lshlrev_b32 v%d, 5, v10             ; g*32" % vSoffC)
o("    v_add_u32 v%d, %d, v%d" % (vSoffC, L_SOFF, vSoffC))
o("    v_lshrrev_b32 v11, 2, v9              ; r = col>>2")
o("    v_and_b32 v12, 3, v9                  ; c = col&3")
o("    v_lshl_add_u32 v13, v11, 2, v10       ; 4r+g")
o("    v_lshlrev_b32 v13, 5, v13")
o("    v_lshl_add_u32 v%d, v12, 3, v13       ; (4r+g)*32 + c*8" % vSC)
o("    v_lshlrev_b32 v%d, 2, v8              ; lane*4" % vAggC)
o("    v_lshlrev_b32 v%d, 3, v8" % vCgC)
o("    v_add_u32 v%d, %d, v%d" % (vCgC, L_CG, vCgC))
o("    s_mov_b32 s32, 0x05040100")
o("    s_mov_b32 s33, 0x07060302")
o("    s_mov_b32 s41, 0")
o("    s_mov_b32 s42, 0                      ; round")
o("    s_waitcnt lgkmcnt(0)")
o("    v_lshrrev_b32 v14, 2, v0              ; chunk")
o("    v_min_u32 v14, %d, v14" % (NCHUNK - 1))
o("    s_lshl_b32 s3, s2, 2")
o("    s_add_u32 s43, s3, 0x%x               ; TAB + b*4" % WS_TAB)
o("    v_lshl_add_u32 v15, v14, 10, s43")
o("    global_load_dword v16, v15, s[22:23]")
for k in range(4):
    o("    global_load_dwordx4 v[%d:%d], v%d, s[16:17] offset:%d" % (vD + 4 * k, vD + 4 * k + 3, vLaneOff, 256 * k))
o("    v_lshlrev_b32 v17, 3, v10")
o("    v_lshl_add_u32 v17, v11, 1, v17")
for u in range(4):
    o("    global_load_ushort v%d, v17, s[14:15] offset:%d" % (vD + 16 + u, 32 * u))
o("    s_mov_b32 s24, s4")
o("    s_and_b32 s25, s5, 0xffff")
o("    s_mov_b32 s26, %d" % (N * 1024))
o("    s_mov_b32 s27, 0x00020000")
o("    s_mov_b32 s28, s20")
o("    s_and_b32 s29, s21, 0xffff")
o("    s_mov_b32 s30, %d" % (N * 1024))
o("    s_mov_b32 s31, 0x00020000")
o("    v_lshlrev_b32 v18, 4, v0              ; tid*16")
for i in range(4):
    o("    v_mov_b32 v%d, 0" % (vP + 4 + i - 4 + 20))
ZR = 28
nz = L_SOFF // 16
full = nz // 1024
rem = nz - full * 1024
o("    v_add_u32 v19, 0x10000, v18")
for i in range(full):
    off = i * 16384
    if off < 65536:
        o("    ds_write_b128 v18, v[%d:%d] offset:%d" % (ZR, ZR + 3, off))
    else:
        o("    ds_write_b128 v19, v[%d:%d] offset:%d" % (ZR, ZR + 3, off - 65536))
if rem:
    off = full * 16384
    o("    v_cmp_gt_u32 vcc, %d, v0" % rem)
    o("    s_and_saveexec_b64 s[44:45], vcc")
    o("    v_add_u32 v19, %d, v18" % off)
    o("    ds_write_b128 v19, v[%d:%d]" % (ZR, ZR + 3))
    o("    s_mov_b64 exec, s[44:45]")
o("    s_waitcnt vmcnt(4)")
for k in range(4):
    for i in range(4):
        src = vD + 4 * k + i
        o("    v_lshlrev_b32 v%d, 16, v%d" % (vWR + (2 * i) * 4 + k, src))
        o("    v_and_b32 v%d, 0xffff0000, v%d" % (vWR + (2 * i + 1) * 4 + k, src))
o("    s_waitcnt vmcnt(0)")
o("    s_cmp_lg_u32 s40, 0")
o("    s_cbranch_scc1 K2_cg_done")
o("    v_and_b32 v19, 1, v12")
o("    v_lshlrev_b32 v19, 4, v19             ; shift 0/16")
o("    v_cmp_gt_u32 vcc, 2, v12")
o("    s_nop 1")
for u in range(4):
    o("    v_lshlrev_b32 v20, v19, v%d" % (vD + 16 + u))
    o("    v_cndmask_b32 v22, 0, v20, vcc")
    o("    v_cndmask_b32 v23, v20, 0, vcc" if False else "    v_xor_b32 v23, v20, v22")
    o("    ds_write_b64 v%d, v[22:23] offset:%d" % (vCgC, 512 * u))
o("K2_cg_done:")

o("K2_round:")
o("    v_lshlrev_b32 v18, 4, v0")
for i in range(4):
    o("    v_mov_b32 v%d, 0x%x" % (24 + i, OOB))
o("    v_mov_b32 v28, 0")
o("    v_cmp_gt_u32 vcc, %d, v0" % (NKMAX * 128 // 16))
o("    s_and_saveexec_b64 s[44:45], vcc")
o("    v_add_u32 v19, %d, v18" % L_SOFF)
o("    ds_write_b128 v19, v[24:27]")
o("    s_mov_b64 exec, s[44:45]")
o("    v_cmp_gt_u32 vcc, 64, v0")
o("    s_and_saveexec_b64 s[44:45], vcc")
o("    v_lshlrev_b32 v19, 2, v0")
o("    v_add_u32 v19, %d, v19" % L_CNT)
o("    ds_write_b32 v19, v28")
o("    ds_write_b32 v19, v28 offset:%d" % (L_FLAG - L_CNT) if False else "    s_nop 0")
o("    s_mov_b64 exec, s[44:45]")
o("    v_mov_b32 v19, %d" % L_FLAG)
o("    ds_write_b32 v19, v28")
o("    s_cmp_eq_u32 s41, 0")
o("    s_cbranch_scc1 K2_fastparams")
o("    v_mov_b32 v14, s42")
o("    v_lshl_add_u32 v15, v14, 10, s43")
o("    global_load_dword v16, v15, s[22:23]")
o("    v_mov_b32 v17, v0")
o("    s_mov_b32 s46, 1024")
o("    s_waitcnt vmcnt(0)")
o("    v_lshrrev_b32 v18, 16, v16            ; cnt")
o("    s_branch K2_params_done")
o("K2_fastparams:")
o("    v_and_b32 v17, 3, v0")
o("    s_mov_b32 s46, 4")
o("    v_lshrrev_b32 v18, 16, v16            ; cnt")
o("    v_cmp_gt_u32 vcc, %d, v0" % (NCHUNK * 4))
o("    s_nop 1")
o("    v_cndmask_b32 v18, 0, v18, vcc")
o("K2_params_done:")
o("    v_and_b32 v19, 0xffff, v16            ; start")
o("    v_add_u32 v19, v19, v17")
o("    v_mul_u32_u24 v19, %d, v19" % REC_BYTES)
o("    s_mov_b32 s47, %d" % (CHUNK * REC_BYTES))
o("    v_mad_u32_u24 v19, v14, s47, v19")
o("    s_mul_i32 s47, s46, %d" % REC_BYTES)
MM = 8
for m in range(MM):
    o("    v_cmp_lt_u32 vcc, v17, v18")
    o("    s_mov_b64 s[%d:%d], vcc" % (48 + 2 * m, 49 + 2 * m))
    o("    v_add_u32 v17, s46, v17")
o("    v_cmp_lt_u32 vcc, v17, v18")
o("    s_mov_b64 s[64:65], vcc")
for m in range(MM):
    o("    s_mov_b64 exec, s[%d:%d]" % (48 + 2 * m, 49 + 2 * m))
    o("    s_cbranch_execz K2_loads_done")
    o("    global_load_dwordx4 v[%d:%d], v19, s[22:23]" % (vR + 4 * m, vR + 4 * m + 3))
    o("    global_load_dword v%d, v19, s[22:23] offset:16" % (vD + m))
    o("    v_add_u32 v19, s47, v19")
o("K2_loads_done:")
o("    s_mov_b64 exec, -1")
o("    s_waitcnt lgkmcnt(0)")
o("    s_barrier")
o("    v_mov_b32 v28, 1")
o("    s_cmp_eq_u64 s[64:65], 0")
o("    s_cbranch_scc1 K2_noflag")
o("    v_mov_b32 v19, %d" % L_FLAG)
o("    ds_write_b32 v19, v28")
o("K2_noflag:")
o("    s_waitcnt vmcnt(0)")
for m in range(MM):
    o("    s_mov_b64 exec, s[%d:%d]" % (48 + 2 * m, 49 + 2 * m))
    o("    s_cbranch_execz K2_rank_done")
    o("    v_lshrrev_b32 v%d, 16, v%d" % (vD + 16 + m, vD + m))
    o("    v_lshlrev_b32 v%d, 2, v%d" % (vD + 16 + m, vD + 16 + m))
    o("    v_add_u32 v%d, %d, v%d" % (vD + 16 + m, L_CNT, vD + 16 + m))
    o("    ds_add_rtn_u32 v%d, v%d, v28" % (vD + 8 + m, vD + 16 + m))
o("K2_rank_done:")
o("    s_mov_b64 exec, -1")
o("    s_waitcnt lgkmcnt(0)")
o("    s_barrier")
o("    v_add_u32 v19, %d, v%d" % (L_CNT, vAggC))
o("    ds_read_b32 v24, v19")
o("    v_mov_b32 v20, %d" % L_FLAG)
o("    ds_read_b32 v21, v20")
o("    s_waitcnt lgkmcnt(0)")
o("    v_add_u32 v25, 31, v24")
o("    v_lshrrev_b32 v25, 5, v25             ; nks")
o("    v_lshl_or_b32 v26, v25, 16, v24       ; packed")
o("    v_mov_b32 v27, v26")
dpp_scan("v27")
o("    v_readlane_b32 s34, v27, 63")
o("    v_readfirstlane_b32 s35, v21")
o("    v_sub_u32 v27, v27, v26")
o("    ds_write_b32 v19, v27 offset:%d" % (L_TABS - L_CNT))
o("    s_and_b32 s36, s34, 0xffff            ; total")
o("    s_lshr_b32 s34, s34, 16               ; nK")
o("    s_cmp_gt_u32 s36, %d" % CAP)
o("    s_cselect_b32 s36, 1, 0")
o("    s_or_b32 s35, s35, s36")
o("    s_cmp_eq_u32 s35, 0")
o("    s_cbranch_scc1 K2_ok")
o("    s_mov_b32 s41, 1")
o("    s_waitcnt lgkmcnt(0)")
o("    s_barrier")
o("    s_branch K2_round")
o("K2_ok:")
o("    s_cmp_lg_u32 s40, 0")
o("    s_cbranch_scc1 K2_kd_done")
o("    v_and_b32 v20, 0xffff, v27")
o("    v_lshlrev_b32 v20, 5, v20")
o("    v_add_u32 v20, %d, v20                ; S byte addr" % L_S)
o("    v_lshlrev_b32 v21, 9, v%d             ; node*2048" % vAggC)
o("    v_lshrrev_b32 v22, 16, v27")
o("    v_lshlrev_b32 v22, 3, v22")
o("    v_add_u32 v22, %d, v22                ; kd addr" % L_KD)
o("K2_kd_loop:")
o("    v_cmp_lt_u32 vcc, 0, v25")
o("    s_and_b64 exec, exec, vcc")
o("    s_cbranch_execz K2_kd_end")
o("    ds_write_b64 v22, v[20:21]")
o("    v_add_u32 v20, 1024, v20")
o("    v_add_u32 v22, 8, v22")
o("    v_subrev_u32 v25, 1, v25")
o("    s_branch K2_kd_loop")
o("K2_kd_end:")
o("    s_mov_b64 exec, -1")
o("K2_kd_done:")
for m in range(MM):
    o("    s_mov_b64 exec, s[%d:%d]" % (48 + 2 * m, 49 + 2 * m))
    o("    s_cbranch_execz K2_scatter_done")
    o("    ds_read_b32 v24, v%d offset:%d" % (vD + 16 + m, L_TABS - L_CNT))
    r = vR + 4 * m
    o("    v_lshlrev_b32 v8, 16, v%d" % r)
    o("    v_and_b32 v9, 0xffff0000, v%d" % r)
    o("    v_lshlrev_b32 v10, 16, v%d" % (r + 1))
    o("    v_and_b32 v11, 0xffff0000, v%d" % (r + 1))
    o("    v_lshlrev_b32 v12, 16, v%d" % (r + 2))
    o("    v_and_b32 v13, 0xffff0000, v%d" % (r + 2))
    o("    v_lshlrev_b32 v14, 16, v%d" % (r + 3))
    o("    v_and_b32 v15, 0xffff0000, v%d" % (r + 3))
    for v in range(4):
        o("    v_mul_f32 v28, v%d, v12" % (8 + v))
        o("    v_mul_f32 v29, v%d, v13" % (8 + v))
        o("    v_mul_f32 v30, v%d, v14" % (8 + v))
        o("    v_mul_f32 v31, v%d, v15" % (8 + v))
        o("    v_cvt_pk_bf16_f32 v%d, v28, v29" % (16 + 2 * v))
        o("    v_cvt_pk_bf16_f32 v%d, v30, v31" % (17 + 2 * v))
    rank = vD + 8 + m
    o("    s_waitcnt lgkmcnt(0)")
    o("    v_and_b32 v25, 0xffff, v24")
    o("    v_add_u32 v25, v25, v%d" % rank)
    o("    v_lshlrev_b32 v25, 5, v25")
    o("    v_add_u32 v25, %d, v25" % L_S)
    o("    ds_write_b128 v25, v[16:19]")
    o("    ds_write_b128 v25, v[20:23] offset:16")
    o("    v_lshrrev_b32 v26, 16, v24")
    o("    v_lshrrev_b32 v27, 5, v%d" % rank)
    o("    v_add_u32 v26, v26, v27")
    o("    v_lshlrev_b32 v26, 7, v26")
    o("    v_and_b32 v27, 3, v%d" % rank)
    o("    v_lshl_add_u32 v26, v27, 5, v26")
    o("    v_and_b32 v27, 28, v%d" % rank)
    o("    v_add3_u32 v26, v26, v27, s%d" % 47 if False else "    v_add_u32 v26, v26, v27")
    o("    v_add_u32 v26, %d, v26" % L_SOFF)
    o("    v_and_b32 v27, 0xffff, v%d" % (vD + m))
    o("    v_lshlrev_b32 v27, 10, v27")
    o("    ds_write_b32 v26, v27")
o("K2_scatter_done:")
o("    s_mov_b64 exec, -1")
o("    s_waitcnt lgkmcnt(0)")
o("    s_barrier")

def advance():
    lbl = "K2_adv_%d" % len(out)
    o("%s:" % lbl)
    o("    s_cmp_lt_u32 s35, s34")
    o("    s_cbranch_scc1 %s_e" % lbl)
    o("    s_sub_u32 s35, s35, s34")
    o("    s_add_u32 s36, s36, 1")
    o("    s_cmp_lt_u32 s36, 4")
    o("    s_cbranch_scc1 %s" % lbl)
    o("%s_e:" % lbl)

def read_next_meta():
    o("    s_lshl_b32 s39, s35, 7")
    o("    v_add_u32 v0, s39, v%d" % vSoffC)
    o("    ds_read_b128 v[%d:%d], v0" % (vA, vA + 3))
    o("    ds_read_b128 v[%d:%d], v0 offset:16" % (vA + 4, vA + 7))
    o("    s_lshl_b32 s39, s35, 3")
    o("    s_add_u32 s39, s39, %d" % L_KD)
    o("    v_mov_b32 v0, s39")
    o("    ds_read_b64 v[%d:%d], v0" % (vKN, vKN + 1))

def issue_loads():
    o("    s_lshl_b32 s37, s36, 8")
    for j in range(8):
        o("    v_add_u32 v%d, v%d, v%d" % (vA + j, vA + j, vLaneOff))
    for j in range(8):
        o("    buffer_load_dwordx4 v[%d:%d], v%d, s[24:27], s37 offen" % (vR + 4 * j, vR + 4 * j + 3, vA + j))

o("    v_mov_b32 v%d, v0                     ; save tid" % (vS) if False else "    s_nop 0")
o("    s_mov_b32 s35, s40")
o("    s_mov_b32 s36, 0")
advance()
o("    s_cmp_ge_u32 s36, 4")
o("    s_cbranch_scc1 K2_main_done")
read_next_meta()
o("    s_waitcnt lgkmcnt(0)")
issue_loads()
o("K2_loop:")
o("    v_add_u32 v%d, v%d, v%d" % (vKD, vKN, vSC))
o("    v_add_u32 v%d, v%d, v%d" % (vKD + 1, vKN + 1, vAggC))
o("    s_lshl_b32 s38, s36, 9")
o("    v_add_u32 v0, s38, v%d" % vCgC)
o("    ds_read_b64_tr_b16 v[%d:%d], v%d" % (vS, vS + 1, vKD))
o("    ds_read_b64_tr_b16 v[%d:%d], v%d offset:512" % (vS + 2, vS + 3, vKD))
o("    ds_read_b64 v[%d:%d], v0" % (vCG, vCG + 1))
o("    s_add_u32 s35, s35, 16")
advance()
o("    s_min_u32 s35, s35, %d" % (NKMAX - 1))
read_next_meta()
o("    s_waitcnt vmcnt(0) lgkmcnt(0)")
def perms(j, pbase):
    i = j >> 1
    sel = "s32" if (j & 1) == 0 else "s33"
    for jj in range(4):
        a = vR + 4 * (2 * jj) + i
        b = vR + 4 * (2 * jj + 1) + i
        o("    v_perm_b32 v%d, v%d, v%d, %s" % (pbase + jj, b, a, sel))
perms(0, vP)
for j in range(8):
    if j + 1 < 8:
        perms(j + 1, vP + 4 * ((j + 1) & 1))
    else:
        o("    s_nop 1")
    pb = vP + 4 * (j & 1)
    o("    v_mfma_f32_16x16x32_bf16 v[%d:%d], v[%d:%d], v[%d:%d], 0" % (vD + 4 * j, vD + 4 * j + 3, vS, vS + 3, pb, pb + 3))
o("    s_cmp_ge_u32 s36, 4")
o("    s_cbranch_scc1 K2_noload")
issue_loads()
o("K2_noload:")
o("    s_nop 7")
for j in range(8):
    d = vD + 4 * j
    w = vWR + 4 * j
    o("    v_mul_f32 v%d, v%d, v%d" % (d, d, w))
    for k in range(1, 4):
        o("    v_fmac_f32 v%d, v%d, v%d" % (d, d + k, w + k))
for h in range(4):
    o("    v_cvt_pk_bf16_f32 v%d, v%d, v%d" % (vP + h, vD + 8 * h, vD + 8 * h + 4))
o("    s_nop 1")
o("    v_mfma_f32_16x16x16_bf16 v[%d:%d], v[%d:%d], v[%d:%d], 0" % (vD, vD + 3, vCG, vCG + 1, vP, vP + 1))
o("    v_mfma_f32_16x16x16_bf16 v[%d:%d], v[%d:%d], v[%d:%d], 0" % (vD + 4, vD + 7, vCG, vCG + 1, vP + 2, vP + 3))
o("    s_nop 7")
for r in range(8):
    o("    ds_add_f32 v%d, v%d offset:%d" % (vKD + 1, vD + r, 256 * r))
o("    s_cmp_lt_u32 s36, 4")
o("    s_cbranch_scc1 K2_loop")
o("K2_main_done:")
o("    s_cmp_eq_u32 s41, 0")
o("    s_cbranch_scc1 K2_final")
o("    s_add_u32 s42, s42, 1")
o("    s_cmp_ge_u32 s42, %d" % NCHUNK)
o("    s_cbranch_scc1 K2_final")
o("    s_waitcnt lgkmcnt(0)")
o("    s_barrier")
o("    s_lshl_b32 s39, s40, 6")
o("    v_lshrrev_b32 v0, 2, v%d" % vAggC)
o("    v_add_u32 v0, s39, v0")
o("    s_branch K2_round")

o("K2_final:")
o("    s_and_b32 s44, s40, 3                 ; dp")
o("    s_lshr_b32 s45, s40, 2                ; rg")
o("    s_lshl_b32 s39, s44, 13")
o("    s_add_u32 s39, s39, 0x%x" % WS_WIMG)
o("    v_lshlrev_b32 v8, 2, v%d              ; lane*16" % vAggC)
o("    v_add_u32 v8, s39, v8")
o("    v_add_u32 v9, 0x1000, v8")
for ts in range(8):
    base = "v8" if ts < 4 else "v9"
    o("    global_load_dwordx4 v[%d:%d], %s, s[22:23] offset:%d" % (vR + 4 * ts, vR + 4 * ts + 3, base, (ts & 3) * 1024))
o("    v_lshrrev_b32 v10, 2, v%d             ; lane" % vAggC)
o("    v_bfe_u32 v11, v10, 2, 2              ; nl")
o("    v_and_b32 v12, 3, v10                 ; w")
o("    v_bfe_u32 v13, v10, 4, 1              ; q&1")
o("    v_bfe_u32 v14, v10, 5, 1              ; q>>1")
o("    v_lshlrev_b32 v15, 11, v11")
o("    v_lshl_add_u32 v15, v14, 8, v15")
o("    v_lshl_add_u32 v15, v12, 6, v15")
o("    v_lshl_add_u32 v15, v13, 5, v15       ; nl*2048 + (q>>1)*256 + w*64 + (q&1)*32")
o("    v_lshlrev_b32 v16, 18, v11")
o("    v_lshl_add_u32 v16, v12, 8, v16")
o("    v_lshrrev_b32 v17, 4, v10             ; q")
o("    v_lshl_add_u32 v16, v17, 4, v16")
o("    s_lshl_b32 s39, s2, 10")
o("    s_lshl_b32 s46, s44, 6")
o("    s_add_u32 s39, s39, s46")
o("    v_add_u32 v16, s39, v16")
o("    s_waitcnt lgkmcnt(0)")
o("    s_barrier")
o("K2_fin_loop:")
o("    s_lshl_b32 s39, s45, 13               ; rt*8192")
o("    v_add_u32 v18, s39, v15")
for s in range(4):
    o("    ds_read_b128 v[%d:%d], v18 offset:%d" % (vD + 8 * s, vD + 8 * s + 3, 512 * s))
    o("    ds_read_b128 v[%d:%d], v18 offset:%d" % (vD + 8 * s + 4, vD + 8 * s + 7, 512 * s + 16))
for s in range(4):
    o("    s_waitcnt lgkmcnt(%d)" % (6 - 2 * s))
    for p in range(4):
        o("    v_cvt_pk_bf16_f32 v%d, v%d, v%d" % (vWR + 4 * s + p, vD + 8 * s + 2 * p, vD + 8 * s + 2 * p + 1))
o("    s_waitcnt vmcnt(0)")
o("    s_nop 0")
for s in range(4):
    for t in range(2):
        a = vR + 4 * (t * 4 + s)
        acc = 20 + 4 * t
        c = "0" if s == 0 else "v[%d:%d]" % (acc, acc + 3)
        o("    v_mfma_f32_16x16x32_bf16 v[%d:%d], v[%d:%d], v[%d:%d], %s" % (acc, acc + 3, a, a + 3, vWR + 4 * s, vWR + 4 * s + 3, c))
o("    s_lshl_b32 s39, s45, 20               ; rt*4*256*1024")
o("    s_nop 7")
for p in range(4):
    o("    v_cvt_pk_bf16_f32 v%d, v%d, v%d" % (28 + p, 20 + 2 * p, 21 + 2 * p))
o("    buffer_store_dwordx4 v[28:31], v16, s[28:31], s39 offen")
o("    s_add_u32 s45, s45, 4")
o("    s_cmp_lt_u32 s45, 10")
o("    s_cbranch_scc1 K2_fin_loop")
o("K2_done:")
o("    s_endpgm")

o('.section .rodata,"a"')
for kn, vg, sg in (("gs_bin_kernel", 40, 32), (KN, 128, 72)):
    o(".p2align 6")
    o(".amdhsa_kernel %s" % kn)
    o("  .amdhsa_next_free_vgpr %d" % vg)
    o("  .amdhsa_next_free_sgpr %d" % sg)
    o("  .amdhsa_accum_offset %d" % vg)
    o("  .amdhsa_group_segment_fixed_size 0")
    o("  .amdhsa_kernarg_size 88")
    o("  .amdhsa_user_sgpr_count 2")
    o("  .amdhsa_user_sgpr_kernarg_segment_ptr 1")
    o("  .amdhsa_system_sgpr_workgroup_id_x 1")
    o("  .amdhsa_float_denorm_mode_32 3")
    o(".end_amdhsa_kernel")

path = sys.argv[1] if len(sys.argv) > 1 else "cdna_kernels/%s.s" % NAME
open(path, "w").write("\n".join(out) + "\n")
print("wrote", path, "K2_LDS", K2_LDS, "K1_LDS", K1_LDS)
```

```python
import sys
NAME = "gather_scatter__tensor_product_equiv_mace__graph"
N = 10000
E = 320000
CHUNK = 1280
NCHUNK = E // CHUNK
REC_BYTES = 20
WS_TAB = 0x700000
WS_WIMG = 0x780000

opts = [a for a in sys.argv[1:] if a.startswith("--")]
args = [a for a in sys.argv[1:] if not a.startswith("--")]
STAMP = "--stamp" in opts
def optval(name, default):
    for a in opts:
        if a.startswith("--" + name + "="):
            return int(a.split("=")[1])
    return default
NBUF = optval("nbuf", 1)
SKEW = optval("skew", 0)
PF1 = optval("pf1", 0)
PF2 = optval("pf2", 0)

out = []
def o(s=""):
    out.append(s)
nstamp = [0]
def stamp():
    if not STAMP: return
    i = nstamp[0]; nstamp[0] += 1
    o("    s_memrealtime s[%d:%d]" % (84 + 2 * i, 85 + 2 * i))
    o("    s_waitcnt lgkmcnt(0)")

HEADER = open("cdna_kernels/%s.s.ref" % NAME).read().split("\n")
hdr = [l for l in HEADER if l.startswith(";") and "@launch" not in l and "Override" not in l and "grid=ceil" not in l]

CAP = 1536
NKMAX = 40 + CAP // 32
L_WR = 0
L_CG = L_WR + 2048
L_CNT = L_CG + 2048
L_TABS = L_CNT + 256
L_LOCK = L_TABS + 256
L_FLAG = L_LOCK + 256
L_Q = L_FLAG + 4
L_SOFF = L_FLAG + 256
L_S = L_SOFF + (NKMAX + 1) * 128
L_S = (L_S + 255) // 256 * 256
L_AGG = L_S + (CAP + 32) * 32
L_AGG = (L_AGG + 2047) // 2048 * 2048
L_END = L_AGG + 40 * 2048
K2_LDS = L_END
assert K2_LDS <= 160 * 1024
OOB = 0x7f000000

K1_THREADS = 640
K1L_HIST = 0
K1L_OFFS = 1024
K1L_STG = 2048
K1_LDS = K1L_STG + CHUNK * REC_BYTES

for l in hdr:
    o(l)
o("; @launch kernel=gs_bin_kernel grid=(256,1,1) block=(%d,1,1) lds=%d" % (K1_THREADS, K1_LDS))
o("; @launch kernel=%s_kernel grid=(256,1,1) block=(1024,1,1) lds=%d" % (NAME, K2_LDS))
o('.amdgcn_target "amdgcn-amd-amdhsa--gfx950"')
o(".text")

def dpp_scan(v):
    for sh in (1, 2, 4, 8):
        o("    s_nop 1")
        o("    v_add_u32_dpp %s, %s, %s row_shr:%d row_mask:0xf bank_mask:0xf bound_ctrl:0" % (v, v, v, sh))
    o("    s_nop 1")
    o("    v_add_u32_dpp %s, %s, %s row_bcast:15 row_mask:0xa bank_mask:0xf" % (v, v, v))
    o("    s_nop 1")
    o("    v_add_u32_dpp %s, %s, %s row_bcast:31 row_mask:0xc bank_mask:0xf" % (v, v, v))
    o("    s_nop 1")

o(".globl gs_bin_kernel")
o(".p2align 8")
o(".type gs_bin_kernel,@function")
o("gs_bin_kernel:")
o("    s_cmp_ge_u32 s2, 256")
o("    s_cbranch_scc1 K1_done")
o("    s_load_dwordx16 s[4:19], s[0:1], 0")
o("    s_load_dwordx2 s[22:23], s[0:1], 80")
o("    s_cmp_ge_u32 s2, %d" % NCHUNK)
o("    s_cbranch_scc1 K1_wimg")
o("    s_mul_i32 s3, s2, %d" % CHUNK)
o("    v_lshl_add_u32 v1, v0, 1, s3")
o("    v_lshlrev_b32 v2, 2, v1               ; *4")
o("    v_lshlrev_b32 v3, 3, v1               ; *8")
o("    v_lshlrev_b32 v20, 2, v0              ; tid*4")
o("    v_mov_b32 v21, 0")
o("    v_mov_b32 v22, 1")
o("    s_waitcnt lgkmcnt(0)")
o("    global_load_dwordx2 v[4:5], v2, s[8:9]      ; dst")
o("    global_load_dwordx2 v[6:7], v2, s[6:7]      ; src")
o("    global_load_dwordx4 v[8:11], v3, s[10:11]   ; sh")
o("    global_load_dwordx4 v[12:15], v3, s[12:13]  ; ea")
o("    v_cmp_gt_u32 vcc, 256, v0")
o("    s_and_saveexec_b64 s[24:25], vcc")
o("    ds_write_b32 v20, v21 offset:%d" % K1L_HIST)
o("    s_mov_b64 exec, s[24:25]")
o("    s_waitcnt lgkmcnt(0)")
o("    s_barrier")
o("    s_waitcnt vmcnt(3)")
o("    v_and_b32 v16, 255, v4")
o("    v_and_b32 v17, 255, v5")
o("    v_lshlrev_b32 v16, 2, v16")
o("    v_lshlrev_b32 v17, 2, v17")
o("    ds_add_rtn_u32 v18, v16, v22 offset:%d" % K1L_HIST)
o("    ds_add_rtn_u32 v19, v17, v22 offset:%d" % K1L_HIST)
o("    v_lshrrev_b32 v4, 8, v4")
o("    v_lshrrev_b32 v5, 8, v5")
o("    s_waitcnt lgkmcnt(0)")
o("    s_barrier")
o("    v_cmp_gt_u32 vcc, 64, v0")
o("    s_and_saveexec_b64 s[24:25], vcc")
o("    s_cbranch_execz K1_scan_done")
o("    v_lshlrev_b32 v23, 4, v0")
o("    ds_read_b128 v[24:27], v23 offset:%d" % K1L_HIST)
o("    s_waitcnt lgkmcnt(0)")
o("    v_add_u32 v28, v24, v25")
o("    v_add_u32 v29, v28, v26")
o("    v_add_u32 v30, v29, v27")
o("    v_mov_b32 v31, v30")
dpp_scan("v31")
o("    v_sub_u32 v32, v31, v30")
o("    v_add_u32 v33, v32, v24")
o("    v_add_u32 v34, v32, v28")
o("    v_add_u32 v35, v32, v29")
o("    ds_write_b128 v23, v[32:35] offset:%d" % K1L_OFFS)
o("    v_lshl_or_b32 v36, v24, 16, v32")
o("    v_lshl_or_b32 v37, v25, 16, v33")
o("    v_lshl_or_b32 v38, v26, 16, v34")
o("    v_lshl_or_b32 v39, v27, 16, v35")
o("    s_lshl_b32 s3, s2, 10")
o("    s_add_u32 s3, s3, 0x%x" % WS_TAB)
o("    v_add_u32 v23, s3, v23")
o("    global_store_dwordx4 v23, v[36:39], s[22:23]")
o("    s_waitcnt lgkmcnt(0)")
o("K1_scan_done:")
o("    s_mov_b64 exec, s[24:25]")
o("    s_barrier")
o("    ds_read_b32 v24, v16 offset:%d" % K1L_OFFS)
o("    ds_read_b32 v25, v17 offset:%d" % K1L_OFFS)
o("    s_waitcnt vmcnt(0)")
o("    v_lshl_or_b32 v4, v4, 16, v6")
o("    v_lshl_or_b32 v5, v5, 16, v7")
o("    s_waitcnt lgkmcnt(0)")
o("    v_add_u32 v24, v24, v18")
o("    v_add_u32 v25, v25, v19")
o("    v_mul_u32_u24 v24, %d, v24" % REC_BYTES)
o("    v_mul_u32_u24 v25, %d, v25" % REC_BYTES)
o("    v_add_u32 v24, %d, v24" % K1L_STG)
o("    v_add_u32 v25, %d, v25" % K1L_STG)
o("    ds_write2_b32 v24, v8, v9 offset0:0 offset1:1")
o("    ds_write2_b32 v24, v12, v13 offset0:2 offset1:3")
o("    ds_write_b32 v24, v4 offset:16")
o("    ds_write2_b32 v25, v10, v11 offset0:0 offset1:1")
o("    ds_write2_b32 v25, v14, v15 offset0:2 offset1:3")
o("    ds_write_b32 v25, v5 offset:16")
o("    s_waitcnt lgkmcnt(0)")
o("    s_barrier")
o("    v_lshlrev_b32 v23, 4, v0")
o("    ds_read_b128 v[4:7], v23 offset:%d" % K1L_STG)
o("    ds_read_b128 v[8:11], v23 offset:%d" % (K1L_STG + K1_THREADS * 16))
o("    s_mul_i32 s3, s2, %d" % (CHUNK * REC_BYTES))
o("    v_add_u32 v24, s3, v23")
o("    v_add_u32 v25, %d, v24" % (K1_THREADS * 16))
o("    v_add_u32 v26, %d, v24" % (2 * K1_THREADS * 16))
o("    v_cmp_gt_u32 vcc, %d, v0" % (CHUNK * REC_BYTES // 16 - 2 * K1_THREADS))
o("    s_waitcnt lgkmcnt(1)")
o("    global_store_dwordx4 v24, v[4:7], s[22:23]")
o("    s_waitcnt lgkmcnt(0)")
o("    global_store_dwordx4 v25, v[8:11], s[22:23]")
o("    s_and_saveexec_b64 s[24:25], vcc")
o("    s_cbranch_execz K1_done")
o("    ds_read_b128 v[12:15], v23 offset:%d" % (K1L_STG + 2 * K1_THREADS * 16))
o("    s_waitcnt lgkmcnt(0)")
o("    global_store_dwordx4 v26, v[12:15], s[22:23]")
o("    s_endpgm")
o("K1_wimg:")
o("    s_cmp_ge_u32 s2, %d" % (NCHUNK + 4))
o("    s_cbranch_scc1 K1_done")
o("    v_cmp_gt_u32 vcc, 512, v0")
o("    s_and_saveexec_b64 s[24:25], vcc")
o("    s_cbranch_execz K1_done")
o("    s_sub_u32 s3, s2, %d                  ; dp" % NCHUNK)
o("    v_bfe_u32 v1, v0, 8, 1                ; t")
o("    v_bfe_u32 v2, v0, 6, 2                ; s")
o("    v_bfe_u32 v3, v0, 4, 2                ; q")
o("    v_bfe_u32 v5, v0, 2, 2                ; i>>2")
o("    v_and_b32 v6, 3, v0                   ; i&3")
o("    v_lshlrev_b32 v7, 3, v3               ; q*8")
o("    v_lshl_add_u32 v7, v2, 5, v7          ; c0 = 32s + 8q")
o("    v_lshlrev_b32 v8, 3, v5")
o("    v_lshl_add_u32 v8, v1, 2, v8")
o("    v_add_u32 v8, v8, v6")
o("    s_lshl_b32 s26, s3, 5")
o("    v_add_u32 v8, s26, v8                 ; d")
o("    v_lshlrev_b32 v8, 1, v8")
o("    v_lshl_add_u32 v8, v7, 8, v8")
o("    s_waitcnt lgkmcnt(0)")
for j in range(8):
    o("    global_load_ushort v%d, v8, s[18:19] offset:%d" % (16 + j, 256 * j))
o("    s_lshl_b32 s26, s3, 13")
o("    s_add_u32 s26, s26, 0x%x" % WS_WIMG)
o("    v_lshl_add_u32 v11, v0, 4, s26")
o("    s_waitcnt vmcnt(0)")
for p in range(4):
    o("    v_lshl_or_b32 v%d, v%d, 16, v%d" % (12 + p, 17 + 2 * p, 16 + 2 * p))
o("    global_store_dwordx4 v11, v[12:15], s[22:23]")
o("K1_done:")
o("    s_endpgm")

KN = NAME + "_kernel"
o(".globl %s" % KN)
o(".p2align 8")
o(".type %s,@function" % KN)
o("%s:" % KN)
vLaneOff = 1; vSoffC = 2; vSC = 3; vAggC = 4; vL8 = 5; vND = 6; vQ = 7
vP = 8; vS = 16; vCG = 20; vT = 22; vOne = 23; vA = 24
vRB = [32, 64]; vD = 96; vWR = 64
vREC = 32
vMETA = 96; vRANK = 104; vCA = 112
MM = 8

o("    s_cmp_ge_u32 s2, 256")
o("    s_cbranch_scc1 K2_done")
stamp()
o("    s_load_dwordx2 s[22:23], s[0:1], 80")
o("    s_load_dwordx16 s[4:19], s[0:1], 0")
o("    s_load_dwordx2 s[20:21], s[0:1], 64")
o("    v_and_b32 v8, 63, v0                  ; lane")
o("    v_lshrrev_b32 v9, 6, v0")
o("    v_lshrrev_b32 v14, 2, v0              ; chunk")
o("    v_readfirstlane_b32 s40, v9")
o("    v_min_u32 v14, %d, v14" % (NCHUNK - 1))
o("    s_lshl_b32 s3, s2, 2")
o("    s_add_u32 s43, s3, 0x%x               ; TAB + b*4" % WS_TAB)
o("    v_lshl_add_u32 v15, v14, 10, s43")
o("    v_and_b32 v9, 15, v8                  ; col")
o("    v_lshrrev_b32 v10, 4, v8              ; g")
o("    v_lshlrev_b32 v%d, 4, v9              ; laneoff = col*16" % vLaneOff)
o("    v_lshlrev_b32 v%d, 5, v10             ; g*32" % vSoffC)
o("    v_lshrrev_b32 v11, 2, v9              ; r = col>>2")
o("    v_and_b32 v12, 3, v9                  ; c = col&3")
o("    v_lshl_add_u32 v13, v11, 2, v10       ; 4r+g")
o("    v_lshlrev_b32 v13, 5, v13")
o("    v_lshl_add_u32 v%d, v12, 3, v13       ; (4r+g)*32 + c*8" % vSC)
o("    v_xor_b32 v13, v9, v10                ; col ^ w")
o("    v_lshlrev_b32 v13, 4, v13")
o("    v_lshl_add_u32 v%d, v10, 8, v13       ; w*256 + (col^w)*16" % vAggC)
o("    v_lshlrev_b32 v%d, 3, v8              ; lane*8" % vL8)
o("    v_mov_b32 v%d, 1" % vOne)
o("    s_mov_b32 s32, 0x05040100")
o("    s_mov_b32 s33, 0x07060302")
o("    s_mov_b32 s41, 0")
o("    s_mov_b32 s42, 0                      ; round")
o("    s_waitcnt lgkmcnt(0)")
o("    global_load_dword v16, v15, s[22:23]")
o("    s_cmp_lt_u32 s40, 14")
o("    s_cbranch_scc1 K2_tabs_issued")
o("    s_cmp_eq_u32 s40, 15")
o("    s_cbranch_scc1 K2_cg_issue")
for k in range(4):
    o("    global_load_dwordx4 v[%d:%d], v%d, s[16:17] offset:%d" % (96 + 4 * k, 96 + 4 * k + 3, vLaneOff, 256 * k))
o("    s_branch K2_tabs_issued")
o("K2_cg_issue:")
o("    v_lshlrev_b32 v17, 3, v10")
o("    v_lshl_add_u32 v17, v11, 1, v17")
for u in range(4):
    o("    global_load_ushort v%d, v17, s[14:15] offset:%d" % (96 + u, 32 * u))
o("K2_tabs_issued:")
o("    s_mov_b32 s24, s4")
o("    s_and_b32 s25, s5, 0xffff")
o("    s_mov_b32 s26, %d" % (N * 1024))
o("    s_mov_b32 s27, 0x00020000")
o("    s_mov_b32 s28, s20")
o("    s_and_b32 s29, s21, 0xffff")
o("    s_mov_b32 s30, %d" % (N * 1024))
o("    s_mov_b32 s31, 0x00020000")
o("    v_lshlrev_b32 v18, 4, v0              ; tid*16")
for i in range(4):
    o("    v_mov_b32 v%d, 0" % (28 + i))
nz = (L_END - L_S) // 16
full = nz // 1024
rem = nz - full * 1024
o("    v_add_u32 v19, %d, v18" % L_S)
o("    v_add_u32 v20, %d, v18" % (L_S + 65536))
o("    v_add_u32 v21, %d, v18" % (L_S + 131072))
for i in range(full):
    off = i * 16384
    o("    ds_write_b128 v%d, v[28:31] offset:%d" % (19 + off // 65536, off % 65536))
if rem:
    off = full * 16384
    o("    v_cmp_gt_u32 vcc, %d, v0" % rem)
    o("    s_and_saveexec_b64 s[44:45], vcc")
    o("    ds_write_b128 v%d, v[28:31] offset:%d" % (19 + off // 65536, off % 65536))
    o("    s_mov_b64 exec, s[44:45]")
o("    s_cmp_lt_u32 s40, 14")
o("    s_cbranch_scc1 K2_round")
o("    s_waitcnt vmcnt(0)")
o("    s_cmp_eq_u32 s40, 15")
o("    s_cbranch_scc1 K2_cg_build")
for i in range(4):
    for k in range(4):
        o("    v_lshlrev_b32 v%d, 16, v%d" % (112 + k, 96 + 4 * k + i))
        o("    v_and_b32 v%d, 0xffff0000, v%d" % (116 + k, 96 + 4 * k + i))
    o("    ds_write_b128 v%d, v[112:115] offset:%d" % (vLaneOff, L_WR + 256 * (2 * i)))
    o("    ds_write_b128 v%d, v[116:119] offset:%d" % (vLaneOff, L_WR + 256 * (2 * i + 1)))
o("    s_branch K2_round")
o("K2_cg_build:")
o("    v_and_b32 v19, 1, v12")
o("    v_lshlrev_b32 v19, 4, v19             ; shift 0/16")
o("    v_cmp_gt_u32 vcc, 2, v12")
o("    s_nop 1")
for u in range(4):
    o("    v_lshlrev_b32 v20, v19, v%d" % (96 + u))
    o("    v_cndmask_b32 v%d, 0, v20, vcc" % (112 + 2 * u))
    o("    v_xor_b32 v%d, v20, v%d" % (113 + 2 * u, 112 + 2 * u))
    o("    ds_write_b64 v%d, v[%d:%d] offset:%d" % (vL8, 112 + 2 * u, 113 + 2 * u, L_CG + 512 * u))

o("K2_round:")
o("    v_lshlrev_b32 v18, 4, v0")
for i in range(4):
    o("    v_mov_b32 v%d, 0x%x" % (24 + i, OOB))
o("    v_mov_b32 v28, 0")
o("    v_mov_b32 v29, 16")
o("    v_cmp_gt_u32 vcc, %d, v0" % ((NKMAX + 1) * 128 // 16))
o("    s_and_saveexec_b64 s[44:45], vcc")
o("    ds_write_b128 v18, v[24:27] offset:%d" % L_SOFF)
o("    s_mov_b64 exec, s[44:45]")
o("    v_cmp_gt_u32 vcc, 64, v0")
o("    s_and_saveexec_b64 s[44:45], vcc")
o("    v_lshlrev_b32 v19, 2, v0")
o("    ds_write_b32 v19, v28 offset:%d" % L_CNT)
o("    ds_write_b32 v19, v28 offset:%d" % L_LOCK)
o("    v_mov_b32 v19, 0")
o("    ds_write_b64 v19, v[28:29] offset:%d" % L_FLAG)
o("    s_mov_b64 exec, s[44:45]")
o("    s_cmp_eq_u32 s41, 0")
o("    s_cbranch_scc1 K2_fastparams")
o("    v_mov_b32 v14, s42")
o("    v_lshl_add_u32 v15, v14, 10, s43")
o("    global_load_dword v16, v15, s[22:23]")
o("    v_mov_b32 v17, v0")
o("    s_mov_b32 s46, 1024")
o("    s_waitcnt vmcnt(0)")
o("    v_lshrrev_b32 v18, 16, v16            ; cnt")
o("    s_branch K2_params_done")
o("K2_fastparams:")
o("    v_and_b32 v17, 3, v0")
o("    s_mov_b32 s46, 4")
o("    v_cmp_gt_u32 vcc, %d, v0" % (NCHUNK * 4))
o("    s_waitcnt vmcnt(0)")
o("    v_lshrrev_b32 v18, 16, v16            ; cnt")
o("    v_cndmask_b32 v18, 0, v18, vcc")
o("K2_params_done:")
o("    v_and_b32 v19, 0xffff, v16            ; start")
o("    v_add_u32 v19, v19, v17")
o("    v_mul_u32_u24 v19, %d, v19" % REC_BYTES)
o("    s_mov_b32 s47, %d" % (CHUNK * REC_BYTES))
o("    v_mad_u32_u24 v19, v14, s47, v19")
o("    s_mul_i32 s47, s46, %d" % REC_BYTES)
for m in range(MM):
    o("    s_mov_b64 s[%d:%d], 0" % (48 + 2 * m, 49 + 2 * m))
o("    s_mov_b64 s[64:65], 0")
for m in range(MM):
    o("    v_cmp_lt_u32 vcc, v17, v18")
    o("    s_and_b64 exec, exec, vcc")
    o("    s_cbranch_execz K2_loads_done")
    o("    s_mov_b64 s[%d:%d], exec" % (48 + 2 * m, 49 + 2 * m))
    o("    global_load_dwordx4 v[%d:%d], v19, s[22:23]" % (vREC + 8 * m, vREC + 8 * m + 3))
    o("    global_load_dword v%d, v19, s[22:23] offset:16" % (vMETA + m))
    o("    v_add_u32 v19, s47, v19")
    o("    v_add_u32 v17, s46, v17")
o("    v_cmp_lt_u32 vcc, v17, v18")
o("    s_mov_b64 s[64:65], vcc")
o("K2_loads_done:")
o("    s_mov_b64 exec, -1")
o("    s_waitcnt lgkmcnt(0)")
o("    s_barrier")
stamp()
o("    s_cmp_eq_u64 s[64:65], 0")
o("    s_cbranch_scc1 K2_noflag")
o("    v_mov_b32 v19, 0")
o("    ds_write_b32 v19, v%d offset:%d" % (vOne, L_FLAG))
o("K2_noflag:")
o("    s_waitcnt vmcnt(0)")
for m in range(MM):
    o("    s_mov_b64 exec, s[%d:%d]" % (48 + 2 * m, 49 + 2 * m))
    o("    s_cbranch_execz K2_rank_done")
    o("    v_lshrrev_b32 v%d, 16, v%d" % (vCA + m, vMETA + m))
    o("    v_lshlrev_b32 v%d, 2, v%d" % (vCA + m, vCA + m))
    o("    ds_add_rtn_u32 v%d, v%d, v%d offset:%d" % (vRANK + m, vCA + m, vOne, L_CNT))
o("K2_rank_done:")
for m in range(MM):
    o("    s_mov_b64 exec, s[%d:%d]" % (48 + 2 * m, 49 + 2 * m))
    o("    s_cbranch_execz K2_S_done")
    r = vREC + 8 * m
    o("    v_lshlrev_b32 v8, 16, v%d" % r)
    o("    v_and_b32 v9, 0xffff0000, v%d" % r)
    o("    v_lshlrev_b32 v10, 16, v%d" % (r + 1))
    o("    v_and_b32 v11, 0xffff0000, v%d" % (r + 1))
    o("    v_lshlrev_b32 v12, 16, v%d" % (r + 2))
    o("    v_and_b32 v13, 0xffff0000, v%d" % (r + 2))
    o("    v_lshlrev_b32 v14, 16, v%d" % (r + 3))
    o("    v_and_b32 v15, 0xffff0000, v%d" % (r + 3))
    for v in range(4):
        o("    v_pk_mul_f32 v[28:29], v[12:13], v[%d:%d] op_sel:[0,%d] op_sel_hi:[1,%d]" % (8 + (v & 2), 9 + (v & 2), v & 1, v & 1))
        o("    v_pk_mul_f32 v[30:31], v[14:15], v[%d:%d] op_sel:[0,%d] op_sel_hi:[1,%d]" % (8 + (v & 2), 9 + (v & 2), v & 1, v & 1))
        o("    v_cvt_pk_bf16_f32 v%d, v28, v29" % (r + 2 * v))
        o("    v_cvt_pk_bf16_f32 v%d, v30, v31" % (r + 2 * v + 1))
    o("    v_and_b32 v%d, 0xffff, v%d" % (vMETA + m, vMETA + m))
    o("    v_lshlrev_b32 v%d, 10, v%d" % (vMETA + m, vMETA + m))
o("K2_S_done:")
o("    s_mov_b64 exec, -1")
o("    s_waitcnt lgkmcnt(0)")
o("    s_barrier")
stamp()
o("    v_lshrrev_b32 v19, 1, v%d             ; lane*4" % vL8)
o("    ds_read_b32 v24, v19 offset:%d" % L_CNT)
o("    v_mov_b32 v20, 0")
o("    ds_read_b32 v21, v20 offset:%d" % L_FLAG)
o("    s_waitcnt lgkmcnt(0)")
o("    v_add_u32 v25, 31, v24")
o("    v_lshrrev_b32 v25, 5, v25             ; nks")
o("    v_lshl_or_b32 v26, v25, 16, v24       ; packed")
o("    v_mov_b32 v27, v26")
dpp_scan("v27")
o("    v_readlane_b32 s34, v27, 63")
o("    v_readfirstlane_b32 s35, v21")
o("    v_sub_u32 v27, v27, v26")
o("    ds_write_b32 v19, v27 offset:%d" % L_TABS)
o("    s_and_b32 s36, s34, 0xffff            ; total")
o("    s_lshr_b32 s34, s34, 16               ; nK")
o("    s_cmp_gt_u32 s36, %d" % CAP)
o("    s_cselect_b32 s36, 1, 0")
o("    s_or_b32 s35, s35, s36")
o("    s_cmp_eq_u32 s35, 0")
o("    s_cbranch_scc1 K2_ok")
o("    s_mov_b32 s41, 1")
o("    s_waitcnt lgkmcnt(0)")
o("    s_barrier")
o("    s_branch K2_round")
o("K2_ok:")
o("    v_and_b32 v20, 0xffff, v27")
o("    v_lshrrev_b32 v21, 16, v27")
o("    v_lshl_or_b32 v20, v21, 11, v20")
o("    v_lshl_or_b32 v%d, v24, 18, v20       ; node desc: Sstart | kstart<<11 | cnt<<18" % vND)
for m in range(MM):
    o("    s_mov_b64 exec, s[%d:%d]" % (48 + 2 * m, 49 + 2 * m))
    o("    s_cbranch_execz K2_tabs_done")
    o("    ds_read_b32 v%d, v%d offset:%d" % (vCA + m, vCA + m, L_TABS))
o("K2_tabs_done:")
o("    s_waitcnt lgkmcnt(0)")
for m in range(MM):
    o("    s_mov_b64 exec, s[%d:%d]" % (48 + 2 * m, 49 + 2 * m))
    o("    s_cbranch_execz K2_scatter_done")
    r = vREC + 8 * m
    rank = vRANK + m
    tb = vCA + m
    o("    v_and_b32 v25, 0xffff, v%d" % tb)
    o("    v_add_lshl_u32 v25, v25, v%d, 5" % rank)
    o("    ds_write_b128 v25, v[%d:%d] offset:%d" % (r, r + 3, L_S))
    o("    ds_write_b128 v25, v[%d:%d] offset:%d" % (r + 4, r + 7, L_S + 16))
    o("    v_lshrrev_b32 v26, 16, v%d" % tb)
    o("    v_lshrrev_b32 v27, 5, v%d" % rank)
    o("    v_add_lshl_u32 v26, v26, v27, 7")
    o("    v_and_b32 v27, 3, v%d" % rank)
    o("    v_lshl_add_u32 v26, v27, 5, v26")
    o("    v_and_or_b32 v26, v%d, 28, v26" % rank)
    o("    ds_write_b32 v26, v%d offset:%d" % (vMETA + m, L_SOFF))
o("K2_scatter_done:")
o("    s_mov_b64 exec, -1")
o("    s_waitcnt lgkmcnt(0)")
o("    s_barrier")
stamp()
if STAMP:
    o("    s_memtime s[76:77]")
    o("    s_waitcnt lgkmcnt(0)")

NITEM = 160
uid = [0]
def dequeue():
    o("    s_mov_b64 exec, 1")
    o("    ds_add_rtn_u32 v%d, v%d, v%d offset:%d" % (vQ, vLaneOff, vOne, L_Q))
    o("    s_mov_b64 exec, -1")

def gen_next(first_id_in_s38=False):
    t = "G%d" % uid[0]; uid[0] += 1
    if first_id_in_s38:
        o("    s_branch %s_dec" % t)
    else:
        o("    s_cmp_eq_u32 s62, 0")
        o("    s_cbranch_scc1 %s_retry" % t)
        o("    s_add_u32 s63, s63, 1")
        o("    s_add_u32 s64, s64, 1024")
        o("    s_mov_b32 s65, 0")
        o("    s_branch %s_cnt" % t)
    o("%s_retry:" % t)
    o("    s_waitcnt lgkmcnt(0)")
    o("    v_readfirstlane_b32 s38, v%d" % vQ)
    dequeue()
    o("%s_dec:" % t)
    o("    s_cmp_lt_u32 s38, %d" % NITEM)
    o("    s_cbranch_scc1 %s_valid" % t)
    o("    s_mov_b32 s65, 0")
    o("    s_mov_b32 s62, 0")
    o("    s_branch %s_end" % t)
    o("%s_valid:" % t)
    if SKEW:
        o("    s_lshl_b32 s39, s38, 2")
        o("    s_load_dword s39, s[68:69], s39") if False else None
    o("    s_mul_i32 s60, s38, 1639")
    o("    s_lshr_b32 s60, s60, 16               ; u = id / 40")
    o("    s_mul_i32 s61, s60, 40")
    o("    s_sub_u32 s61, s38, s61               ; node")
    o("    v_readlane_b32 s39, v%d, s61" % vND)
    o("    s_lshr_b32 s62, s39, 18               ; cnt")
    o("    s_cbranch_scc0 %s_retry" % t)
    o("    s_bfe_u32 s63, s39, 0x7000b           ; kstart")
    o("    s_and_b32 s64, s39, 0x7ff")
    o("    s_lshl_b32 s64, s64, 5")
    o("    s_mov_b32 s65, 16")
    o("%s_cnt:" % t)
    o("    s_min_u32 s39, s62, 32")
    o("    s_sub_u32 s62, s62, s39")
    o("    s_add_u32 s39, s39, 3")
    o("    s_lshr_b32 s39, s39, 2")
    o("    s_or_b32 s65, s65, s39")
    o("    s_cmp_eq_u32 s62, 0")
    o("    s_cselect_b32 s39, 32, 0")
    o("    s_or_b32 s65, s65, s39")
    o("    s_lshl_b32 s39, s63, 7")
    o("    v_add_u32 v0, s39, v%d" % vSoffC)
    o("    ds_read_b128 v[%d:%d], v0 offset:%d" % (vA, vA + 3, L_SOFF))
    o("    ds_read_b128 v[%d:%d], v0 offset:%d" % (vA + 4, vA + 7, L_SOFF + 16))
    o("%s_end:" % t)

def issue_loads(b):
    t = "L%d" % uid[0]; uid[0] += 1
    o("    s_lshl_b32 s37, s60, 8")
    if "--u0" in opts: o("    s_mov_b32 s37, 0")
    o("    s_and_b32 s39, s65, 15")
    o("    s_cbranch_scc0 %s_e" % t)
    for j in range(8):
        o("    v_add_u32 v%d, v%d, v%d" % (vA + j, vA + j, vLaneOff))
        if j < 7:
            o("    s_cmp_eq_u32 s39, %d" % (j + 1))
        o("    buffer_load_dwordx4 v[%d:%d], v%d, s[24:27], s37 offen" % (vRB[b] + 4 * j, vRB[b] + 4 * j + 3, vA + j))
        if j < 7:
            o("    s_cbranch_scc1 %s_e" % t)
    o("%s_e:" % t)

def gen_to_slot(b):
    sb = 48 + 4 * b
    o("    s_mov_b64 s[%d:%d], s[60:61]" % (sb, sb + 1))
    o("    s_mov_b64 s[%d:%d], s[64:65]" % (sb + 2, sb + 3))

def perms(b, j, pbase, npair):
    i = j >> 1
    sel = "s32" if (j & 1) == 0 else "s33"
    for jj in range(npair):
        a = vRB[b] + 4 * (2 * jj) + i
        c = vRB[b] + 4 * (2 * jj + 1) + i
        o("    v_perm_b32 v%d, v%d, v%d, %s" % (pbase + jj, c, a, sel))
def mm(b, acc, npair):
    if "--nomm" in opts: return
    sb = 48 + 4 * b
    t = "Z%d" % uid[0]; uid[0] += 1
    o("    s_bitcmp0_b32 s%d, 0" % (sb + 3))
    o("    s_cbranch_scc1 %s" % t)
    for i in range(4):
        o("    v_mov_b32 v%d, 0" % (vRB[b] + 4 * (2 * npair - 1) + i))
    o("%s:" % t)
    k16 = npair <= 2
    if npair in (1, 3):
        o("    v_mov_b32 v%d, 0" % (vP + npair))
        o("    v_mov_b32 v%d, 0" % (vP + 4 + npair))
    perms(b, 0, vP, npair)
    for j in range(8):
        if j + 1 < 8:
            perms(b, j + 1, vP + 4 * ((j + 1) & 1), npair)
        if npair == 1 or j == 7:
            o("    s_nop 0")
        pb = vP + 4 * (j & 1)
        c = "v[%d:%d]" % (vD + 4 * j, vD + 4 * j + 3) if acc else "0"
        if k16:
            o("    v_mfma_f32_16x16x16_bf16 v[%d:%d], v[%d:%d], v[%d:%d], %s" % (vD + 4 * j, vD + 4 * j + 3, vS, vS + 1, pb, pb + 1, c))
        else:
            o("    v_mfma_f32_16x16x32_bf16 v[%d:%d], v[%d:%d], v[%d:%d], %s" % (vD + 4 * j, vD + 4 * j + 3, vS, vS + 3, pb, pb + 3, c))

def mm_all(b):
    sb = 48 + 4 * b
    o("    s_and_b32 s39, s%d, 15" % (sb + 3))
    o("    s_bitcmp0_b32 s%d, 4" % (sb + 3))
    o("    s_cbranch_scc1 M%d_acc" % b)
    for acc in (False, True):
        a = "a" if acc else "f"
        if acc: o("M%d_acc:" % b)
        o("    s_cmp_gt_u32 s39, 6")
        o("    s_cbranch_scc1 M%d%s4" % (b, a))
        o("    s_cmp_gt_u32 s39, 4")
        o("    s_cbranch_scc1 M%d%s3" % (b, a))
        o("    s_cmp_gt_u32 s39, 2")
        o("    s_cbranch_scc1 M%d%s2" % (b, a))
        for npair in (1, 2, 3, 4):
            o("M%d%s%d:" % (b, a, npair))
            mm(b, acc, npair)
            if not (acc and npair == 4):
                o("    s_branch M%d_done" % b)
    o("M%d_done:" % b)

def vm_wait(other):
    if NBUF == 1:
        o("    s_waitcnt vmcnt(0) lgkmcnt(0)")
        return
    t = "W%d" % uid[0]; uid[0] += 1
    sb = 48 + 4 * other
    o("    s_and_b32 s39, s%d, 15" % (sb + 3))
    o("    s_cmp_eq_u32 s39, 8")
    o("    s_cbranch_scc1 %s_8" % t)
    o("    s_cmp_ge_u32 s39, 4")
    o("    s_cbranch_scc1 %s_hi" % t)
    o("    s_cmp_ge_u32 s39, 2")
    o("    s_cbranch_scc1 %s_2" % t)
    o("    s_waitcnt vmcnt(0)")
    o("%s_2:" % t)
    o("    s_waitcnt vmcnt(2)")
    o("%s_hi:" % t)
    o("    s_cmp_ge_u32 s39, 6")
    o("    s_cbranch_scc1 %s_6" % t)
    o("    s_waitcnt vmcnt(4)")
    o("%s_6:" % t)
    o("    s_waitcnt vmcnt(6)")
    o("%s_8:" % t)
    o("    s_waitcnt vmcnt(8) lgkmcnt(0)")

def tile_fma(j, w):
    d = vD + 4 * j
    o("    v_mul_f32 v%d, v%d, v%d" % (d, d, w))
    for k in range(1, 4):
        o("    v_fmac_f32 v%d, v%d, v%d" % (d, d + k, w + k))
def wr_read(j, w):
    o("    ds_read_b128 v[%d:%d], v%d offset:%d" % (w, w + 3, vLaneOff, L_WR + 256 * j))
def lock_try():
    o("    s_mov_b64 exec, 1")
    o("    ds_wrxchg_rtn_b32 v%d, v%d, v%d offset:%d" % (vS + 2, vS, vOne, L_LOCK))
    o("    s_mov_b64 exec, -1")
    o("    ds_read_b128 v[%d:%d], v%d" % (vP, vP + 3, vS + 1))
    o("    ds_read_b128 v[%d:%d], v%d offset:1024" % (vP + 4, vP + 7, vS + 1))

def post(b):
    if "--nopost" in opts: return
    sb = 48 + 4 * b
    t = "P%d" % b
    if NBUF == 2:
        wr_read(0, vP); wr_read(1, vP + 4); wr_read(2, vA); wr_read(3, vA + 4)
    o("    s_lshl_b32 s38, s%d, 9" % sb)
    o("    v_add_u32 v0, s38, v%d" % vL8)
    o("    ds_read_b64 v[%d:%d], v0 offset:%d" % (vCG, vCG + 1, L_CG))
    o("    s_lshl_b32 s38, s%d, 2" % (sb + 1))
    o("    v_mov_b32 v%d, s38                    ; lock addr" % vS)
    o("    s_and_b32 s38, s%d, 3" % (sb + 1))
    o("    s_lshl_b32 s38, s38, 6")
    o("    s_lshl_b32 s39, s%d, 11" % (sb + 1))
    o("    s_add_u32 s39, s39, %d" % L_AGG)
    o("    s_or_b32 s38, s38, s39")
    o("    v_xor_b32 v%d, s38, v%d               ; agg addr" % (vS + 1, vAggC))
    o("    v_mov_b32 v%d, 0" % (vS + 3))
    if NBUF == 2:
        o("    s_waitcnt lgkmcnt(4)")
        tile_fma(0, vP)
        o("    s_waitcnt lgkmcnt(3)")
        tile_fma(1, vP + 4)
        wr_read(4, vP); wr_read(5, vP + 4)
        o("    s_waitcnt lgkmcnt(4)")
        tile_fma(2, vA)
        o("    s_waitcnt lgkmcnt(3)")
        tile_fma(3, vA + 4)
        wr_read(6, vA); wr_read(7, vA + 4)
        o("    v_cvt_pk_bf16_f32 v%d, v%d, v%d" % (vD + 2, vD, vD + 4))
        o("    v_cvt_pk_bf16_f32 v%d, v%d, v%d" % (vD + 3, vD + 8, vD + 12))
        o("    s_waitcnt lgkmcnt(3)")
        tile_fma(4, vP)
        o("    s_waitcnt lgkmcnt(2)")
        tile_fma(5, vP + 4)
        lock_try()
        o("    s_waitcnt lgkmcnt(4)")
        tile_fma(6, vA)
        o("    s_waitcnt lgkmcnt(3)")
        tile_fma(7, vA + 4)
    else:
        for j in range(4):
            tile_fma(j, vWR + 4 * j)
        o("    v_cvt_pk_bf16_f32 v%d, v%d, v%d" % (vD + 2, vD, vD + 4))
        o("    v_cvt_pk_bf16_f32 v%d, v%d, v%d" % (vD + 3, vD + 8, vD + 12))
        lock_try()
        for j in range(4, 8):
            tile_fma(j, vWR + 4 * j)
    o("    v_cvt_pk_bf16_f32 v%d, v%d, v%d" % (vD + 6, vD + 16, vD + 20))
    o("    v_cvt_pk_bf16_f32 v%d, v%d, v%d" % (vD + 7, vD + 24, vD + 28))
    o("%s_chk:" % t)
    o("    s_waitcnt lgkmcnt(0)")
    o("    v_readfirstlane_b32 s38, v%d" % (vS + 2))
    o("    s_cmp_eq_u32 s38, 0")
    o("    s_cbranch_scc1 %s_got" % t)
    lock_try()
    o("    s_branch %s_chk" % t)
    o("%s_got:" % t)
    o("    v_mfma_f32_16x16x16_bf16 v[%d:%d], v[%d:%d], v[%d:%d], v[%d:%d]" % (vP, vP + 3, vCG, vCG + 1, vD + 2, vD + 3, vP, vP + 3))
    o("    v_mfma_f32_16x16x16_bf16 v[%d:%d], v[%d:%d], v[%d:%d], v[%d:%d]" % (vP + 4, vP + 7, vCG, vCG + 1, vD + 6, vD + 7, vP + 4, vP + 7))
    o("    s_nop 7")
    o("    ds_write_b128 v%d, v[%d:%d]" % (vS + 1, vP, vP + 3))
    o("    ds_write_b128 v%d, v[%d:%d] offset:1024" % (vS + 1, vP + 4, vP + 7))
    o("    s_mov_b64 exec, 1")
    o("    ds_write_b32 v%d, v%d offset:%d" % (vS, vS + 3, L_LOCK))
    o("    s_mov_b64 exec, -1")

dequeue()
o("    s_mov_b32 s38, s40")
o("    s_mov_b32 s60, 0")
gen_next(True)
o("    s_waitcnt lgkmcnt(0)")
issue_loads(0)
gen_to_slot(0)
if NBUF == 2:
    gen_next()
    o("    s_waitcnt lgkmcnt(0)")
    issue_loads(1)
    gen_to_slot(1)
else:
    for j in range(8):
        wr_read(j, vWR + 4 * j)
o("K2_loop:")
for b in range(NBUF):
    sb = 48 + 4 * b
    o("    s_and_b32 s39, s%d, 15" % (sb + 3))
    o("    s_cbranch_scc0 K2_main_done")
    o("    v_add_u32 v0, s%d, v%d" % (sb + 2, vSC))
    o("    ds_read_b64_tr_b16 v[%d:%d], v0 offset:%d" % (vS, vS + 1, L_S))
    o("    ds_read_b64_tr_b16 v[%d:%d], v0 offset:%d" % (vS + 2, vS + 3, L_S + 512))
    gen_next()
    vm_wait(1 - b)
    mm_all(b)
    issue_loads(b)
    o("    s_bitcmp0_b32 s%d, 5" % (sb + 3))
    o("    s_cbranch_scc1 K2_cont%d" % b)
    post(b)
    o("K2_cont%d:" % b)
    gen_to_slot(b)
o("    s_branch K2_loop")
o("K2_main_done:")
o("    s_cmp_eq_u32 s41, 0")
o("    s_cbranch_scc1 K2_final")
o("    s_add_u32 s42, s42, 1")
o("    s_cmp_ge_u32 s42, %d" % NCHUNK)
o("    s_cbranch_scc1 K2_final")
o("    s_waitcnt vmcnt(0) lgkmcnt(0)")
o("    s_barrier")
o("    s_lshl_b32 s39, s40, 6")
o("    v_lshrrev_b32 v0, 3, v%d" % vL8)
o("    v_add_u32 v0, s39, v0")
o("    s_branch K2_round")

o("K2_final:")
stamp()
if STAMP:
    o("    s_memtime s[78:79]")
    o("    s_waitcnt lgkmcnt(0)")
    o("    s_sub_u32 s78, s78, s76")
vW = 32
vB = 64
vC = 96
o("    s_and_b32 s44, s40, 3                 ; dp")
o("    s_lshr_b32 s45, s40, 2                ; rg")
o("    s_lshl_b32 s39, s44, 13")
o("    s_add_u32 s39, s39, 0x%x" % WS_WIMG)
o("    v_lshlrev_b32 v8, 1, v%d              ; lane*16" % vL8)
o("    v_add_u32 v8, s39, v8")
o("    v_add_u32 v9, 0x1000, v8")
o("    s_waitcnt vmcnt(0)")
for ts in range(8):
    base = "v8" if ts < 4 else "v9"
    o("    global_load_dwordx4 v[%d:%d], %s, s[22:23] offset:%d" % (vW + 4 * ts, vW + 4 * ts + 3, base, (ts & 3) * 1024))
o("    v_lshrrev_b32 v10, 3, v%d             ; lane" % vL8)
o("    v_bfe_u32 v11, v10, 2, 2              ; nl")
o("    v_and_b32 v12, 3, v10                 ; w")
o("    v_lshrrev_b32 v17, 4, v10             ; q")
o("    v_and_b32 v13, 15, v10")
o("    v_xor_b32 v13, v13, v17               ; q ^ col")
o("    v_lshlrev_b32 v15, 11, v11")
o("    v_lshl_add_u32 v15, v12, 8, v15")
o("    v_lshl_add_u32 v15, v13, 4, v15")
o("    v_lshlrev_b32 v16, 18, v11")
o("    v_lshl_add_u32 v16, v12, 8, v16")
o("    v_lshl_add_u32 v16, v17, 4, v16")
o("    s_lshl_b32 s39, s2, 10")
o("    s_lshl_b32 s46, s44, 6")
o("    s_add_u32 s39, s39, s46")
o("    v_add_u32 v16, s39, v16")
o("    s_waitcnt lgkmcnt(0)")
o("    s_barrier")
stamp()
o("K2_fin_loop:")
o("    s_lshl_b32 s39, s45, 13               ; rt*8192")
o("    s_add_u32 s39, s39, %d" % L_AGG)
o("    v_add_u32 v18, s39, v15")
for s in range(4):
    if s:
        o("    v_xor_b32 v19, %d, v18" % (64 * s))
    a = "v19" if s else "v18"
    o("    ds_read_b128 v[%d:%d], %s" % (vB + 8 * s, vB + 8 * s + 3, a))
    o("    ds_read_b128 v[%d:%d], %s offset:1024" % (vB + 8 * s + 4, vB + 8 * s + 7, a))
for s in range(4):
    o("    s_waitcnt lgkmcnt(%d)" % (6 - 2 * s))
    for p in range(4):
        o("    v_cvt_pk_bf16_f32 v%d, v%d, v%d" % (vC + 4 * s + p, vB + 8 * s + 2 * p, vB + 8 * s + 2 * p + 1))
o("    s_waitcnt vmcnt(0)")
o("    s_nop 0")
for s in range(4):
    for t in range(2):
        a = vW + 4 * (t * 4 + s)
        acc = 20 + 4 * t
        c = "0" if s == 0 else "v[%d:%d]" % (acc, acc + 3)
        o("    v_mfma_f32_16x16x32_bf16 v[%d:%d], v[%d:%d], v[%d:%d], %s" % (acc, acc + 3, a, a + 3, vC + 4 * s, vC + 4 * s + 3, c))
o("    s_lshl_b32 s39, s45, 20               ; rt*4*256*1024")
o("    s_nop 7")
for p in range(4):
    o("    v_cvt_pk_bf16_f32 v%d, v%d, v%d" % (28 + p, 20 + 2 * p, 21 + 2 * p))
o("    buffer_store_dwordx4 v[28:31], v16, s[28:31], s39 offen")
o("    s_add_u32 s45, s45, 4")
o("    s_cmp_lt_u32 s45, 10")
o("    s_cbranch_scc1 K2_fin_loop")
if STAMP:
    stamp()
    o("    s_waitcnt vmcnt(0)")
    stamp()
    o("    s_lshl_b32 s39, s2, 4")
    o("    s_add_u32 s39, s39, s40")
    o("    s_lshl_b32 s39, s39, 6")
    o("    s_add_u32 s39, s39, 0x8000000")
    o("    v_mov_b32 v1, s39")
    for i in range(nstamp[0]):
        o("    v_mov_b32 v2, s%d" % (84 + 2 * i))
        o("    global_store_dword v1, v2, s[22:23] offset:%d" % (4 * i))
    o("    v_mov_b32 v2, s78")
    o("    global_store_dword v1, v2, s[22:23] offset:%d" % (4 * 13))
    o("    v_mov_b32 v2, s41")
    o("    global_store_dword v1, v2, s[22:23] offset:%d" % (4 * 14))
    o("    v_mov_b32 v2, s34")
    o("    global_store_dword v1, v2, s[22:23] offset:%d" % (4 * 15))
o("K2_done:")
o("    s_endpgm")

o('.section .rodata,"a"')
for kn, vg, sg in (("gs_bin_kernel", 40, 32), (KN, 128, 102 if STAMP else 72)):
    o(".p2align 6")
    o(".amdhsa_kernel %s" % kn)
    o("  .amdhsa_next_free_vgpr %d" % vg)
    o("  .amdhsa_next_free_sgpr %d" % sg)
    o("  .amdhsa_accum_offset %d" % vg)
    o("  .amdhsa_group_segment_fixed_size 0")
    o("  .amdhsa_kernarg_size 88")
    o("  .amdhsa_user_sgpr_count 2")
    o("  .amdhsa_user_sgpr_kernarg_segment_ptr 1")
    o("  .amdhsa_system_sgpr_workgroup_id_x 1")
    o("  .amdhsa_float_denorm_mode_32 3")
    o(".end_amdhsa_kernel")

path = args[0] if args else "cdna_kernels/%s.s" % NAME
open(path, "w").write("\n".join(out) + "\n")
print("wrote", path, "K2_LDS", K2_LDS, "K1_LDS", K1_LDS, "L_S", L_S, "L_AGG", L_AGG)
```

```python
import sys
NAME = "gather_scatter__tensor_product_equiv_mace__graph"
N = 10000
E = 320000
CHUNK = 1280
NCHUNK = E // CHUNK
REC_BYTES = 20
WS_TAB = 0x700000
WS_WIMG = 0x780000

opts = [a for a in sys.argv[1:] if a.startswith("--")]
args = [a for a in sys.argv[1:] if not a.startswith("--")]
STAMP = "--stamp" in opts
def optval(name, default):
    for a in opts:
        if a.startswith("--" + name + "="):
            return int(a.split("=")[1])
    return default
NBUF = optval("nbuf", 1)
SKEW = optval("skew", 0)
PF1 = optval("pf1", 0)
PF2 = optval("pf2", 0)

out = []
def o(s=""):
    out.append(s)
nstamp = [0]
def stamp():
    if not STAMP: return
    i = nstamp[0]; nstamp[0] += 1
    o("    s_memrealtime s[%d:%d]" % (84 + 2 * i, 85 + 2 * i))
    o("    s_waitcnt lgkmcnt(0)")

HEADER = open("cdna_kernels/%s.s.ref" % NAME).read().split("\n")
hdr = [l for l in HEADER if l.startswith(";") and "@launch" not in l and "Override" not in l and "grid=ceil" not in l]

CAP = 1536
NKMAX = 40 + CAP // 32
L_WR = 0
L_CG = L_WR + 2048
L_CNT = L_CG + 2048
L_TABS = L_CNT + 256
L_LOCK = L_TABS + 256
L_FLAG = L_LOCK + 256
L_Q = L_FLAG + 4
L_NONCE = L_FLAG + 8
L_HIST = L_FLAG + 256
L_OFFS = L_HIST + 1024
L_SOFF = L_OFFS + 1024
L_S = L_SOFF + (NKMAX + 1) * 128
L_S = (L_S + 255) // 256 * 256
L_STG = L_S
L_AGG = L_S + (CAP + 32) * 32
L_AGG = (L_AGG + 2047) // 2048 * 2048
L_END = L_AGG + 40 * 2048
K2_LDS = L_END
assert K2_LDS <= 160 * 1024
OOB = 0x7f000000
NROW = NCHUNK + 4
TPC = 3
POLL_MAX = 1 << 14
NSLOW = (E + 1023) // 1024
PFX = optval("pfx", 3)
PFLATE = optval("pflate", 1)
PSLEEP = optval("psleep", 1)

for l in hdr:
    o(l)
o("; @launch grid=(256,1,1) block=(1024,1,1) lds=%d" % K2_LDS)
o('.amdgcn_target "amdgcn-amd-amdhsa--gfx950"')
o(".text")

def dpp_scan(v):
    for sh in (1, 2, 4, 8):
        o("    s_nop 1")
        o("    v_add_u32_dpp %s, %s, %s row_shr:%d row_mask:0xf bank_mask:0xf bound_ctrl:0" % (v, v, v, sh))
    o("    s_nop 1")
    o("    v_add_u32_dpp %s, %s, %s row_bcast:15 row_mask:0xa bank_mask:0xf" % (v, v, v))
    o("    s_nop 1")
    o("    v_add_u32_dpp %s, %s, %s row_bcast:31 row_mask:0xc bank_mask:0xf" % (v, v, v))
    o("    s_nop 1")

KN = NAME + "_kernel"
o(".globl %s" % KN)
o(".p2align 8")
o(".type %s,@function" % KN)
o("%s:" % KN)
vLaneOff = 1; vSoffC = 2; vSC = 3; vAggC = 4; vL8 = 5; vND = 6; vQ = 7
vP = 8; vS = 16; vCG = 20; vT = 22; vOne = 23; vA = 24
vRB = [32, 64]; vD = 96; vWR = 64
vREC = 32; vMETA = 96; vRANK = 104; vCA = 112
MM = 8
eD = 32; eS = 34; eSH = 36; eEA = 40; eB = 44; eR = 46

o("    s_cmp_ge_u32 s2, 256")
o("    s_cbranch_scc1 K2_done")
stamp()
o("    s_load_dwordx16 s[4:19], s[0:1], 0")
o("    s_load_dwordx4 s[68:71], s[0:1], 64")
o("    s_load_dwordx2 s[22:23], s[0:1], 80")
o("    v_and_b32 v8, 63, v0                  ; lane")
o("    v_lshrrev_b32 v9, 6, v0")
o("    s_mul_i32 s3, s2, %d" % CHUNK)
o("    v_readfirstlane_b32 s40, v9")
o("    v_lshl_add_u32 v14, v0, 1, s3")
o("    v_lshlrev_b32 v15, 2, v14")
o("    v_lshlrev_b32 v16, 3, v14")
o("    v_and_b32 v9, 15, v8                  ; col")
o("    v_lshrrev_b32 v10, 4, v8              ; g")
o("    v_lshlrev_b32 v%d, 4, v9              ; laneoff = col*16" % vLaneOff)
o("    v_lshlrev_b32 v%d, 5, v10             ; g*32" % vSoffC)
o("    v_lshrrev_b32 v11, 2, v9              ; r = col>>2")
o("    v_and_b32 v12, 3, v9                  ; c = col&3")
o("    v_lshl_add_u32 v13, v11, 2, v10       ; 4r+g")
o("    v_lshlrev_b32 v13, 5, v13")
o("    v_lshl_add_u32 v%d, v12, 3, v13       ; (4r+g)*32 + c*8" % vSC)
o("    v_xor_b32 v13, v9, v10                ; col ^ w")
o("    v_lshlrev_b32 v13, 4, v13")
o("    v_lshl_add_u32 v%d, v10, 8, v13       ; w*256 + (col^w)*16" % vAggC)
o("    v_lshlrev_b32 v%d, 3, v8              ; lane*8" % vL8)
o("    v_mov_b32 v%d, 1" % vOne)
o("    s_mov_b32 s32, 0x05040100")
o("    s_mov_b32 s33, 0x07060302")
o("    s_mov_b32 s41, 0")
o("    s_mov_b32 s42, 0                      ; round")
o("    s_waitcnt lgkmcnt(0)")
o("    s_cmp_ge_u32 s40, 10")
o("    s_cbranch_scc1 A_hiwaves")
o("    s_cmp_ge_u32 s2, %d" % NCHUNK)
o("    s_cbranch_scc1 A_wimg_issue")
o("    global_load_dwordx2 v[%d:%d], v15, s[8:9]      ; dst" % (eD, eD + 1))
o("    global_load_dwordx2 v[%d:%d], v15, s[6:7]      ; src" % (eS, eS + 1))
o("    global_load_dwordx4 v[%d:%d], v16, s[10:11]   ; sh" % (eSH, eSH + 3))
o("    global_load_dwordx4 v[%d:%d], v16, s[12:13]  ; ea" % (eEA, eEA + 3))
o("    s_branch A_issued")
o("A_wimg_issue:")
o("    s_cmp_ge_u32 s2, %d" % NROW)
o("    s_cbranch_scc1 A_issued")
o("    s_cmp_ge_u32 s40, 8")
o("    s_cbranch_scc1 A_issued")
o("    s_sub_u32 s3, s2, %d                  ; dp" % NCHUNK)
o("    v_bfe_u32 v14, v0, 8, 1               ; t")
o("    v_bfe_u32 v15, v0, 6, 2               ; s")
o("    v_lshlrev_b32 v16, 3, v10             ; q*8")
o("    v_lshl_add_u32 v16, v15, 5, v16       ; c0")
o("    v_lshlrev_b32 v17, 3, v11")
o("    v_lshl_add_u32 v17, v14, 2, v17")
o("    v_add_u32 v17, v17, v12")
o("    s_lshl_b32 s3, s3, 5")
o("    v_add_u32 v17, s3, v17                ; d")
o("    v_lshlrev_b32 v17, 1, v17")
o("    v_lshl_add_u32 v17, v16, 8, v17")
for j in range(8):
    o("    global_load_ushort v%d, v17, s[18:19] offset:%d" % (32 + j, 256 * j))
o("    s_branch A_issued")
o("A_hiwaves:")
o("    s_cmp_eq_u32 s40, 14")
o("    s_cbranch_scc1 A_wr_issue")
o("    s_cmp_eq_u32 s40, 13")
o("    s_cbranch_scc1 A_cg_issue")
o("    s_cmp_lg_u32 s40, 15")
o("    s_cbranch_scc1 A_issued")
o("    s_cmp_lg_u32 s2, 0")
o("    s_cbranch_scc1 A_issued")
o("    s_memrealtime s[44:45]")
o("    s_waitcnt lgkmcnt(0)")
o("    s_lshr_b64 s[46:47], s[44:45], 10")
o("    s_or_b32 s46, s46, 0x80000000")
o("    s_and_b32 s44, s44, 0x3ff")
o("    v_mov_b32 v14, s44")
o("    v_mov_b32 v15, s46")
o("    v_mov_b32 v16, 0")
o("    s_mov_b64 exec, 1")
o("    global_store_dwordx2 v16, v[14:15], s[70:71] sc1")
o("    s_mov_b64 exec, -1")
o("    s_branch A_issued")
o("A_wr_issue:")
for k in range(4):
    o("    global_load_dwordx4 v[%d:%d], v%d, s[16:17] offset:%d" % (96 + 4 * k, 96 + 4 * k + 3, vLaneOff, 256 * k))
o("    s_branch A_issued")
o("A_cg_issue:")
o("    v_lshlrev_b32 v17, 3, v10")
o("    v_lshl_add_u32 v17, v11, 1, v17")
for u in range(4):
    o("    global_load_ushort v%d, v17, s[14:15] offset:%d" % (96 + u, 32 * u))
o("A_issued:")
o("    s_mov_b32 s24, s4")
o("    s_and_b32 s25, s5, 0xffff")
o("    s_mov_b32 s26, %d" % (N * 1024))
o("    s_mov_b32 s27, 0x00020000")
o("    s_mov_b32 s28, s68")
o("    s_and_b32 s29, s69, 0xffff")
o("    s_mov_b32 s30, %d" % (N * 1024))
o("    s_mov_b32 s31, 0x00020000")
o("    v_lshlrev_b32 v18, 4, v0              ; tid*16")
for i in range(4):
    o("    v_mov_b32 v%d, 0" % (28 + i))
o("    v_cmp_gt_u32 vcc, 64, v0")
o("    s_and_saveexec_b64 s[44:45], vcc")
o("    ds_write_b128 v18, v[28:31] offset:%d" % L_HIST)
o("    s_mov_b64 exec, s[44:45]")
nz = (L_END - L_S) // 16
full = nz // 1024
rem = nz - full * 1024
o("    v_add_u32 v19, %d, v18" % L_S)
o("    v_add_u32 v20, %d, v18" % (L_S + 65536))
o("    v_add_u32 v21, %d, v18" % (L_S + 131072))
for i in range(full):
    off = i * 16384
    o("    ds_write_b128 v%d, v[28:31] offset:%d" % (19 + off // 65536, off % 65536))
if rem:
    off = full * 16384
    o("    v_cmp_gt_u32 vcc, %d, v0" % rem)
    o("    s_and_saveexec_b64 s[44:45], vcc")
    o("    ds_write_b128 v%d, v[28:31] offset:%d" % (19 + off // 65536, off % 65536))
    o("    s_mov_b64 exec, s[44:45]")

def round_init():
    o("    v_lshlrev_b32 v18, 4, v0")
    for i in range(4):
        o("    v_mov_b32 v%d, 0x%x" % (24 + i, OOB))
    o("    v_mov_b32 v28, 0")
    o("    v_mov_b32 v29, 16")
    o("    v_cmp_gt_u32 vcc, %d, v0" % ((NKMAX + 1) * 128 // 16))
    o("    s_and_saveexec_b64 s[44:45], vcc")
    o("    ds_write_b128 v18, v[24:27] offset:%d" % L_SOFF)
    o("    s_mov_b64 exec, s[44:45]")
    o("    v_cmp_gt_u32 vcc, 64, v0")
    o("    s_and_saveexec_b64 s[44:45], vcc")
    o("    v_lshlrev_b32 v19, 2, v0")
    o("    ds_write_b32 v19, v28 offset:%d" % L_CNT)
    o("    ds_write_b32 v19, v28 offset:%d" % L_LOCK)
    o("    v_mov_b32 v19, 0")
    o("    ds_write_b64 v19, v[28:29] offset:%d" % L_FLAG)
    o("    s_mov_b64 exec, s[44:45]")
round_init()
o("    s_cmp_eq_u32 s40, 13")
o("    s_cbranch_scc1 A_cg_build")
o("    s_cmp_lg_u32 s40, 14")
o("    s_cbranch_scc1 A_b1")
o("    s_waitcnt vmcnt(0)")
for i in range(4):
    for k in range(4):
        o("    v_lshlrev_b32 v%d, 16, v%d" % (112 + k, 96 + 4 * k + i))
        o("    v_and_b32 v%d, 0xffff0000, v%d" % (116 + k, 96 + 4 * k + i))
    o("    ds_write_b128 v%d, v[112:115] offset:%d" % (vLaneOff, L_WR + 256 * (2 * i)))
    o("    ds_write_b128 v%d, v[116:119] offset:%d" % (vLaneOff, L_WR + 256 * (2 * i + 1)))
o("    s_branch A_b1")
o("A_cg_build:")
o("    v_and_b32 v19, 1, v12")
o("    v_lshlrev_b32 v19, 4, v19             ; shift 0/16")
o("    v_cmp_gt_u32 vcc, 2, v12")
o("    s_waitcnt vmcnt(0)")
for u in range(4):
    o("    v_lshlrev_b32 v20, v19, v%d" % (96 + u))
    o("    v_cndmask_b32 v%d, 0, v20, vcc" % (112 + 2 * u))
    o("    v_xor_b32 v%d, v20, v%d" % (113 + 2 * u, 112 + 2 * u))
    o("    ds_write_b64 v%d, v[%d:%d] offset:%d" % (vL8, 112 + 2 * u, 113 + 2 * u, L_CG + 512 * u))
o("A_b1:")
o("    s_waitcnt lgkmcnt(0)")
o("    s_barrier                              ; A1")
o("    s_cmp_lg_u32 s40, 15")
o("    s_cbranch_scc1 A_nonce_done")
o("    v_mov_b32 v16, 0")
o("    s_mov_b32 s44, 0")
o("A_nonce_loop:")
o("    global_load_dwordx2 v[14:15], v16, s[70:71] sc1")
o("    s_waitcnt vmcnt(0)")
o("    v_readfirstlane_b32 s45, v15")
o("    s_cmp_lg_u32 s45, 0")
o("    s_cbranch_scc1 A_nonce_got")
o("    s_sleep 2")
o("    s_add_u32 s44, s44, 1")
o("    s_cmp_lt_u32 s44, %d" % POLL_MAX)
o("    s_cbranch_scc1 A_nonce_loop")
o("A_nonce_got:")
o("    ds_write_b64 v16, v[14:15] offset:%d" % L_NONCE)
o("A_nonce_done:")

def prefetch_x(tag):
    o("    s_cmp_lt_u32 s40, 12")
    o("    s_cbranch_scc1 %s" % tag)
    if PFX & 1:
        o("    s_lshr_b32 s3, s2, 3")
        o("    s_lshl_b32 s3, s3, 8")
        o("    s_and_b32 s44, s2, 7")
        o("    s_mul_i32 s44, s44, 1250")
        o("    s_add_u32 s3, s3, s44")
        o("    s_sub_u32 s3, s3, 768")
        o("    v_add_u32 v24, s3, v0")
        o("    v_subrev_u32 v25, 10000, v24")
        o("    v_min_u32 v24, v24, v25")
        o("    v_lshlrev_b32 v24, 10, v24")
        o("    buffer_load_dword v120, v24, s[24:27], 0 offen")
        o("    buffer_load_dword v121, v24, s[24:27], 0 offen offset:128")
        o("    s_lshr_b32 s45, s2, 3")
        o("    s_cmp_ge_u32 s45, 8")
        o("    s_cbranch_scc1 %s_a" % tag)
        o("    s_add_u32 s3, s3, 8192")
        o("    v_add_u32 v24, s3, v0")
        o("    v_subrev_u32 v25, 10000, v24")
        o("    v_min_u32 v24, v24, v25")
        o("    v_subrev_u32 v25, 10000, v24")
        o("    v_min_u32 v24, v24, v25")
        o("    v_lshlrev_b32 v24, 10, v24")
        o("    buffer_load_dword v122, v24, s[24:27], 0 offen")
        o("    buffer_load_dword v123, v24, s[24:27], 0 offen offset:128")
        o("%s_a:" % tag)
    if PFX & 2:
        o("    s_lshl_b32 s3, s2, 8")
        o("    s_sub_u32 s3, s3, 768")
        o("    v_add_u32 v24, s3, v0")
        o("    s_mov_b32 s44, 43691")
        o("    v_mul_lo_u32 v25, v24, s44")
        o("    v_lshrrev_b32 v25, 18, v25            ; /6")
        o("    v_mul_u32_u24 v26, 6, v25")
        o("    v_sub_u32 v26, v24, v26")
        o("    v_lshlrev_b32 v26, 7, v26")
        o("    v_lshl_add_u32 v24, v25, 10, v26")
        o("    buffer_load_dword v124, v24, s[24:27], 0 offen offset:256")
    o("%s:" % tag)

def publish_row():
    o("    v_mov_b32 v16, 0")
    o("    ds_read_b64 v[14:15], v16 offset:%d" % L_NONCE)
    o("    s_lshl_b32 s3, s2, 11")
    o("    s_add_u32 s3, s3, 0x%x" % WS_TAB)
    o("    v_lshl_add_u32 v17, v%d, 2, s3        ; lane*32" % vL8)
    o("    s_waitcnt lgkmcnt(0)")
    for i in range(4):
        o("    v_lshl_or_b32 v%d, v14, 22, v%d" % (48 + 2 * i, 56 + i))
        o("    v_mov_b32 v%d, v15" % (49 + 2 * i))
    o("    global_store_dwordx4 v17, v[48:51], s[22:23] sc1")
    o("    global_store_dwordx4 v17, v[52:55], s[22:23] offset:16 sc1")

o("    s_cmp_ge_u32 s2, %d" % NCHUNK)
o("    s_cbranch_scc1 A_alt")
o("    s_cmp_ge_u32 s40, 10")
o("    s_cbranch_scc1 A_b2")
o("    s_waitcnt vmcnt(3)")
o("    v_and_b32 v%d, 255, v%d" % (eB, eD))
o("    v_and_b32 v%d, 255, v%d" % (eB + 1, eD + 1))
o("    v_lshlrev_b32 v%d, 2, v%d" % (eB, eB))
o("    v_lshlrev_b32 v%d, 2, v%d" % (eB + 1, eB + 1))
o("    ds_add_rtn_u32 v%d, v%d, v%d offset:%d" % (eR, eB, vOne, L_HIST))
o("    ds_add_rtn_u32 v%d, v%d, v%d offset:%d" % (eR + 1, eB + 1, vOne, L_HIST))
o("    v_lshrrev_b32 v%d, 8, v%d" % (eD, eD))
o("    v_lshrrev_b32 v%d, 8, v%d" % (eD + 1, eD + 1))
o("A_b2:")
o("    s_waitcnt lgkmcnt(0)")
o("    s_barrier                              ; A2")
stamp()
if not PFLATE: prefetch_x("A_pf_done")
o("    s_cmp_lg_u32 s40, 0")
o("    s_cbranch_scc1 A_b3")
o("    v_lshlrev_b32 v14, 4, v0")
o("    ds_read_b128 v[24:27], v14 offset:%d" % L_HIST)
o("    s_waitcnt lgkmcnt(0)")
o("    v_add_u32 v28, v24, v25")
o("    v_add_u32 v29, v28, v26")
o("    v_add_u32 v30, v29, v27")
o("    v_mov_b32 v31, v30")
dpp_scan("v31")
o("    v_sub_u32 v60, v31, v30")
o("    v_add_u32 v61, v60, v24")
o("    v_add_u32 v62, v60, v28")
o("    v_add_u32 v63, v60, v29")
o("    ds_write_b128 v14, v[60:63] offset:%d" % L_OFFS)
for i in range(4):
    o("    v_lshl_or_b32 v%d, v%d, 11, v%d" % (56 + i, 24 + i, 60 + i))
o("    s_waitcnt lgkmcnt(0)")
o("A_b3:")
o("    s_barrier                              ; A3")
o("    s_cmp_ge_u32 s40, 10")
o("    s_cbranch_scc1 A_b4")
o("    ds_read_b32 v24, v%d offset:%d" % (eB, L_OFFS))
o("    ds_read_b32 v25, v%d offset:%d" % (eB + 1, L_OFFS))
o("    s_waitcnt vmcnt(0)")
o("    v_lshl_or_b32 v%d, v%d, 16, v%d          ; meta = src | local<<16" % (eD, eD, eS))
o("    v_lshl_or_b32 v%d, v%d, 16, v%d" % (eD + 1, eD + 1, eS + 1))
o("    s_waitcnt lgkmcnt(0)")
o("    v_add_u32 v24, v24, v%d" % eR)
o("    v_add_u32 v25, v25, v%d" % (eR + 1))
o("    v_mul_u32_u24 v24, %d, v24" % REC_BYTES)
o("    v_mul_u32_u24 v25, %d, v25" % REC_BYTES)
o("    v_add_u32 v24, %d, v24" % L_STG)
o("    v_add_u32 v25, %d, v25" % L_STG)
o("    ds_write2_b32 v24, v%d, v%d offset0:0 offset1:1" % (eSH, eSH + 1))
o("    ds_write2_b32 v24, v%d, v%d offset0:2 offset1:3" % (eEA, eEA + 1))
o("    ds_write_b32 v24, v%d offset:16" % eD)
o("    ds_write2_b32 v25, v%d, v%d offset0:0 offset1:1" % (eSH + 2, eSH + 3))
o("    ds_write2_b32 v25, v%d, v%d offset0:2 offset1:3" % (eEA + 2, eEA + 3))
o("    ds_write_b32 v25, v%d offset:16" % (eD + 1))
o("    s_waitcnt lgkmcnt(0)")
o("A_b4:")
o("    s_barrier                              ; A4")
o("    s_cmp_ge_u32 s40, 12")
o("    s_cbranch_scc1 A_b5")
o("    v_lshlrev_b32 v14, 4, v0")
o("    ds_read_b128 v[32:35], v14 offset:%d" % L_STG)
o("    ds_read_b128 v[36:39], v14 offset:%d" % (L_STG + 768 * 16))
o("    s_mul_i32 s3, s2, %d" % (CHUNK * REC_BYTES))
o("    v_add_u32 v24, s3, v14")
o("    v_add_u32 v25, %d, v24" % (768 * 16))
o("    s_waitcnt lgkmcnt(1)")
o("    global_store_dwordx4 v24, v[32:35], s[22:23] sc1")
o("    s_waitcnt lgkmcnt(0)")
o("    global_store_dwordx4 v25, v[36:39], s[22:23] sc1")
o("    s_cmp_lg_u32 s40, 1")
o("    s_cbranch_scc1 A_co_done")
o("    ds_read_b128 v[40:43], v14 offset:%d" % (L_STG + 2 * 768 * 16 - 1024))
o("    v_add_u32 v26, %d, v24" % (2 * 768 * 16 - 1024))
o("    s_waitcnt lgkmcnt(0)")
o("    global_store_dwordx4 v26, v[40:43], s[22:23] sc1")
o("A_co_done:")
o("    s_waitcnt vmcnt(0)")
o("A_b5:")
o("    s_barrier                              ; A5")
if PFLATE: prefetch_x("A_pf_done")
o("    s_cmp_lg_u32 s40, 0")
o("    s_cbranch_scc1 B_start")
publish_row()
o("    s_branch B_start")
o("A_alt:")
o("    s_cmp_ge_u32 s2, %d" % NROW)
o("    s_cbranch_scc1 A_alt_b")
o("    s_cmp_ge_u32 s40, 8")
o("    s_cbranch_scc1 A_alt_b")
o("    s_sub_u32 s3, s2, %d" % NCHUNK)
o("    s_lshl_b32 s3, s3, 13")
o("    s_add_u32 s3, s3, 0x%x" % WS_WIMG)
o("    v_lshl_add_u32 v14, v0, 4, s3")
o("    s_waitcnt vmcnt(0)")
for p in range(4):
    o("    v_lshl_or_b32 v%d, v%d, 16, v%d" % (40 + p, 33 + 2 * p, 32 + 2 * p))
o("    global_store_dwordx4 v14, v[40:43], s[22:23] sc1")
o("    s_waitcnt vmcnt(0)")
o("A_alt_b:")
o("    s_waitcnt lgkmcnt(0)")
o("    s_barrier")
if STAMP:
    o("    s_mov_b64 s[86:87], s[84:85]")
prefetch_x("A_pf_done2")
o("    s_cmp_lg_u32 s40, 0")
o("    s_cbranch_scc1 B_start")
o("    s_cmp_ge_u32 s2, %d" % NROW)
o("    s_cbranch_scc1 B_start")
for i in range(4):
    o("    v_mov_b32 v%d, 0" % (56 + i))
publish_row()

o("B_start:")
stamp()
for m in range(MM):
    o("    s_mov_b64 s[%d:%d], 0" % (48 + 2 * m, 49 + 2 * m))
o("    s_mov_b64 s[64:65], 0")
o("    s_cmp_ge_u32 s40, 12")
o("    s_cbranch_scc1 K2_rank_done2")
o("    v_mov_b32 v16, 0")
o("    ds_read_b64 v[20:21], v16 offset:%d" % L_NONCE)
o("    s_mov_b32 s44, 21846")
o("    v_mul_lo_u32 v14, v0, s44")
o("    v_lshrrev_b32 v14, 16, v14")
o("    v_mul_u32_u24 v17, 3, v14")
o("    v_sub_u32 v17, v0, v17                ; i0 = tid%3")
o("    s_lshl_b32 s3, s2, 3")
o("    s_add_u32 s3, s3, 0x%x" % WS_TAB)
o("    v_lshl_add_u32 v15, v14, 11, s3")
o("    v_cmp_gt_u32 vcc, %d, v14" % NROW)
o("    v_mov_b32 v18, 0")
o("    s_mov_b32 s44, 0")
o("    s_and_b64 exec, exec, vcc")
o("    s_waitcnt lgkmcnt(0)")
o("B_poll:")
o("    global_load_dwordx2 v[18:19], v15, s[22:23] sc1")
o("    s_waitcnt vmcnt(0)")
o("    v_lshrrev_b32 v24, 22, v18")
o("    v_cmp_ne_u32 vcc, v24, v20")
o("    v_cmp_ne_u32 s[46:47], v19, v21")
o("    s_or_b64 vcc, vcc, s[46:47]")
o("    s_and_b64 exec, exec, vcc")
o("    s_cbranch_execz B_polled")
o("    s_sleep %d" % PSLEEP)
o("    s_add_u32 s44, s44, 1")
o("    s_cmp_lt_u32 s44, %d" % POLL_MAX)
o("    s_cbranch_scc1 B_poll")
o("    v_mov_b32 v18, 0")
o("    s_mov_b64 s[64:65], -1")
o("B_polled:")
o("    s_mov_b64 exec, -1")
o("    v_readfirstlane_b32 s44, v21")
o("    s_cmp_lg_u32 s44, 0")
o("    s_cbranch_scc1 B_nonce_ok")
o("    v_mov_b32 v18, 0")
o("    s_mov_b64 s[64:65], -1")
o("B_nonce_ok:")
o("    v_and_b32 v19, 0x7ff, v18             ; start")
o("    v_bfe_u32 v18, v18, 11, 11            ; cnt")
o("    v_add_u32 v19, v19, v17")
o("    v_mul_u32_u24 v19, %d, v19" % REC_BYTES)
o("    s_mov_b32 s47, %d" % (CHUNK * REC_BYTES))
o("    v_mad_u32_u24 v19, v14, s47, v19")
for m in range(MM):
    o("    v_cmp_lt_u32 vcc, v17, v18")
    o("    s_and_b64 exec, exec, vcc")
    o("    s_cbranch_execz K2_loads_done")
    o("    s_mov_b64 s[%d:%d], exec" % (48 + 2 * m, 49 + 2 * m))
    o("    global_load_dwordx4 v[%d:%d], v19, s[22:23] offset:%d sc1" % (vREC + 8 * m, vREC + 8 * m + 3, m * TPC * REC_BYTES))
    o("    global_load_dword v%d, v19, s[22:23] offset:%d sc1" % (vMETA + m, m * TPC * REC_BYTES + 16))
    o("    v_add_u32 v17, %d, v17" % TPC)
o("    v_cmp_lt_u32 vcc, v17, v18")
o("    s_or_b64 s[64:65], s[64:65], vcc")
o("    s_branch K2_loads_done")

o("K2_round:")
round_init()
for m in range(MM):
    o("    s_mov_b64 s[%d:%d], 0" % (48 + 2 * m, 49 + 2 * m))
o("    s_mov_b64 s[64:65], 0")
o("    s_lshl_b32 s3, s42, 10")
o("    v_add_u32 v14, s3, v0                 ; edge")
o("    v_cmp_gt_u32 vcc, %d, v14" % E)
o("    v_min_u32 v14, %d, v14" % (E - 1))
o("    v_lshlrev_b32 v15, 2, v14")
o("    v_lshlrev_b32 v16, 3, v14")
o("    global_load_dword v17, v15, s[8:9]")
o("    global_load_dword v18, v15, s[6:7]")
o("    global_load_dwordx2 v[%d:%d], v16, s[10:11]" % (vREC, vREC + 1))
o("    global_load_dwordx2 v[%d:%d], v16, s[12:13]" % (vREC + 2, vREC + 3))
o("    s_waitcnt vmcnt(0) lgkmcnt(0)")
o("    s_barrier")
o("    v_and_b32 v19, 255, v17")
o("    v_cmp_eq_u32 s[46:47], s2, v19")
o("    v_lshrrev_b32 v17, 8, v17")
o("    v_lshl_or_b32 v%d, v17, 16, v18" % vMETA)
o("    s_and_b64 s[48:49], vcc, s[46:47]")

o("K2_loads_done:")
o("    s_mov_b64 exec, -1")
o("    s_cmp_eq_u64 s[64:65], 0")
o("    s_cbranch_scc1 K2_noflag")
o("    v_mov_b32 v19, 0")
o("    ds_write_b32 v19, v%d offset:%d" % (vOne, L_FLAG))
o("K2_noflag:")
o("    s_waitcnt vmcnt(0)")
for m in range(MM):
    o("    s_mov_b64 exec, s[%d:%d]" % (48 + 2 * m, 49 + 2 * m))
    o("    s_cbranch_execz K2_rank_done")
    o("    v_lshrrev_b32 v%d, 16, v%d" % (vCA + m, vMETA + m))
    o("    v_lshlrev_b32 v%d, 2, v%d" % (vCA + m, vCA + m))
    o("    ds_add_rtn_u32 v%d, v%d, v%d offset:%d" % (vRANK + m, vCA + m, vOne, L_CNT))
o("K2_rank_done:")
for m in range(MM):
    o("    s_mov_b64 exec, s[%d:%d]" % (48 + 2 * m, 49 + 2 * m))
    o("    s_cbranch_execz K2_S_done")
    r = vREC + 8 * m
    o("    v_lshlrev_b32 v8, 16, v%d" % r)
    o("    v_and_b32 v9, 0xffff0000, v%d" % r)
    o("    v_lshlrev_b32 v10, 16, v%d" % (r + 1))
    o("    v_and_b32 v11, 0xffff0000, v%d" % (r + 1))
    o("    v_lshlrev_b32 v12, 16, v%d" % (r + 2))
    o("    v_and_b32 v13, 0xffff0000, v%d" % (r + 2))
    o("    v_lshlrev_b32 v14, 16, v%d" % (r + 3))
    o("    v_and_b32 v15, 0xffff0000, v%d" % (r + 3))
    for v in range(4):
        o("    v_pk_mul_f32 v[28:29], v[12:13], v[%d:%d] op_sel:[0,%d] op_sel_hi:[1,%d]" % (8 + (v & 2), 9 + (v & 2), v & 1, v & 1))
        o("    v_pk_mul_f32 v[30:31], v[14:15], v[%d:%d] op_sel:[0,%d] op_sel_hi:[1,%d]" % (8 + (v & 2), 9 + (v & 2), v & 1, v & 1))
        o("    v_cvt_pk_bf16_f32 v%d, v28, v29" % (r + 2 * v))
        o("    v_cvt_pk_bf16_f32 v%d, v30, v31" % (r + 2 * v + 1))
    o("    v_and_b32 v%d, 0xffff, v%d" % (vMETA + m, vMETA + m))
    o("    v_lshlrev_b32 v%d, 10, v%d" % (vMETA + m, vMETA + m))
o("K2_rank_done2:")
o("K2_S_done:")
o("    s_mov_b64 exec, -1")
o("    s_waitcnt lgkmcnt(0)")
o("    s_barrier")
stamp()
o("    v_lshrrev_b32 v19, 1, v%d             ; lane*4" % vL8)
o("    ds_read_b32 v24, v19 offset:%d" % L_CNT)
o("    v_mov_b32 v20, 0")
o("    ds_read_b32 v21, v20 offset:%d" % L_FLAG)
o("    s_waitcnt lgkmcnt(0)")
o("    v_add_u32 v25, 31, v24")
o("    v_lshrrev_b32 v25, 5, v25             ; nks")
o("    v_lshl_or_b32 v26, v25, 16, v24       ; packed")
o("    v_mov_b32 v27, v26")
dpp_scan("v27")
o("    v_readlane_b32 s34, v27, 63")
o("    v_readfirstlane_b32 s35, v21")
o("    v_sub_u32 v27, v27, v26")
o("    ds_write_b32 v19, v27 offset:%d" % L_TABS)
o("    s_and_b32 s36, s34, 0xffff            ; total")
o("    s_lshr_b32 s34, s34, 16               ; nK")
o("    s_cmp_gt_u32 s36, %d" % CAP)
o("    s_cselect_b32 s36, 1, 0")
o("    s_or_b32 s35, s35, s36")
o("    s_cmp_eq_u32 s35, 0")
o("    s_cbranch_scc1 K2_ok")
o("    s_mov_b32 s41, 1")
o("    s_waitcnt lgkmcnt(0)")
o("    s_barrier")
o("    s_branch K2_round")
o("K2_ok:")
o("    v_and_b32 v20, 0xffff, v27")
o("    v_lshrrev_b32 v21, 16, v27")
o("    v_lshl_or_b32 v20, v21, 11, v20")
o("    v_lshl_or_b32 v%d, v24, 18, v20       ; node desc: Sstart | kstart<<11 | cnt<<18" % vND)
for m in range(MM):
    o("    s_mov_b64 exec, s[%d:%d]" % (48 + 2 * m, 49 + 2 * m))
    o("    s_cbranch_execz K2_tabs_done")
    o("    ds_read_b32 v%d, v%d offset:%d" % (vCA + m, vCA + m, L_TABS))
o("K2_tabs_done:")
o("    s_waitcnt lgkmcnt(0)")
for m in range(MM):
    o("    s_mov_b64 exec, s[%d:%d]" % (48 + 2 * m, 49 + 2 * m))
    o("    s_cbranch_execz K2_scatter_done")
    r = vREC + 8 * m
    rank = vRANK + m
    tb = vCA + m
    o("    v_and_b32 v25, 0xffff, v%d" % tb)
    o("    v_add_lshl_u32 v25, v25, v%d, 5" % rank)
    o("    ds_write_b128 v25, v[%d:%d] offset:%d" % (r, r + 3, L_S))
    o("    ds_write_b128 v25, v[%d:%d] offset:%d" % (r + 4, r + 7, L_S + 16))
    o("    v_lshrrev_b32 v26, 16, v%d" % tb)
    o("    v_lshrrev_b32 v27, 5, v%d" % rank)
    o("    v_add_lshl_u32 v26, v26, v27, 7")
    o("    v_and_b32 v27, 3, v%d" % rank)
    o("    v_lshl_add_u32 v26, v27, 5, v26")
    o("    v_and_or_b32 v26, v%d, 28, v26" % rank)
    o("    ds_write_b32 v26, v%d offset:%d" % (vMETA + m, L_SOFF))
o("K2_scatter_done:")
o("    s_mov_b64 exec, -1")
o("    s_waitcnt lgkmcnt(0)")
o("    s_barrier")
stamp()
if STAMP:
    o("    s_memtime s[76:77]")
    o("    s_waitcnt lgkmcnt(0)")

NITEM = 160
uid = [0]
def dequeue():
    o("    s_mov_b64 exec, 1")
    o("    ds_add_rtn_u32 v%d, v%d, v%d offset:%d" % (vQ, vLaneOff, vOne, L_Q))
    o("    s_mov_b64 exec, -1")

def gen_next(first_id_in_s38=False):
    t = "G%d" % uid[0]; uid[0] += 1
    if first_id_in_s38:
        o("    s_branch %s_dec" % t)
    else:
        o("    s_cmp_eq_u32 s62, 0")
        o("    s_cbranch_scc1 %s_retry" % t)
        o("    s_add_u32 s63, s63, 1")
        o("    s_add_u32 s64, s64, 1024")
        o("    s_mov_b32 s65, 0")
        o("    s_branch %s_cnt" % t)
    o("%s_retry:" % t)
    o("    s_waitcnt lgkmcnt(0)")
    o("    v_readfirstlane_b32 s38, v%d" % vQ)
    dequeue()
    o("%s_dec:" % t)
    o("    s_cmp_lt_u32 s38, %d" % NITEM)
    o("    s_cbranch_scc1 %s_valid" % t)
    o("    s_mov_b32 s65, 0")
    o("    s_mov_b32 s62, 0")
    o("    s_branch %s_end" % t)
    o("%s_valid:" % t)
    if SKEW:
        o("    s_lshr_b32 s39, s38, 2")
        o("    v_readlane_b32 s39, v%d, s39" % vT)
        o("    s_lshl_b32 s60, s38, 3")
        o("    s_lshr_b32 s39, s39, s60")
        o("    s_bfe_u32 s60, s39, 0x20006           ; u")
        o("    s_and_b32 s61, s39, 63                ; node")
    else:
        o("    s_mul_i32 s60, s38, 1639")
        o("    s_lshr_b32 s60, s60, 16               ; u = id / 40")
        o("    s_mul_i32 s61, s60, 40")
        o("    s_sub_u32 s61, s38, s61               ; node")
    o("    v_readlane_b32 s39, v%d, s61" % vND)
    o("    s_lshr_b32 s62, s39, 18               ; cnt")
    o("    s_cbranch_scc0 %s_retry" % t)
    o("    s_bfe_u32 s63, s39, 0x7000b           ; kstart")
    o("    s_and_b32 s64, s39, 0x7ff")
    o("    s_lshl_b32 s64, s64, 5")
    o("    s_mov_b32 s65, 16")
    o("%s_cnt:" % t)
    o("    s_min_u32 s39, s62, 32")
    o("    s_sub_u32 s62, s62, s39")
    o("    s_add_u32 s39, s39, 3")
    o("    s_lshr_b32 s39, s39, 2")
    o("    s_or_b32 s65, s65, s39")
    o("    s_cmp_eq_u32 s62, 0")
    o("    s_cselect_b32 s39, 32, 0")
    o("    s_or_b32 s65, s65, s39")
    o("    s_lshl_b32 s39, s63, 7")
    o("    v_add_u32 v0, s39, v%d" % vSoffC)
    o("    ds_read_b128 v[%d:%d], v0 offset:%d" % (vA, vA + 3, L_SOFF))
    o("    ds_read_b128 v[%d:%d], v0 offset:%d" % (vA + 4, vA + 7, L_SOFF + 16))
    o("%s_end:" % t)

def issue_loads(b):
    t = "L%d" % uid[0]; uid[0] += 1
    o("    s_lshl_b32 s37, s60, 8")
    if "--u0" in opts: o("    s_mov_b32 s37, 0")
    o("    s_and_b32 s39, s65, 15")
    o("    s_cbranch_scc0 %s_e" % t)
    for j in range(8):
        o("    v_add_u32 v%d, v%d, v%d" % (vA + j, vA + j, vLaneOff))
        if j < 7:
            o("    s_cmp_eq_u32 s39, %d" % (j + 1))
        o("    buffer_load_dwordx4 v[%d:%d], v%d, s[24:27], s37 offen" % (vRB[b] + 4 * j, vRB[b] + 4 * j + 3, vA + j))
        if j < 7:
            o("    s_cbranch_scc1 %s_e" % t)
    o("%s_e:" % t)

def gen_to_slot(b):
    sb = 48 + 4 * b
    o("    s_mov_b64 s[%d:%d], s[60:61]" % (sb, sb + 1))
    o("    s_mov_b64 s[%d:%d], s[64:65]" % (sb + 2, sb + 3))

def perms(b, j, pbase, npair):
    i = j >> 1
    sel = "s32" if (j & 1) == 0 else "s33"
    for jj in range(npair):
        a = vRB[b] + 4 * (2 * jj) + i
        c = vRB[b] + 4 * (2 * jj + 1) + i
        o("    v_perm_b32 v%d, v%d, v%d, %s" % (pbase + jj, c, a, sel))
def mm(b, acc, npair):
    if "--nomm" in opts: return
    sb = 48 + 4 * b
    t = "Z%d" % uid[0]; uid[0] += 1
    o("    s_bitcmp0_b32 s%d, 0" % (sb + 3))
    o("    s_cbranch_scc1 %s" % t)
    for i in range(4):
        o("    v_mov_b32 v%d, 0" % (vRB[b] + 4 * (2 * npair - 1) + i))
    o("%s:" % t)
    k16 = npair <= 2
    if npair in (1, 3):
        o("    v_mov_b32 v%d, 0" % (vP + npair))
        o("    v_mov_b32 v%d, 0" % (vP + 4 + npair))
    perms(b, 0, vP, npair)
    for j in range(8):
        if j + 1 < 8:
            perms(b, j + 1, vP + 4 * ((j + 1) & 1), npair)
        if npair == 1 or j == 7:
            o("    s_nop 0")
        pb = vP + 4 * (j & 1)
        c = "v[%d:%d]" % (vD + 4 * j, vD + 4 * j + 3) if acc else "0"
        if k16:
            o("    v_mfma_f32_16x16x16_bf16 v[%d:%d], v[%d:%d], v[%d:%d], %s" % (vD + 4 * j, vD + 4 * j + 3, vS, vS + 1, pb, pb + 1, c))
        else:
            o("    v_mfma_f32_16x16x32_bf16 v[%d:%d], v[%d:%d], v[%d:%d], %s" % (vD + 4 * j, vD + 4 * j + 3, vS, vS + 3, pb, pb + 3, c))

def mm_all(b):
    sb = 48 + 4 * b
    o("    s_and_b32 s39, s%d, 15" % (sb + 3))
    o("    s_bitcmp0_b32 s%d, 4" % (sb + 3))
    o("    s_cbranch_scc1 M%d_acc" % b)
    for acc in (False, True):
        a = "a" if acc else "f"
        if acc: o("M%d_acc:" % b)
        o("    s_cmp_gt_u32 s39, 6")
        o("    s_cbranch_scc1 M%d%s4" % (b, a))
        o("    s_cmp_gt_u32 s39, 4")
        o("    s_cbranch_scc1 M%d%s3" % (b, a))
        o("    s_cmp_gt_u32 s39, 2")
        o("    s_cbranch_scc1 M%d%s2" % (b, a))
        for npair in (1, 2, 3, 4):
            o("M%d%s%d:" % (b, a, npair))
            mm(b, acc, npair)
            if not (acc and npair == 4):
                o("    s_branch M%d_done" % b)
    o("M%d_done:" % b)

def vm_wait(other):
    if NBUF == 1:
        o("    s_waitcnt vmcnt(0) lgkmcnt(0)")
        return
    t = "W%d" % uid[0]; uid[0] += 1
    sb = 48 + 4 * other
    o("    s_and_b32 s39, s%d, 15" % (sb + 3))
    o("    s_cmp_eq_u32 s39, 8")
    o("    s_cbranch_scc1 %s_8" % t)
    o("    s_cmp_ge_u32 s39, 4")
    o("    s_cbranch_scc1 %s_hi" % t)
    o("    s_cmp_ge_u32 s39, 2")
    o("    s_cbranch_scc1 %s_2" % t)
    o("    s_waitcnt vmcnt(0)")
    o("%s_2:" % t)
    o("    s_waitcnt vmcnt(2)")
    o("%s_hi:" % t)
    o("    s_cmp_ge_u32 s39, 6")
    o("    s_cbranch_scc1 %s_6" % t)
    o("    s_waitcnt vmcnt(4)")
    o("%s_6:" % t)
    o("    s_waitcnt vmcnt(6)")
    o("%s_8:" % t)
    o("    s_waitcnt vmcnt(8) lgkmcnt(0)")

def tile_fma(j, w):
    d = vD + 4 * j
    o("    v_mul_f32 v%d, v%d, v%d" % (d, d, w))
    for k in range(1, 4):
        o("    v_fmac_f32 v%d, v%d, v%d" % (d, d + k, w + k))
def wr_read(j, w):
    o("    ds_read_b128 v[%d:%d], v%d offset:%d" % (w, w + 3, vLaneOff, L_WR + 256 * j))
def lock_try():
    o("    s_mov_b64 exec, 1")
    o("    ds_wrxchg_rtn_b32 v%d, v%d, v%d offset:%d" % (vS + 2, vS, vOne, L_LOCK))
    o("    s_mov_b64 exec, -1")
    o("    ds_read_b128 v[%d:%d], v%d" % (vP, vP + 3, vS + 1))
    o("    ds_read_b128 v[%d:%d], v%d offset:1024" % (vP + 4, vP + 7, vS + 1))

def post(b):
    if "--nopost" in opts: return
    sb = 48 + 4 * b
    t = "P%d" % b
    if NBUF == 2:
        wr_read(0, vP); wr_read(1, vP + 4); wr_read(2, vA); wr_read(3, vA + 4)
    o("    s_lshl_b32 s38, s%d, 9" % sb)
    o("    v_add_u32 v0, s38, v%d" % vL8)
    o("    ds_read_b64 v[%d:%d], v0 offset:%d" % (vCG, vCG + 1, L_CG))
    o("    s_lshl_b32 s38, s%d, 2" % (sb + 1))
    o("    v_mov_b32 v%d, s38                    ; lock addr" % vS)
    o("    s_and_b32 s38, s%d, 3" % (sb + 1))
    o("    s_lshl_b32 s38, s38, 6")
    o("    s_lshl_b32 s39, s%d, 11" % (sb + 1))
    o("    s_add_u32 s39, s39, %d" % L_AGG)
    o("    s_or_b32 s38, s38, s39")
    o("    v_xor_b32 v%d, s38, v%d               ; agg addr" % (vS + 1, vAggC))
    o("    v_mov_b32 v%d, 0" % (vS + 3))
    if NBUF == 2:
        o("    s_waitcnt lgkmcnt(4)")
        tile_fma(0, vP)
        o("    s_waitcnt lgkmcnt(3)")
        tile_fma(1, vP + 4)
        wr_read(4, vP); wr_read(5, vP + 4)
        o("    s_waitcnt lgkmcnt(4)")
        tile_fma(2, vA)
        o("    s_waitcnt lgkmcnt(3)")
        tile_fma(3, vA + 4)
        wr_read(6, vA); wr_read(7, vA + 4)
        o("    v_cvt_pk_bf16_f32 v%d, v%d, v%d" % (vD + 2, vD, vD + 4))
        o("    v_cvt_pk_bf16_f32 v%d, v%d, v%d" % (vD + 3, vD + 8, vD + 12))
        o("    s_waitcnt lgkmcnt(3)")
        tile_fma(4, vP)
        o("    s_waitcnt lgkmcnt(2)")
        tile_fma(5, vP + 4)
        lock_try()
        o("    s_waitcnt lgkmcnt(4)")
        tile_fma(6, vA)
        o("    s_waitcnt lgkmcnt(3)")
        tile_fma(7, vA + 4)
    else:
        for j in range(4):
            tile_fma(j, vWR + 4 * j)
        o("    v_cvt_pk_bf16_f32 v%d, v%d, v%d" % (vD + 2, vD, vD + 4))
        o("    v_cvt_pk_bf16_f32 v%d, v%d, v%d" % (vD + 3, vD + 8, vD + 12))
        lock_try()
        for j in range(4, 8):
            tile_fma(j, vWR + 4 * j)
    o("    v_cvt_pk_bf16_f32 v%d, v%d, v%d" % (vD + 6, vD + 16, vD + 20))
    o("    v_cvt_pk_bf16_f32 v%d, v%d, v%d" % (vD + 7, vD + 24, vD + 28))
    o("%s_chk:" % t)
    o("    s_waitcnt lgkmcnt(0)")
    o("    v_readfirstlane_b32 s38, v%d" % (vS + 2))
    o("    s_cmp_eq_u32 s38, 0")
    o("    s_cbranch_scc1 %s_got" % t)
    lock_try()
    o("    s_branch %s_chk" % t)
    o("%s_got:" % t)
    o("    v_mfma_f32_16x16x16_bf16 v[%d:%d], v[%d:%d], v[%d:%d], v[%d:%d]" % (vP, vP + 3, vCG, vCG + 1, vD + 2, vD + 3, vP, vP + 3))
    o("    v_mfma_f32_16x16x16_bf16 v[%d:%d], v[%d:%d], v[%d:%d], v[%d:%d]" % (vP + 4, vP + 7, vCG, vCG + 1, vD + 6, vD + 7, vP + 4, vP + 7))
    o("    s_nop 7")
    o("    ds_write_b128 v%d, v[%d:%d]" % (vS + 1, vP, vP + 3))
    o("    ds_write_b128 v%d, v[%d:%d] offset:1024" % (vS + 1, vP + 4, vP + 7))
    o("    s_mov_b64 exec, 1")
    o("    ds_write_b32 v%d, v%d offset:%d" % (vS, vS + 3, L_LOCK))
    o("    s_mov_b64 exec, -1")

dequeue()
o("    s_mov_b32 s38, s40")
o("    s_mov_b32 s60, 0")
gen_next(True)
o("    s_waitcnt lgkmcnt(0)")
issue_loads(0)
gen_to_slot(0)
if NBUF == 2:
    gen_next()
    o("    s_waitcnt lgkmcnt(0)")
    issue_loads(1)
    gen_to_slot(1)
else:
    for j in range(8):
        wr_read(j, vWR + 4 * j)
o("K2_loop:")
for b in range(NBUF):
    sb = 48 + 4 * b
    o("    s_and_b32 s39, s%d, 15" % (sb + 3))
    o("    s_cbranch_scc0 K2_main_done")
    o("    v_add_u32 v0, s%d, v%d" % (sb + 2, vSC))
    o("    ds_read_b64_tr_b16 v[%d:%d], v0 offset:%d" % (vS, vS + 1, L_S))
    o("    ds_read_b64_tr_b16 v[%d:%d], v0 offset:%d" % (vS + 2, vS + 3, L_S + 512))
    gen_next()
    vm_wait(1 - b)
    mm_all(b)
    issue_loads(b)
    o("    s_bitcmp0_b32 s%d, 5" % (sb + 3))
    o("    s_cbranch_scc1 K2_cont%d" % b)
    post(b)
    o("K2_cont%d:" % b)
    gen_to_slot(b)
o("    s_branch K2_loop")
o("K2_main_done:")
o("    s_cmp_eq_u32 s41, 0")
o("    s_cbranch_scc1 K2_final")
o("    s_add_u32 s42, s42, 1")
o("    s_cmp_ge_u32 s42, %d" % NSLOW)
o("    s_cbranch_scc1 K2_final")
o("    s_waitcnt vmcnt(0) lgkmcnt(0)")
o("    s_barrier")
o("    s_lshl_b32 s39, s40, 6")
o("    v_lshrrev_b32 v0, 3, v%d" % vL8)
o("    v_add_u32 v0, s39, v0")
o("    s_branch K2_round")

o("K2_final:")
stamp()
if STAMP:
    o("    s_memtime s[78:79]")
    o("    s_waitcnt lgkmcnt(0)")
    o("    s_sub_u32 s78, s78, s76")
vW = 32
vB = 64
vC = 96
o("    s_and_b32 s44, s40, 3                 ; dp")
o("    s_lshr_b32 s45, s40, 2                ; rg")
o("    s_lshl_b32 s39, s44, 13")
o("    s_add_u32 s39, s39, 0x%x" % WS_WIMG)
o("    v_lshlrev_b32 v8, 1, v%d              ; lane*16" % vL8)
o("    v_add_u32 v8, s39, v8")
o("    v_add_u32 v9, 0x1000, v8")
o("    s_waitcnt vmcnt(0)")
o("    v_lshrrev_b32 v10, 3, v%d             ; lane" % vL8)
o("    s_cmp_lg_u32 s41, 0")
o("    s_cbranch_scc1 F_wslow")
for ts in range(8):
    base = "v8" if ts < 4 else "v9"
    o("    global_load_dwordx4 v[%d:%d], %s, s[22:23] offset:%d sc1" % (vW + 4 * ts, vW + 4 * ts + 3, base, (ts & 3) * 1024))
o("    s_branch F_wdone")
o("F_wslow:")
o("    v_lshrrev_b32 v11, 4, v10             ; q")
o("    v_bfe_u32 v12, v10, 2, 2")
o("    v_and_b32 v13, 3, v10")
o("    v_lshl_add_u32 v12, v12, 3, v13")
o("    s_lshl_b32 s39, s44, 5")
o("    v_add_u32 v12, s39, v12               ; d (t=0)")
o("    v_lshlrev_b32 v12, 1, v12")
o("    v_lshl_add_u32 v12, v11, 11, v12      ; + q*8*256")
for t in range(2):
    for s_ in range(4):
        o("    v_add_u32 v13, %d, v12" % (s_ * 32 * 256 + t * 8))
        for j in range(8):
            o("    global_load_ushort v%d, v13, s[18:19] offset:%d" % (vB + j, 256 * j))
        o("    s_waitcnt vmcnt(0)")
        for p in range(4):
            o("    v_lshl_or_b32 v%d, v%d, 16, v%d" % (vW + 4 * (t * 4 + s_) + p, vB + 2 * p + 1, vB + 2 * p))
o("F_wdone:")
o("    v_bfe_u32 v11, v10, 2, 2              ; nl")
o("    v_and_b32 v12, 3, v10                 ; w")
o("    v_lshrrev_b32 v17, 4, v10             ; q")
o("    v_and_b32 v13, 15, v10")
o("    v_xor_b32 v13, v13, v17               ; q ^ col")
o("    v_lshlrev_b32 v15, 11, v11")
o("    v_lshl_add_u32 v15, v12, 8, v15")
o("    v_lshl_add_u32 v15, v13, 4, v15")
o("    v_lshlrev_b32 v16, 18, v11")
o("    v_lshl_add_u32 v16, v12, 8, v16")
o("    v_lshl_add_u32 v16, v17, 4, v16")
o("    s_lshl_b32 s39, s2, 10")
o("    s_lshl_b32 s46, s44, 6")
o("    s_add_u32 s39, s39, s46")
o("    v_add_u32 v16, s39, v16")
o("    s_waitcnt lgkmcnt(0)")
o("    s_barrier")
stamp()
o("K2_fin_loop:")
o("    s_lshl_b32 s39, s45, 13               ; rt*8192")
o("    s_add_u32 s39, s39, %d" % L_AGG)
o("    v_add_u32 v18, s39, v15")
for s in range(4):
    if s:
        o("    v_xor_b32 v19, %d, v18" % (64 * s))
    a = "v19" if s else "v18"
    o("    ds_read_b128 v[%d:%d], %s" % (vB + 8 * s, vB + 8 * s + 3, a))
    o("    ds_read_b128 v[%d:%d], %s offset:1024" % (vB + 8 * s + 4, vB + 8 * s + 7, a))
for s in range(4):
    o("    s_waitcnt lgkmcnt(%d)" % (6 - 2 * s))
    for p in range(4):
        o("    v_cvt_pk_bf16_f32 v%d, v%d, v%d" % (vC + 4 * s + p, vB + 8 * s + 2 * p, vB + 8 * s + 2 * p + 1))
o("    s_waitcnt vmcnt(0)")
o("    s_nop 0")
for s in range(4):
    for t in range(2):
        a = vW + 4 * (t * 4 + s)
        acc = 20 + 4 * t
        c = "0" if s == 0 else "v[%d:%d]" % (acc, acc + 3)
        o("    v_mfma_f32_16x16x32_bf16 v[%d:%d], v[%d:%d], v[%d:%d], %s" % (acc, acc + 3, a, a + 3, vC + 4 * s, vC + 4 * s + 3, c))
o("    s_lshl_b32 s39, s45, 20               ; rt*4*256*1024")
o("    s_nop 7")
for p in range(4):
    o("    v_cvt_pk_bf16_f32 v%d, v%d, v%d" % (28 + p, 20 + 2 * p, 21 + 2 * p))
o("    buffer_store_dwordx4 v[28:31], v16, s[28:31], s39 offen")
o("    s_add_u32 s45, s45, 4")
o("    s_cmp_lt_u32 s45, 10")
o("    s_cbranch_scc1 K2_fin_loop")
if STAMP:
    stamp()
    o("    s_waitcnt vmcnt(0)")
    stamp()
    o("    s_lshl_b32 s39, s2, 4")
    o("    s_add_u32 s39, s39, s40")
    o("    s_lshl_b32 s39, s39, 6")
    o("    s_add_u32 s39, s39, 0x8000000")
    o("    v_mov_b32 v1, s39")
    for i in range(nstamp[0]):
        o("    v_mov_b32 v2, s%d" % (84 + 2 * i))
        o("    global_store_dword v1, v2, s[22:23] offset:%d" % (4 * i))
    if "--dbgstamp" in opts:
        o("    v_mov_b32 v3, 0")
        o("    s_mov_b64 exec, 1")
        for i in range(nstamp[0]):
            o("    v_mov_b32 v2, s%d" % (84 + 2 * i))
            o("    global_atomic_umax v3, v2, s[70:71] offset:%d" % (12 + 4 * i))
        o("    s_not_b32 s39, s84")
        o("    v_mov_b32 v2, s39")
        o("    global_atomic_umax v3, v2, s[70:71] offset:8")
        o("    s_mov_b64 exec, -1")
    o("    v_mov_b32 v2, s78")
    o("    global_store_dword v1, v2, s[22:23] offset:%d" % (4 * 13))
    o("    v_mov_b32 v2, s41")
    o("    global_store_dword v1, v2, s[22:23] offset:%d" % (4 * 14))
    o("    v_mov_b32 v2, s34")
    o("    global_store_dword v1, v2, s[22:23] offset:%d" % (4 * 15))
o("K2_done:")
o("    s_endpgm")

o('.section .rodata,"a"')
for kn, vg, sg in ((KN, 128, 102 if STAMP else 72),):
    o(".p2align 6")
    o(".amdhsa_kernel %s" % kn)
    o("  .amdhsa_next_free_vgpr %d" % vg)
    o("  .amdhsa_next_free_sgpr %d" % sg)
    o("  .amdhsa_accum_offset %d" % vg)
    o("  .amdhsa_group_segment_fixed_size 0")
    o("  .amdhsa_kernarg_size 88")
    o("  .amdhsa_user_sgpr_count 2")
    o("  .amdhsa_user_sgpr_kernarg_segment_ptr 1")
    o("  .amdhsa_system_sgpr_workgroup_id_x 1")
    o("  .amdhsa_float_denorm_mode_32 3")
    o(".end_amdhsa_kernel")

path = args[0] if args else "cdna_kernels/%s.s" % NAME
open(path, "w").write("\n".join(out) + "\n")
print("wrote", path, "K2_LDS", K2_LDS, "L_S", L_S, "L_AGG", L_AGG)
```

```python
import sys
NAME = "gather_scatter__tensor_product_equiv_mace__graph"
N = 10000
E = 320000
CHUNK = 1280
NCHUNK = E // CHUNK
REC_BYTES = 20
WS_TAB = 0x700000
WS_WIMG = 0x780000

opts = [a for a in sys.argv[1:] if a.startswith("--")]
args = [a for a in sys.argv[1:] if not a.startswith("--")]
STAMP = "--stamp" in opts
def optval(name, default):
    for a in opts:
        if a.startswith("--" + name + "="):
            return int(a.split("=")[1])
    return default
NBUF = optval("nbuf", 1)
TABSC1 = optval("tabsc1", 0)
K1T = optval("k1t", 0)
DF = optval("df", 1)
FSW = optval("fsw", 0)
ROT = optval("rot", 0)
DPW = optval("dpw", 0)
DPN = optval("dpn", 40)
DPG = optval("dpg", 8)
SPM = optval("spm", 0)
SPM2 = optval("spm2", 0)
SP0A = optval("sp0a", 0)
SP0B = optval("sp0b", 0)
B2T = optval("b2t", 0)
TLB = optval("tlb", 0)
SYNCQ = optval("syncq", 0)
LATE = optval("late", 0)
SKEW = optval("skew", 0)
PF1 = optval("pf1", 0)
PF2 = optval("pf2", 0)

out = []
def o(s=""):
    out.append(s)
nstamp = [0]
def stamp():
    if not STAMP: return
    i = nstamp[0]; nstamp[0] += 1
    o("    s_memrealtime s[%d:%d]" % (84 + 2 * i, 85 + 2 * i))
    o("    s_waitcnt lgkmcnt(0)")

HEADER = open("cdna_kernels/%s.s.ref" % NAME).read().split("\n")
hdr = [l for l in HEADER if l.startswith(";") and "@launch" not in l and "Override" not in l and "grid=ceil" not in l]

CAP = 1536
NKMAX = 40 + CAP // 32
L_WR = 0
L_CG = L_WR + 2048
L_CNT = L_CG + 2048
L_TABS = L_CNT + 256
L_LOCK = L_TABS + 256
L_FLAG = L_LOCK + 256
L_Q = L_FLAG + 4
L_FQ = L_FLAG + 16
L_TC = L_FLAG + 64
L_SOFF = L_FLAG + 256
L_S = L_SOFF + (NKMAX + 1) * 128
L_S = (L_S + 255) // 256 * 256
L_AGG = L_S + (CAP + 32) * 32
L_AGG = (L_AGG + 2047) // 2048 * 2048
L_END = L_AGG + 40 * 2048
K2_LDS = L_END
assert K2_LDS <= 160 * 1024
OOB = 0x7f000000

K1_THREADS = 640
K1L_HIST = 0
K1L_OFFS = 1024
K1L_STG = 2048
K1_LDS = K1L_STG + CHUNK * REC_BYTES

for l in hdr:
    o(l)
o("; @launch kernel=gs_bin_kernel grid=(256,1,1) block=(%d,1,1) lds=%d" % (K1_THREADS, K1_LDS))
o("; @launch kernel=%s_kernel grid=(256,1,1) block=(1024,1,1) lds=%d" % (NAME, K2_LDS))
o('.amdgcn_target "amdgcn-amd-amdhsa--gfx950"')
o(".text")

def dpp_scan(v):
    for sh in (1, 2, 4, 8):
        o("    s_nop 1")
        o("    v_add_u32_dpp %s, %s, %s row_shr:%d row_mask:0xf bank_mask:0xf bound_ctrl:0" % (v, v, v, sh))
    o("    s_nop 1")
    o("    v_add_u32_dpp %s, %s, %s row_bcast:15 row_mask:0xa bank_mask:0xf" % (v, v, v))
    o("    s_nop 1")
    o("    v_add_u32_dpp %s, %s, %s row_bcast:31 row_mask:0xc bank_mask:0xf" % (v, v, v))
    o("    s_nop 1")

o(".globl gs_bin_kernel")
o(".p2align 8")
o(".type gs_bin_kernel,@function")
o("gs_bin_kernel:")
k1n = [0]
def stamp1():
    if not STAMP: return
    i = k1n[0]; k1n[0] += 1
    o("    s_memrealtime s[%d:%d]" % (40 + 2 * i, 41 + 2 * i))
    o("    s_waitcnt lgkmcnt(0)")
def stamp1_flush():
    if not STAMP: return
    o("    s_mov_b64 exec, -1")
    o("    s_waitcnt vmcnt(0)")
    o("    s_memrealtime s[50:51]")
    o("    s_waitcnt lgkmcnt(0)")
    o("    v_lshrrev_b32 v1, 6, v0")
    o("    s_lshl_b32 s3, s2, 4")
    o("    v_add_u32 v1, s3, v1")
    o("    v_lshlrev_b32 v1, 6, v1")
    o("    v_add_u32 v1, 0x9000000, v1")
    for i in range(6):
        o("    v_mov_b32 v2, s%d" % (40 + 2 * i))
        o("    global_store_dword v1, v2, s[22:23] offset:%d" % (4 * i))
stamp1()
o("    s_cmp_ge_u32 s2, 256")
o("    s_cbranch_scc1 K1_done")
o("    s_load_dwordx16 s[4:19], s[0:1], 0")
o("    s_load_dwordx2 s[22:23], s[0:1], 80")
o("    s_cmp_ge_u32 s2, %d" % NCHUNK)
o("    s_cbranch_scc1 K1_wimg")
o("    s_mul_i32 s3, s2, %d" % CHUNK)
o("    v_lshl_add_u32 v1, v0, 1, s3")
o("    v_lshlrev_b32 v2, 2, v1               ; *4")
o("    v_lshlrev_b32 v3, 3, v1               ; *8")
o("    v_lshlrev_b32 v20, 2, v0              ; tid*4")
o("    v_mov_b32 v21, 0")
o("    v_mov_b32 v22, 1")
o("    s_waitcnt lgkmcnt(0)")
o("    global_load_dwordx2 v[4:5], v2, s[8:9]      ; dst")
o("    global_load_dwordx2 v[6:7], v2, s[6:7]      ; src")
o("    global_load_dwordx4 v[8:11], v3, s[10:11]   ; sh")
o("    global_load_dwordx4 v[12:15], v3, s[12:13]  ; ea")
def k1_prefetch():
    n = 0
    if PF1 & 1:
        o("    s_lshr_b32 s3, s2, 3")
        o("    s_mul_i32 s3, s3, %d" % K1_THREADS)
        o("    s_and_b32 s26, s2, 7")
        o("    s_mul_i32 s26, s26, 2500")
        o("    s_add_u32 s3, s3, s26")
        o("    v_add_u32 v36, s3, v0")
        o("    v_subrev_u32 v37, 20000, v36")
        o("    v_min_u32 v36, v36, v37               ; mod 20000")
        o("    v_lshrrev_b32 v37, 1, v36")
        o("    v_and_b32 v36, 1, v36")
        o("    v_lshlrev_b32 v36, 7, v36")
        o("    v_lshl_add_u32 v36, v37, 10, v36")
        o("    global_load_dword v40, v36, s[4:5]")
        n += 1
    if PF1 & 2:
        o("    s_mul_i32 s3, s2, 240")
        o("    v_min_u32 v37, 239, v0")
        o("    v_add_u32 v36, s3, v37")
        o("    v_min_u32 v36, 59999, v36")
        o("    s_mov_b32 s26, 43691")
        o("    v_mul_lo_u32 v37, v36, s26")
        o("    v_lshrrev_b32 v37, 18, v37            ; /6")
        o("    v_mul_u32_u24 v39, 6, v37")
        o("    v_sub_u32 v39, v36, v39")
        o("    v_lshlrev_b32 v39, 7, v39")
        o("    v_lshl_add_u32 v36, v37, 10, v39")
        o("    global_load_dword v41, v36, s[4:5] offset:256")
        n += 1
    return n
NPF = 0
if TLB & 4:
    o("    s_mul_i32 s3, s2, %d" % (CHUNK * REC_BYTES))
    o("    v_mov_b32 v36, s3")
    o("    global_load_dword v40, v36, s[22:23]")
    o("    s_lshl_b32 s3, s2, 10")
    o("    s_add_u32 s3, s3, 0x%x" % WS_TAB)
    o("    v_mov_b32 v37, s3")
    o("    global_load_dword v41, v37, s[22:23]")
    NPF = 2
o("    v_cmp_gt_u32 vcc, 256, v0")
o("    s_and_saveexec_b64 s[24:25], vcc")
o("    ds_write_b32 v20, v21 offset:%d" % K1L_HIST)
o("    s_mov_b64 exec, s[24:25]")
o("    s_waitcnt lgkmcnt(0)")
o("    s_barrier")
o("    s_waitcnt vmcnt(%d)" % (3 + NPF))
stamp1()
if PF1 & 4: NPF = k1_prefetch()
o("    v_and_b32 v16, 255, v4")
o("    v_and_b32 v17, 255, v5")
o("    v_lshlrev_b32 v16, 2, v16")
o("    v_lshlrev_b32 v17, 2, v17")
o("    ds_add_rtn_u32 v18, v16, v22 offset:%d" % K1L_HIST)
o("    ds_add_rtn_u32 v19, v17, v22 offset:%d" % K1L_HIST)
o("    v_lshrrev_b32 v4, 8, v4")
o("    v_lshrrev_b32 v5, 8, v5")
o("    s_waitcnt lgkmcnt(0)")
o("    s_barrier")
o("    v_cmp_gt_u32 vcc, 64, v0")
o("    s_and_saveexec_b64 s[24:25], vcc")
o("    s_cbranch_execz K1_scan_done")
o("    v_lshlrev_b32 v23, 4, v0")
o("    ds_read_b128 v[24:27], v23 offset:%d" % K1L_HIST)
o("    s_waitcnt lgkmcnt(0)")
o("    v_add_u32 v28, v24, v25")
o("    v_add_u32 v29, v28, v26")
o("    v_add_u32 v30, v29, v27")
o("    v_mov_b32 v31, v30")
dpp_scan("v31")
o("    v_sub_u32 v32, v31, v30")
o("    v_add_u32 v33, v32, v24")
o("    v_add_u32 v34, v32, v28")
o("    v_add_u32 v35, v32, v29")
o("    ds_write_b128 v23, v[32:35] offset:%d" % K1L_OFFS)
o("    v_lshl_or_b32 v36, v24, 16, v32")
o("    v_lshl_or_b32 v37, v25, 16, v33")
o("    v_lshl_or_b32 v38, v26, 16, v34")
o("    v_lshl_or_b32 v39, v27, 16, v35")
o("    s_and_b32 s3, s2, 7")
o("    s_lshl_b32 s3, s3, 5")
o("    s_lshr_b32 s26, s2, 3")
o("    s_add_u32 s3, s3, s26")
o("    s_lshl_b32 s3, s3, 2")
o("    s_add_u32 s3, s3, 0x%x" % WS_TAB)
o("    v_lshl_add_u32 v23, v0, 12, s3        ; bucket 4l -> (4l)*1024")
for i in range(4):
    o("    global_store_dword v23, v%d, s[22:23] offset:%d%s" % (36 + i, 1024 * i, " sc1" if TABSC1 else ""))
o("    s_waitcnt lgkmcnt(0)")
o("K1_scan_done:")
o("    s_mov_b64 exec, s[24:25]")
o("    s_barrier")
stamp1()
o("    ds_read_b32 v24, v16 offset:%d" % K1L_OFFS)
o("    ds_read_b32 v25, v17 offset:%d" % K1L_OFFS)
o("    s_waitcnt vmcnt(%d)" % NPF)
stamp1()
if K1T:
    o("    v_cmp_gt_u32 vcc, %d, v0" % (128 * K1T))
    o("    s_and_saveexec_b64 s[26:27], vcc")
    o("    s_cbranch_execz K1_t_skip")
    o("    v_and_b32 v36, 63, v0")
    o("    v_min_u32 v36, 39, v36")
    o("    s_mul_i32 s3, s2, 40")
    o("    v_add_u32 v36, s3, v36")
    o("    v_lshrrev_b32 v37, 6, v0")
    o("    v_lshlrev_b32 v37, 7, v37")
    o("    v_lshl_add_u32 v36, v36, 10, v37")
    o("    global_load_dword v40, v36, s[4:5]")
    o("K1_t_skip:")
    o("    s_mov_b64 exec, s[26:27]")
o("    v_lshl_or_b32 v4, v4, 16, v6")
o("    v_lshl_or_b32 v5, v5, 16, v7")
o("    s_waitcnt lgkmcnt(0)")
o("    v_add_u32 v24, v24, v18")
o("    v_add_u32 v25, v25, v19")
o("    v_mul_u32_u24 v24, %d, v24" % REC_BYTES)
o("    v_mul_u32_u24 v25, %d, v25" % REC_BYTES)
o("    v_add_u32 v24, %d, v24" % K1L_STG)
o("    v_add_u32 v25, %d, v25" % K1L_STG)
o("    ds_write2_b32 v24, v8, v9 offset0:0 offset1:1")
o("    ds_write2_b32 v24, v12, v13 offset0:2 offset1:3")
o("    ds_write_b32 v24, v4 offset:16")
o("    ds_write2_b32 v25, v10, v11 offset0:0 offset1:1")
o("    ds_write2_b32 v25, v14, v15 offset0:2 offset1:3")
o("    ds_write_b32 v25, v5 offset:16")
o("    s_waitcnt lgkmcnt(0)")
o("    s_barrier")
stamp1()
o("    v_lshlrev_b32 v23, 4, v0")
o("    ds_read_b128 v[4:7], v23 offset:%d" % K1L_STG)
o("    ds_read_b128 v[8:11], v23 offset:%d" % (K1L_STG + K1_THREADS * 16))
o("    s_mul_i32 s3, s2, %d" % (CHUNK * REC_BYTES))
o("    v_add_u32 v24, s3, v23")
o("    v_add_u32 v25, %d, v24" % (K1_THREADS * 16))
o("    v_add_u32 v26, %d, v24" % (2 * K1_THREADS * 16))
o("    v_cmp_gt_u32 vcc, %d, v0" % (CHUNK * REC_BYTES // 16 - 2 * K1_THREADS))
o("    s_waitcnt lgkmcnt(1)")
o("    global_store_dwordx4 v24, v[4:7], s[22:23] sc1")
o("    s_waitcnt lgkmcnt(0)")
o("    global_store_dwordx4 v25, v[8:11], s[22:23] sc1")
o("    s_and_saveexec_b64 s[24:25], vcc")
o("    s_cbranch_execz K1_end2")
o("    ds_read_b128 v[12:15], v23 offset:%d" % (K1L_STG + 2 * K1_THREADS * 16))
o("    s_waitcnt lgkmcnt(0)")
o("    global_store_dwordx4 v26, v[12:15], s[22:23] sc1")
o("K1_end2:")
stamp1_flush()
o("    s_endpgm")
o("K1_wimg:")
o("    s_cmp_ge_u32 s2, %d" % (NCHUNK + 4))
o("    s_cbranch_scc1 K1_done")
o("    v_cmp_gt_u32 vcc, 512, v0")
o("    s_and_saveexec_b64 s[24:25], vcc")
o("    s_cbranch_execz K1_done")
o("    s_sub_u32 s3, s2, %d                  ; dp" % NCHUNK)
o("    v_bfe_u32 v1, v0, 8, 1                ; t")
o("    v_bfe_u32 v2, v0, 6, 2                ; s")
o("    v_bfe_u32 v3, v0, 4, 2                ; q")
o("    v_bfe_u32 v5, v0, 2, 2                ; i>>2")
o("    v_and_b32 v6, 3, v0                   ; i&3")
o("    v_lshlrev_b32 v7, 3, v3               ; q*8")
o("    v_lshl_add_u32 v7, v2, 5, v7          ; c0 = 32s + 8q")
o("    v_lshlrev_b32 v8, 3, v5")
o("    v_lshl_add_u32 v8, v1, 2, v8")
o("    v_add_u32 v8, v8, v6")
o("    s_lshl_b32 s26, s3, 5")
o("    v_add_u32 v8, s26, v8                 ; d")
o("    v_lshlrev_b32 v8, 1, v8")
o("    v_lshl_add_u32 v8, v7, 8, v8")
o("    s_waitcnt lgkmcnt(0)")
for j in range(8):
    o("    global_load_ushort v%d, v8, s[18:19] offset:%d" % (16 + j, 256 * j))
o("    s_lshl_b32 s26, s3, 13")
o("    s_add_u32 s26, s26, 0x%x" % WS_WIMG)
o("    v_lshl_add_u32 v11, v0, 4, s26")
o("    s_waitcnt vmcnt(0)")
for p in range(4):
    o("    v_lshl_or_b32 v%d, v%d, 16, v%d" % (12 + p, 17 + 2 * p, 16 + 2 * p))
o("    global_store_dwordx4 v11, v[12:15], s[22:23] sc1")
o("K1_done:")
o("    s_endpgm")

KN = NAME + "_kernel"
o(".globl %s" % KN)
o(".p2align 8")
o(".type %s,@function" % KN)
o("%s:" % KN)
vLaneOff = 1; vSoffC = 2; vSC = 3; vAggC = 4; vL8 = 5; vND = 6; vQ = 7
vP = 8; vS = 16; vCG = 20; vT = 22; vOne = 23; vA = 24
vRB = [32, 64]; vD = 96; vWR = 64
vREC = 32
vMETA = 96; vRANK = 104; vCA = 112
MM = 8

TPC = 3
NSLOW = (E + 1023) // 1024
PFX = optval("pfx", 0)
PF0 = optval("pf0", 0)
TLB = optval("tlb", 0)
SPF = optval("spf", 0)
spf_u = [0]
def spf(nsl, tag):
    if nsl == 0: return
    o("    s_cmp_lt_u32 s40, 12")
    o("    s_cbranch_scc1 %s_e" % tag)
    o("    s_cmp_ge_u32 s2, 250")
    o("    s_cbranch_scc1 %s_e" % tag)
    o("    s_cmp_lg_u32 s41, 0")
    o("    s_cbranch_scc1 %s_e" % tag)
    for k in range(nsl):
        u = spf_u[0]; spf_u[0] += 1
        o("    s_mul_i32 s66, s2, %d" % (40 * 1024))
        o("    s_lshl_b32 s39, s40, 6")
        o("    s_add_u32 s66, s66, s39")
        o("    s_add_u32 s66, s66, %d" % (u * 256 - 12 * 64))
        o("    s_mov_b32 s39, 5")
        o("%s_l%d:" % (tag, k))
        for j in range(8):
            o("    s_load_dword s67, s[4:5], s66 offset:%d" % (j * 1024))
        o("    s_add_u32 s66, s66, 8192")
        o("    s_sub_u32 s39, s39, 1")
        o("    s_cmp_lg_u32 s39, 0")
        o("    s_cbranch_scc1 %s_l%d" % (tag, k))
    o("%s_e:" % tag)
PFM = optval("pfm", 0)
o("    s_cmp_ge_u32 s2, 256")
o("    s_cbranch_scc1 K2_done")
stamp()
o("    s_load_dwordx2 s[22:23], s[0:1], 80")
o("    s_load_dwordx16 s[4:19], s[0:1], 0")
o("    s_load_dwordx2 s[20:21], s[0:1], 64")
o("    v_and_b32 v8, 63, v0                  ; lane")
o("    v_lshrrev_b32 v9, 6, v0")
o("    s_mov_b32 s44, 21846")
o("    v_readfirstlane_b32 s40, v9")
o("    v_mul_lo_u32 v14, v0, s44")
o("    v_lshrrev_b32 v14, 16, v14")
o("    v_mul_u32_u24 v17, 3, v14")
o("    v_sub_u32 v17, v0, v17                ; i0 = tid%3")
o("    s_lshl_b32 s3, s2, 10")
o("    s_add_u32 s43, s3, 0x%x               ; TAB + b*1024" % WS_TAB)
o("    v_lshl_add_u32 v15, v14, 2, s43")
o("    v_and_b32 v16, 31, v14")
o("    v_lshrrev_b32 v14, 5, v14")
o("    v_lshl_add_u32 v14, v16, 3, v14       ; chunk")
o("    v_and_b32 v9, 15, v8                  ; col")
o("    v_lshrrev_b32 v10, 4, v8              ; g")
o("    v_lshlrev_b32 v%d, 4, v9              ; laneoff = col*16" % vLaneOff)
o("    s_cmp_ge_u32 s40, 12")
o("    s_waitcnt lgkmcnt(0)")
o("    s_cbranch_scc1 K2_hiwaves")
if TLB & 1:
    o("    s_mov_b32 s47, %d" % (CHUNK * REC_BYTES))
    o("    v_mul_lo_u32 v19, v16, s47")
    o("    s_mul_i32 s3, s2, 100")
    o("    v_add_u32 v19, s3, v19")
o("    global_load_dword v16, v15, s[22:23]")
if TLB & 1:
    o("    global_load_dword v120, v19, s[22:23]")
o("    s_branch K2_tabs_issued")
o("K2_hiwaves:")
o("    s_mov_b32 s24, s4")
o("    s_and_b32 s25, s5, 0xffff")
o("    s_mov_b32 s26, %d" % (N * 1024))
o("    s_mov_b32 s27, 0x00020000")
o("    s_cmp_eq_u32 s40, 13")
o("    s_cbranch_scc1 K2_cg_issue")
o("    s_cmp_lg_u32 s40, 14")
o("    s_cbranch_scc1 K2_pf")
for k in range(4):
    o("    global_load_dwordx4 v[%d:%d], v%d, s[16:17] offset:%d" % (96 + 4 * k, 96 + 4 * k + 3, vLaneOff, 256 * k))
o("    s_branch K2_pf")
o("K2_cg_issue:")
o("    v_lshrrev_b32 v11, 2, v9")
o("    v_lshlrev_b32 v18, 3, v10")
o("    v_lshl_add_u32 v18, v11, 1, v18")
for u in range(4):
    o("    global_load_ushort v%d, v18, s[14:15] offset:%d" % (96 + u, 32 * u))
o("K2_pf:")
NPF2 = 0
if TLB & 2:
    o("    v_subrev_u32 v24, 768, v0")
    o("    v_lshlrev_b32 v24, 16, v24")
    o("    buffer_load_dword v121, v24, s[24:27], 0 offen")
    o("    v_min_u32 v24, 0x9c0000, v24")
    o("    global_load_dword v122, v24, s[20:21]")
    NPF2 += 2
if PFX & 1:
    o("    s_lshr_b32 s3, s2, 3")
    o("    s_mul_i32 s3, s3, 313")
    o("    s_and_b32 s44, s2, 7")
    o("    s_mul_i32 s44, s44, 1250")
    o("    s_add_u32 s3, s3, s44")
    o("    s_sub_u32 s3, s3, 768")
    o("    v_add_u32 v24, s3, v0")
    o("    v_subrev_u32 v25, 10000, v24")
    o("    v_min_u32 v24, v24, v25")
    o("    v_lshlrev_b32 v24, 10, v24")
    o("    buffer_load_dword v120, v24, s[24:27], 0 offen")
    o("    buffer_load_dword v121, v24, s[24:27], 0 offen offset:128")
    o("    v_subrev_u32 v26, 768, v0")
    o("    v_lshrrev_b32 v24, 1, v26")
    o("    v_min_u32 v24, 56, v24")
    o("    s_add_u32 s3, s3, %d" % (768 + 256))
    o("    v_add_u32 v24, s3, v24")
    o("    v_subrev_u32 v25, 10000, v24")
    o("    v_min_u32 v24, v24, v25")
    o("    v_lshlrev_b32 v24, 10, v24")
    o("    v_and_b32 v26, 1, v26")
    o("    v_lshl_add_u32 v24, v26, 7, v24")
    o("    buffer_load_dword v122, v24, s[24:27], 0 offen")
    NPF2 += 3
if PFX & 2:
    o("    s_lshl_b32 s3, s2, 8")
    o("    s_sub_u32 s3, s3, 768")
    o("    v_add_u32 v24, s3, v0")
    o("    s_mov_b32 s44, 43691")
    o("    v_mul_lo_u32 v25, v24, s44")
    o("    v_lshrrev_b32 v25, 18, v25            ; /6")
    o("    v_mul_u32_u24 v26, 6, v25")
    o("    v_sub_u32 v26, v24, v26")
    o("    v_lshlrev_b32 v26, 7, v26")
    o("    v_lshl_add_u32 v24, v25, 10, v26")
    o("    buffer_load_dword v124, v24, s[24:27], 0 offen offset:256")
    NPF2 += 1
if PFX & 4:
    o("    s_mul_i32 s3, s2, 313")
    o("    s_sub_u32 s3, s3, 768")
    o("    v_add_u32 v24, s3, v0")
    o("    v_lshlrev_b32 v24, 7, v24")
    o("    buffer_load_dword v124, v24, s[24:27], 0 offen")
    o("    v_subrev_u32 v26, 768, v0")
    o("    v_min_u32 v26, 56, v26")
    o("    s_add_u32 s3, s3, %d" % (768 + 256))
    o("    v_add_u32 v24, s3, v26")
    o("    v_lshlrev_b32 v24, 7, v24")
    o("    buffer_load_dword v125, v24, s[24:27], 0 offen")
    NPF2 += 2
o("K2_tabs_issued:")
o("    v_lshlrev_b32 v%d, 5, v10             ; g*32" % vSoffC)
o("    v_lshrrev_b32 v11, 2, v9              ; r = col>>2")
o("    v_and_b32 v12, 3, v9                  ; c = col&3")
o("    v_lshl_add_u32 v13, v11, 2, v10       ; 4r+g")
o("    v_lshlrev_b32 v13, 5, v13")
o("    v_lshl_add_u32 v%d, v12, 3, v13       ; (4r+g)*32 + c*8" % vSC)
o("    v_xor_b32 v13, v9, v10                ; col ^ w")
o("    v_lshlrev_b32 v13, 4, v13")
o("    v_lshl_add_u32 v%d, v10, 8, v13       ; w*256 + (col^w)*16" % vAggC)
o("    v_lshlrev_b32 v%d, 3, v8              ; lane*8" % vL8)
o("    v_mov_b32 v%d, 1" % vOne)
o("    s_mov_b32 s32, 0x05040100")
o("    s_mov_b32 s33, 0x07060302")
o("    s_mov_b32 s41, 0")
o("    s_mov_b32 s42, 0                      ; round")
o("    s_mov_b32 s70, 160")
o("    s_cmp_ge_u32 s40, 12")
o("    s_cselect_b32 s70, %d, s70" % (FSW if FSW else 160))
o("    s_lshr_b32 s68, s2, 3")
o("    s_mul_i32 s68, s68, 313")
o("    s_min_u32 s68, s68, %d" % (N - 320))
o("    s_lshl_b32 s68, s68, 10")
o("    s_and_b32 s69, s2, 7")
o("    s_mul_i32 s69, s69, 5")
o("    s_mov_b32 s24, s4")
o("    s_and_b32 s25, s5, 0xffff")
o("    s_mov_b32 s26, %d" % (N * 1024))
o("    s_mov_b32 s27, 0x00020000")
o("    s_mov_b32 s28, s20")
o("    s_and_b32 s29, s21, 0xffff")
o("    s_mov_b32 s30, %d" % (N * 1024))
o("    s_mov_b32 s31, 0x00020000")
def round_init():
    o("    v_lshlrev_b32 v18, 4, v0")
    for i in range(4):
        o("    v_mov_b32 v%d, 0x%x" % (24 + i, OOB))
    o("    v_mov_b32 v28, 0")
    o("    v_mov_b32 v29, %d" % (16 - DPW))
    o("    v_cmp_gt_u32 vcc, 64, v0")
    o("    s_and_saveexec_b64 s[44:45], vcc")
    o("    v_lshlrev_b32 v19, 2, v0")
    o("    ds_write_b32 v19, v28 offset:%d" % L_CNT)
    o("    ds_write_b32 v19, v28 offset:%d" % L_LOCK)
    o("    ds_write_b32 v19, v28 offset:%d" % L_FLAG)
    o("    v_mov_b32 v19, 0")
    o("    ds_write_b64 v19, v[28:29] offset:%d" % L_FLAG)
    o("    s_mov_b64 exec, s[44:45]")
    o("    v_cmp_gt_u32 vcc, %d, v0" % ((NKMAX + 1) * 128 // 16))
    o("    s_and_saveexec_b64 s[44:45], vcc")
    o("    ds_write_b128 v18, v[24:27] offset:%d" % L_SOFF)
    o("    s_mov_b64 exec, s[44:45]")
    for m in range(MM):
        o("    s_mov_b64 s[%d:%d], 0" % (48 + 2 * m, 49 + 2 * m))
    o("    s_mov_b64 s[64:65], 0")
round_init()
o("    s_waitcnt lgkmcnt(0)")
o("    s_barrier")
stamp()
def zero_big():
    o("    v_lshlrev_b32 v18, 4, v0              ; tid*16")
    for i in range(4):
        o("    v_mov_b32 v%d, 0" % (28 + i))
    nz = (L_END - L_S) // 16
    full = nz // 1024
    rem = nz - full * 1024
    o("    v_add_u32 v25, %d, v18" % L_S)
    o("    v_add_u32 v26, %d, v18" % (L_S + 65536))
    o("    v_add_u32 v27, %d, v18" % (L_S + 131072))
    for i in range(full):
        off = i * 16384
        o("    ds_write_b128 v%d, v[28:31] offset:%d" % (25 + off // 65536, off % 65536))
    if rem:
        off = full * 16384
        o("    v_cmp_gt_u32 vcc, %d, v0" % rem)
        o("    s_and_saveexec_b64 s[44:45], vcc")
        o("    ds_write_b128 v%d, v[28:31] offset:%d" % (25 + off // 65536, off % 65536))
        o("    s_mov_b64 exec, s[44:45]")
o("    s_cmp_lt_u32 s40, 12")
o("    s_cbranch_scc1 K2_lowaves")
zero_big()
o("    s_cmp_eq_u32 s40, 13")
o("    s_cbranch_scc1 K2_cg_build")
o("    s_cmp_lg_u32 s40, 14")
o("    s_cbranch_scc1 K2_S_done")
o("    s_waitcnt vmcnt(%d)" % NPF2)
for i in range(4):
    for k in range(4):
        o("    v_lshlrev_b32 v%d, 16, v%d" % (112 + k, 96 + 4 * k + i))
        o("    v_and_b32 v%d, 0xffff0000, v%d" % (116 + k, 96 + 4 * k + i))
    o("    ds_write_b128 v%d, v[112:115] offset:%d" % (vLaneOff, L_WR + 256 * (2 * i)))
    o("    ds_write_b128 v%d, v[116:119] offset:%d" % (vLaneOff, L_WR + 256 * (2 * i + 1)))
o("    s_branch K2_S_done")
o("K2_cg_build:")
o("    v_and_b32 v19, 1, v12")
o("    v_lshlrev_b32 v19, 4, v19             ; shift 0/16")
o("    v_cmp_gt_u32 vcc, 2, v12")
o("    s_waitcnt vmcnt(%d)" % NPF2)
for u in range(4):
    o("    v_lshlrev_b32 v20, v19, v%d" % (96 + u))
    o("    v_cndmask_b32 v%d, 0, v20, vcc" % (112 + 2 * u))
    o("    v_xor_b32 v%d, v20, v%d" % (113 + 2 * u, 112 + 2 * u))
    o("    ds_write_b64 v%d, v[%d:%d] offset:%d" % (vL8, 112 + 2 * u, 113 + 2 * u, L_CG + 512 * u))
o("    s_branch K2_S_done")
o("K2_lowaves:")
o("    v_cmp_gt_u32 vcc, %d, v14" % NCHUNK)
o("    s_mov_b32 s47, %d" % (CHUNK * REC_BYTES))
o("    s_waitcnt vmcnt(%d)" % (1 if TLB & 1 else 0))
if STAMP:
    o("    s_memrealtime s[72:73]")
    o("    s_waitcnt lgkmcnt(0)")
o("    v_lshrrev_b32 v18, 16, v16            ; cnt")
o("    v_cndmask_b32 v18, 0, v18, vcc")
o("    v_and_b32 v19, 0xffff, v16            ; start")
o("    v_add_u32 v19, v19, v17")
o("    v_mul_u32_u24 v19, %d, v19" % REC_BYTES)
o("    v_mad_u32_u24 v19, v14, s47, v19")
for m in range(MM):
    o("    v_cmp_lt_u32 vcc, v17, v18")
    o("    s_and_b64 exec, exec, vcc")
    o("    s_cbranch_execz K2_loads_done0")
    o("    s_mov_b64 s[%d:%d], exec" % (48 + 2 * m, 49 + 2 * m))
    o("    global_load_dwordx4 v[%d:%d], v19, s[22:23] offset:%d" % (vREC + 8 * m, vREC + 8 * m + 3, m * TPC * REC_BYTES))
    o("    global_load_dword v%d, v19, s[22:23] offset:%d" % (vMETA + m, m * TPC * REC_BYTES + 16))
    o("    v_add_u32 v17, %d, v17" % TPC)
o("    v_cmp_lt_u32 vcc, v17, v18")
o("    s_mov_b64 s[64:65], vcc")
o("K2_loads_done0:")
o("    s_mov_b64 exec, -1")
if PF0 == 1:
    o("    s_lshr_b32 s3, s2, 3")
    o("    s_mul_i32 s3, s3, 625")
    o("    s_and_b32 s44, s2, 7")
    o("    s_mul_i32 s44, s44, 2500")
    o("    s_add_u32 s3, s3, s44")
    o("    v_min_u32 v24, 624, v0")
    o("    v_add_u32 v24, s3, v24")
    o("    v_subrev_u32 v25, 20000, v24")
    o("    v_min_u32 v24, v24, v25")
if PF0 == 2:
    o("    s_mul_i32 s3, s2, 79")
    o("    v_min_u32 v24, 78, v0")
    o("    v_add_u32 v24, s3, v24")
if PF0:
    o("    v_lshrrev_b32 v25, 1, v24")
    o("    v_and_b32 v24, 1, v24")
    o("    v_lshlrev_b32 v24, 7, v24")
    o("    v_lshl_add_u32 v24, v25, 10, v24")
    o("    buffer_load_dword v120, v24, s[24:27], 0 offen")
zero_big()
if PF0:
    o("    s_cmp_eq_u64 s[64:65], 0")
    o("    s_cbranch_scc1 K2_noflag0")
    o("    v_mov_b32 v19, 0")
    o("    ds_write_b32 v19, v%d offset:%d" % (vOne, L_FLAG))
    o("K2_noflag0:")
    o("    s_waitcnt vmcnt(1)")
    o("    s_branch K2_recs_ready")
else:
    o("    s_branch K2_loads_done")

o("K2_round:")
round_init()
o("    s_lshl_b32 s3, s42, 10")
o("    v_add_u32 v14, s3, v0                 ; edge")
o("    v_cmp_gt_u32 vcc, %d, v14" % E)
o("    v_min_u32 v14, %d, v14" % (E - 1))
o("    v_lshlrev_b32 v15, 2, v14")
o("    v_lshlrev_b32 v16, 3, v14")
o("    global_load_dword v17, v15, s[8:9]")
o("    global_load_dword v18, v15, s[6:7]")
o("    global_load_dwordx2 v[%d:%d], v16, s[10:11]" % (vREC, vREC + 1))
o("    global_load_dwordx2 v[%d:%d], v16, s[12:13]" % (vREC + 2, vREC + 3))
o("    s_waitcnt vmcnt(0) lgkmcnt(0)")
o("    s_barrier")
o("    v_and_b32 v19, 255, v17")
o("    v_cmp_eq_u32 s[46:47], s2, v19")
o("    v_lshrrev_b32 v17, 8, v17")
o("    v_lshl_or_b32 v%d, v17, 16, v18" % vMETA)
o("    s_and_b64 s[48:49], vcc, s[46:47]")

o("K2_loads_done:")
o("    s_cmp_eq_u64 s[64:65], 0")
o("    s_cbranch_scc1 K2_noflag")
o("    v_mov_b32 v19, 0")
o("    ds_write_b32 v19, v%d offset:%d" % (vOne, L_FLAG))
o("K2_noflag:")
o("    s_waitcnt vmcnt(0)")
o("K2_recs_ready:")
if STAMP:
    o("    s_memrealtime s[74:75]")
    o("    s_waitcnt lgkmcnt(0)")
for m in range(MM):
    o("    s_mov_b64 exec, s[%d:%d]" % (48 + 2 * m, 49 + 2 * m))
    o("    s_cbranch_execz K2_rank_done")
    o("    v_lshrrev_b32 v%d, 16, v%d" % (vCA + m, vMETA + m))
    o("    v_lshlrev_b32 v%d, 2, v%d" % (vCA + m, vCA + m))
    o("    ds_add_rtn_u32 v%d, v%d, v%d offset:%d" % (vRANK + m, vCA + m, vOne, L_CNT))
o("K2_rank_done:")
for m in range(MM):
    o("    s_mov_b64 exec, s[%d:%d]" % (48 + 2 * m, 49 + 2 * m))
    o("    s_cbranch_execz K2_S_done")
    r = vREC + 8 * m
    o("    v_lshlrev_b32 v8, 16, v%d" % r)
    o("    v_and_b32 v9, 0xffff0000, v%d" % r)
    o("    v_lshlrev_b32 v10, 16, v%d" % (r + 1))
    o("    v_and_b32 v11, 0xffff0000, v%d" % (r + 1))
    o("    v_lshlrev_b32 v12, 16, v%d" % (r + 2))
    o("    v_and_b32 v13, 0xffff0000, v%d" % (r + 2))
    o("    v_lshlrev_b32 v14, 16, v%d" % (r + 3))
    o("    v_and_b32 v15, 0xffff0000, v%d" % (r + 3))
    for v in range(4):
        o("    v_pk_mul_f32 v[28:29], v[12:13], v[%d:%d] op_sel:[0,%d] op_sel_hi:[1,%d]" % (8 + (v & 2), 9 + (v & 2), v & 1, v & 1))
        o("    v_pk_mul_f32 v[30:31], v[14:15], v[%d:%d] op_sel:[0,%d] op_sel_hi:[1,%d]" % (8 + (v & 2), 9 + (v & 2), v & 1, v & 1))
        o("    v_cvt_pk_bf16_f32 v%d, v28, v29" % (r + 2 * v))
        o("    v_cvt_pk_bf16_f32 v%d, v30, v31" % (r + 2 * v + 1))
    o("    v_and_b32 v%d, 0xffff, v%d" % (vMETA + m, vMETA + m))
    o("    v_lshlrev_b32 v%d, 10, v%d" % (vMETA + m, vMETA + m))
o("K2_S_done:")
o("    s_mov_b64 exec, -1")
spf(SPF // 100, "SP1")
def sp0(n0, n, tag):
    if n == 0: return
    o("    s_cmp_lt_u32 s40, 12")
    o("    s_cbranch_scc1 %s_e" % tag)
    o("    s_cmp_lg_u32 s41, 0")
    o("    s_cbranch_scc1 %s_e" % tag)
    o("    s_sub_u32 s66, s40, 12")
    o("    s_mul_i32 s66, s66, %d" % (80 * 1024))
    o("    s_add_u32 s66, s66, s68")
    o("    s_lshl_b32 s38, s69, 1")
    o("    s_add_u32 s38, s38, %d" % n0)
    o("    s_mov_b32 s39, %d" % n)
    o("%s_l:" % tag)
    o("    s_sub_u32 s36, s38, 80")
    o("    s_min_u32 s38, s38, s36")
    o("    s_lshl_b32 s36, s38, 10")
    o("    s_add_u32 s36, s36, s66")
    for sec in range(4):
        o("    s_load_dword s67, s[4:5], s36 offset:%d" % (sec * 64))
    o("    s_add_u32 s38, s38, 1")
    o("    s_sub_u32 s39, s39, 1")
    o("    s_cmp_lg_u32 s39, 0")
    o("    s_cbranch_scc1 %s_l" % tag)
    o("%s_e:" % tag)
sp0(0, SP0A, "SQ1")
o("    s_waitcnt lgkmcnt(0)")
o("    s_barrier")
stamp()
if B2T:
    o("    s_cmp_lt_u32 s40, 12")
    o("    s_cbranch_scc1 K2_b2t_e")
    o("    s_cmp_lg_u32 s41, 0")
    o("    s_cbranch_scc1 K2_b2t_e")
    if B2T & 1:
        o("    s_lshr_b32 s3, s2, 3")
        o("    s_mul_i32 s3, s3, 625")
        o("    s_sub_u32 s3, s3, 768")
        o("    v_add_u32 v24, s3, v0")
        o("    v_lshrrev_b32 v25, 1, v24")
        o("    v_and_b32 v24, 1, v24")
        o("    v_lshlrev_b32 v24, 7, v24")
        o("    v_lshl_add_u32 v24, v25, 10, v24")
        o("    buffer_load_dword v120, v24, s[24:27], 0 offen")
        if B2T & 4:
            o("    v_add_u32 v24, 0x20000, v24")
            o("    buffer_load_dword v121, v24, s[24:27], 0 offen")
    if B2T & 2:
        o("    s_lshl_b32 s3, s2, 8")
        o("    s_sub_u32 s3, s3, 768")
        o("    v_add_u32 v24, s3, v0")
        o("    s_mov_b32 s44, 43691")
        o("    v_mul_lo_u32 v25, v24, s44")
        o("    v_lshrrev_b32 v25, 18, v25            ; /6")
        o("    v_mul_u32_u24 v26, 6, v25")
        o("    v_sub_u32 v26, v24, v26")
        o("    v_lshlrev_b32 v26, 7, v26")
        o("    v_lshl_add_u32 v24, v25, 10, v26")
        o("    buffer_load_dword v124, v24, s[24:27], 0 offen offset:256")
    o("K2_b2t_e:")
o("    v_lshrrev_b32 v19, 1, v%d             ; lane*4" % vL8)
o("    ds_read_b32 v24, v19 offset:%d" % L_CNT)
o("    v_mov_b32 v20, 0")
o("    ds_read_b32 v21, v20 offset:%d" % L_FLAG)
o("    s_waitcnt lgkmcnt(0)")
o("    v_add_u32 v25, 31, v24")
o("    v_lshrrev_b32 v25, 5, v25             ; nks")
o("    v_lshl_or_b32 v26, v25, 16, v24       ; packed")
o("    v_mov_b32 v27, v26")
dpp_scan("v27")
o("    v_readlane_b32 s34, v27, 63")
o("    v_readfirstlane_b32 s35, v21")
o("    v_sub_u32 v27, v27, v26")
o("    ds_write_b32 v19, v27 offset:%d" % L_TABS)
o("    s_and_b32 s36, s34, 0xffff            ; total")
o("    s_lshr_b32 s34, s34, 16               ; nK")
o("    s_cmp_gt_u32 s36, %d" % CAP)
o("    s_cselect_b32 s36, 1, 0")
o("    s_or_b32 s35, s35, s36")
o("    s_cmp_eq_u32 s35, 0")
o("    s_cbranch_scc1 K2_ok")
o("    s_mov_b32 s41, 1")
o("    s_waitcnt lgkmcnt(0)")
o("    s_barrier")
o("    s_branch K2_round")
o("K2_ok:")
o("    v_and_b32 v20, 0xffff, v27")
o("    v_lshrrev_b32 v21, 16, v27")
o("    v_lshl_or_b32 v20, v21, 11, v20")
o("    v_lshl_or_b32 v%d, v24, 18, v20       ; node desc: Sstart | kstart<<11 | cnt<<18" % vND)
for m in range(MM):
    o("    s_mov_b64 exec, s[%d:%d]" % (48 + 2 * m, 49 + 2 * m))
    o("    s_cbranch_execz K2_tabs_done")
    o("    ds_read_b32 v%d, v%d offset:%d" % (vCA + m, vCA + m, L_TABS))
o("K2_tabs_done:")
o("    s_waitcnt lgkmcnt(0)")
for m in range(MM):
    o("    s_mov_b64 exec, s[%d:%d]" % (48 + 2 * m, 49 + 2 * m))
    o("    s_cbranch_execz K2_scatter_done")
    r = vREC + 8 * m
    rank = vRANK + m
    tb = vCA + m
    o("    v_and_b32 v25, 0xffff, v%d" % tb)
    o("    v_add_lshl_u32 v25, v25, v%d, 5" % rank)
    o("    ds_write_b128 v25, v[%d:%d] offset:%d" % (r, r + 3, L_S))
    o("    ds_write_b128 v25, v[%d:%d] offset:%d" % (r + 4, r + 7, L_S + 16))
    o("    v_lshrrev_b32 v26, 16, v%d" % tb)
    o("    v_lshrrev_b32 v27, 5, v%d" % rank)
    o("    v_add_lshl_u32 v26, v26, v27, 7")
    o("    v_and_b32 v27, 3, v%d" % rank)
    o("    v_lshl_add_u32 v26, v27, 5, v26")
    o("    v_and_or_b32 v26, v%d, 28, v26" % rank)
    o("    ds_write_b32 v26, v%d offset:%d" % (vMETA + m, L_SOFF))
o("K2_scatter_done:")
o("    s_mov_b64 exec, -1")
spf((SPF // 10) % 10, "SP2")
sp0(SP0A, SP0B, "SQ2")
o("    s_waitcnt lgkmcnt(0)")
o("    s_barrier")
stamp()
if STAMP:
    o("    s_memtime s[76:77]")
    o("    s_waitcnt lgkmcnt(0)")

NITEM = 160
uid = [0]
def dequeue():
    o("    s_mov_b64 exec, 1")
    o("    ds_add_rtn_u32 v%d, v%d, v%d offset:%d" % (vQ, vLaneOff, vOne, L_Q))
    o("    s_mov_b64 exec, -1")

def gen_next(first_id_in_s38=False):
    t = "G%d" % uid[0]; uid[0] += 1
    if first_id_in_s38:
        o("    s_branch %s_dec" % t)
    else:
        o("    s_cmp_eq_u32 s62, 0")
        o("    s_cbranch_scc1 %s_retry" % t)
        o("    s_add_u32 s63, s63, 1")
        o("    s_add_u32 s64, s64, 1024")
        o("    s_mov_b32 s65, 0")
        o("    s_branch %s_cnt" % t)
    o("%s_retry:" % t)
    if SYNCQ:
        if FSW:
            o("    s_cmp_ge_u32 s71, s70")
            o("    s_mov_b32 s38, 1000")
            o("    s_cbranch_scc1 %s_dec" % t)
        dequeue()
        o("    s_waitcnt lgkmcnt(0)")
        o("    v_readfirstlane_b32 s38, v%d" % vQ)
        if FSW:
            o("    s_mov_b32 s71, s38")
    else:
        o("    s_waitcnt lgkmcnt(0)")
        o("    v_readfirstlane_b32 s38, v%d" % vQ)
        if FSW:
            o("    s_cmp_ge_u32 s38, s70")
            o("    s_cbranch_scc0 %s_dq" % t)
            o("    v_mov_b32 v%d, 1000" % vQ)
            o("    s_branch %s_dec" % t)
            o("%s_dq:" % t)
        dequeue()
    o("%s_dec:" % t)
    o("    s_cmp_lt_u32 s38, %d" % NITEM)
    o("    s_cbranch_scc1 %s_valid" % t)
    o("    s_mov_b32 s65, 0")
    o("    s_mov_b32 s62, 0")
    o("    s_branch %s_end" % t)
    o("%s_valid:" % t)
    if SKEW:
        o("    s_lshr_b32 s39, s38, 2")
        o("    v_readlane_b32 s39, v%d, s39" % vT)
        o("    s_lshl_b32 s60, s38, 3")
        o("    s_lshr_b32 s39, s39, s60")
        o("    s_bfe_u32 s60, s39, 0x20006           ; u")
        o("    s_and_b32 s61, s39, 63                ; node")
    else:
        o("    s_mul_i32 s60, s38, 1639")
        o("    s_lshr_b32 s60, s60, 16               ; u = id / 40")
        o("    s_mul_i32 s61, s60, 40")
        o("    s_sub_u32 s61, s38, s61               ; node")
        if ROT:
            o("    s_lshr_b32 s39, s2, %d" % (ROT - 1))
            o("    s_add_u32 s60, s60, s39")
            o("    s_and_b32 s60, s60, 3")
    if PFM:
        o("    s_andn2_b32 s39, s61, 1")
        o("    s_cmp_lg_u32 s39, %d" % (PFM & ~1))
        o("    s_cbranch_scc1 %s_nopf" % t)
        o("    s_and_b32 s39, s61, 1")
        o("    s_mul_i32 s39, s39, 40")
        o("    s_mul_i32 s36, s2, 80")
        o("    s_add_u32 s39, s39, s36")
        o("    v_lshrrev_b32 v0, 3, v%d" % vL8)
        o("    v_min_u32 v0, 39, v0")
        o("    v_add_u32 v0, s39, v0")
        o("    v_lshrrev_b32 v%d, 1, v0" % vCG)
        o("    v_and_b32 v0, 1, v0")
        o("    v_lshlrev_b32 v0, 7, v0")
        o("    v_lshl_add_u32 v0, v%d, 10, v0" % vCG)
        o("    s_lshl_b32 s36, s60, 8")
        o("    s_cmp_eq_u32 s60, 3")
        o("    s_cbranch_scc1 %s_nopf" % t)
        o("    buffer_load_dword v%d, v0, s[24:27], s36 offen offset:256" % vT)
        o("%s_nopf:" % t)
    o("    v_readlane_b32 s39, v%d, s61" % vND)
    o("    s_lshr_b32 s62, s39, 18               ; cnt")
    if DF:
        o("    s_cbranch_scc1 %s_ne" % t)
        o("    s_andn2_b32 s39, s61, 3")
        o("    v_mov_b32 v0, s39")
        o("    s_mov_b64 exec, 1")
        o("    ds_add_u32 v0, v%d offset:%d" % (vOne, L_TC))
        o("    s_mov_b64 exec, -1")
        o("    s_branch %s_retry" % t)
        o("%s_ne:" % t)
    else:
        o("    s_cbranch_scc0 %s_retry" % t)
    o("    s_bfe_u32 s63, s39, 0x7000b           ; kstart")
    o("    s_and_b32 s64, s39, 0x7ff")
    o("    s_lshl_b32 s64, s64, 5")
    o("    s_mov_b32 s65, 16")
    o("%s_cnt:" % t)
    o("    s_min_u32 s39, s62, 32")
    o("    s_sub_u32 s62, s62, s39")
    o("    s_add_u32 s39, s39, 3")
    o("    s_lshr_b32 s39, s39, 2")
    o("    s_or_b32 s65, s65, s39")
    o("    s_cmp_eq_u32 s62, 0")
    o("    s_cselect_b32 s39, 32, 0")
    o("    s_or_b32 s65, s65, s39")
    o("    s_lshl_b32 s39, s63, 7")
    o("    v_add_u32 v0, s39, v%d" % vSoffC)
    o("    ds_read_b128 v[%d:%d], v0 offset:%d" % (vA, vA + 3, L_SOFF))
    o("    ds_read_b128 v[%d:%d], v0 offset:%d" % (vA + 4, vA + 7, L_SOFF + 16))
    o("%s_end:" % t)

def issue_loads(b):
    t = "L%d" % uid[0]; uid[0] += 1
    o("    s_lshl_b32 s37, s60, 8")
    if "--u0" in opts: o("    s_mov_b32 s37, 0")
    o("    s_and_b32 s39, s65, 15")
    o("    s_cbranch_scc0 %s_e" % t)
    for j in range(8):
        o("    v_add_u32 v%d, v%d, v%d" % (vA + j, vA + j, vLaneOff))
        if j < 7:
            o("    s_cmp_eq_u32 s39, %d" % (j + 1))
        o("    buffer_load_dwordx4 v[%d:%d], v%d, s[24:27], s37 offen" % (vRB[b] + 4 * j, vRB[b] + 4 * j + 3, vA + j))
        if j < 7:
            o("    s_cbranch_scc1 %s_e" % t)
    o("%s_e:" % t)

def gen_to_slot(b):
    sb = 48 + 4 * b
    o("    s_mov_b64 s[%d:%d], s[60:61]" % (sb, sb + 1))
    o("    s_mov_b64 s[%d:%d], s[64:65]" % (sb + 2, sb + 3))

def perms(b, j, pbase, npair):
    i = j >> 1
    sel = "s32" if (j & 1) == 0 else "s33"
    for jj in range(npair):
        a = vRB[b] + 4 * (2 * jj) + i
        c = vRB[b] + 4 * (2 * jj + 1) + i
        o("    v_perm_b32 v%d, v%d, v%d, %s" % (pbase + jj, c, a, sel))
def mm(b, acc, npair):
    if "--nomm" in opts: return
    sb = 48 + 4 * b
    t = "Z%d" % uid[0]; uid[0] += 1
    o("    s_bitcmp0_b32 s%d, 0" % (sb + 3))
    o("    s_cbranch_scc1 %s" % t)
    for i in range(4):
        o("    v_mov_b32 v%d, 0" % (vRB[b] + 4 * (2 * npair - 1) + i))
    o("%s:" % t)
    k16 = npair <= 2
    if npair in (1, 3):
        o("    v_mov_b32 v%d, 0" % (vP + npair))
        o("    v_mov_b32 v%d, 0" % (vP + 4 + npair))
    perms(b, 0, vP, npair)
    for j in range(8):
        if j + 1 < 8:
            perms(b, j + 1, vP + 4 * ((j + 1) & 1), npair)
        if npair == 1 or j == 7:
            o("    s_nop 0")
        pb = vP + 4 * (j & 1)
        c = "v[%d:%d]" % (vD + 4 * j, vD + 4 * j + 3) if acc else "0"
        if k16:
            o("    v_mfma_f32_16x16x16_bf16 v[%d:%d], v[%d:%d], v[%d:%d], %s" % (vD + 4 * j, vD + 4 * j + 3, vS, vS + 1, pb, pb + 1, c))
        else:
            o("    v_mfma_f32_16x16x32_bf16 v[%d:%d], v[%d:%d], v[%d:%d], %s" % (vD + 4 * j, vD + 4 * j + 3, vS, vS + 3, pb, pb + 3, c))

def mm_all(b):
    sb = 48 + 4 * b
    o("    s_and_b32 s39, s%d, 15" % (sb + 3))
    o("    s_bitcmp0_b32 s%d, 4" % (sb + 3))
    o("    s_cbranch_scc1 M%d_acc" % b)
    for acc in (False, True):
        a = "a" if acc else "f"
        if acc: o("M%d_acc:" % b)
        o("    s_cmp_gt_u32 s39, 6")
        o("    s_cbranch_scc1 M%d%s4" % (b, a))
        o("    s_cmp_gt_u32 s39, 4")
        o("    s_cbranch_scc1 M%d%s3" % (b, a))
        o("    s_cmp_gt_u32 s39, 2")
        o("    s_cbranch_scc1 M%d%s2" % (b, a))
        for npair in (1, 2, 3, 4):
            o("M%d%s%d:" % (b, a, npair))
            mm(b, acc, npair)
            if not (acc and npair == 4):
                o("    s_branch M%d_done" % b)
    o("M%d_done:" % b)

def vm_wait(other):
    if NBUF == 1:
        o("    s_waitcnt vmcnt(0) lgkmcnt(0)")
        return
    t = "W%d" % uid[0]; uid[0] += 1
    sb = 48 + 4 * other
    o("    s_and_b32 s39, s%d, 15" % (sb + 3))
    o("    s_cmp_eq_u32 s39, 8")
    o("    s_cbranch_scc1 %s_8" % t)
    o("    s_cmp_ge_u32 s39, 4")
    o("    s_cbranch_scc1 %s_hi" % t)
    o("    s_cmp_ge_u32 s39, 2")
    o("    s_cbranch_scc1 %s_2" % t)
    o("    s_waitcnt vmcnt(0)")
    o("%s_2:" % t)
    o("    s_waitcnt vmcnt(2)")
    o("%s_hi:" % t)
    o("    s_cmp_ge_u32 s39, 6")
    o("    s_cbranch_scc1 %s_6" % t)
    o("    s_waitcnt vmcnt(4)")
    o("%s_6:" % t)
    o("    s_waitcnt vmcnt(6)")
    o("%s_8:" % t)
    o("    s_waitcnt vmcnt(8) lgkmcnt(0)")

def tile_fma(j, w):
    d = vD + 4 * j
    o("    v_mul_f32 v%d, v%d, v%d" % (d, d, w))
    for k in range(1, 4):
        o("    v_fmac_f32 v%d, v%d, v%d" % (d, d + k, w + k))
def wr_read(j, w):
    o("    ds_read_b128 v[%d:%d], v%d offset:%d" % (w, w + 3, vLaneOff, L_WR + 256 * j))
def lock_try():
    o("    s_mov_b64 exec, 1")
    o("    ds_wrxchg_rtn_b32 v%d, v%d, v%d offset:%d" % (vS + 2, vS, vOne, L_LOCK))
    o("    s_mov_b64 exec, -1")
    o("    ds_read_b128 v[%d:%d], v%d" % (vP, vP + 3, vS + 1))
    o("    ds_read_b128 v[%d:%d], v%d offset:1024" % (vP + 4, vP + 7, vS + 1))

def post(b):
    if "--nopost" in opts: return
    sb = 48 + 4 * b
    t = "P%d" % b
    if NBUF == 2:
        wr_read(0, vP); wr_read(1, vP + 4); wr_read(2, vA); wr_read(3, vA + 4)
    o("    s_lshl_b32 s38, s%d, 9" % sb)
    o("    v_add_u32 v0, s38, v%d" % vL8)
    o("    ds_read_b64 v[%d:%d], v0 offset:%d" % (vCG, vCG + 1, L_CG))
    o("    s_lshl_b32 s38, s%d, 2" % (sb + 1))
    o("    v_mov_b32 v%d, s38                    ; lock addr" % vS)
    o("    s_and_b32 s38, s%d, 3" % (sb + 1))
    o("    s_lshl_b32 s38, s38, 6")
    o("    s_lshl_b32 s39, s%d, 11" % (sb + 1))
    o("    s_add_u32 s39, s39, %d" % L_AGG)
    o("    s_or_b32 s38, s38, s39")
    o("    v_xor_b32 v%d, s38, v%d               ; agg addr" % (vS + 1, vAggC))
    o("    v_mov_b32 v%d, 0" % (vS + 3))
    if NBUF == 2:
        o("    s_waitcnt lgkmcnt(4)")
        tile_fma(0, vP)
        o("    s_waitcnt lgkmcnt(3)")
        tile_fma(1, vP + 4)
        wr_read(4, vP); wr_read(5, vP + 4)
        o("    s_waitcnt lgkmcnt(4)")
        tile_fma(2, vA)
        o("    s_waitcnt lgkmcnt(3)")
        tile_fma(3, vA + 4)
        wr_read(6, vA); wr_read(7, vA + 4)
        o("    v_cvt_pk_bf16_f32 v%d, v%d, v%d" % (vD + 2, vD, vD + 4))
        o("    v_cvt_pk_bf16_f32 v%d, v%d, v%d" % (vD + 3, vD + 8, vD + 12))
        o("    s_waitcnt lgkmcnt(3)")
        tile_fma(4, vP)
        o("    s_waitcnt lgkmcnt(2)")
        tile_fma(5, vP + 4)
        lock_try()
        o("    s_waitcnt lgkmcnt(4)")
        tile_fma(6, vA)
        o("    s_waitcnt lgkmcnt(3)")
        tile_fma(7, vA + 4)
    else:
        for j in range(4):
            tile_fma(j, vWR + 4 * j)
        o("    v_cvt_pk_bf16_f32 v%d, v%d, v%d" % (vD + 2, vD, vD + 4))
        o("    v_cvt_pk_bf16_f32 v%d, v%d, v%d" % (vD + 3, vD + 8, vD + 12))
        lock_try()
        for j in range(4, 8):
            tile_fma(j, vWR + 4 * j)
    o("    v_cvt_pk_bf16_f32 v%d, v%d, v%d" % (vD + 6, vD + 16, vD + 20))
    o("    v_cvt_pk_bf16_f32 v%d, v%d, v%d" % (vD + 7, vD + 24, vD + 28))
    o("%s_chk:" % t)
    o("    s_waitcnt lgkmcnt(0)")
    o("    v_readfirstlane_b32 s38, v%d" % (vS + 2))
    o("    s_cmp_eq_u32 s38, 0")
    o("    s_cbranch_scc1 %s_got" % t)
    lock_try()
    o("    s_branch %s_chk" % t)
    o("%s_got:" % t)
    o("    v_mfma_f32_16x16x16_bf16 v[%d:%d], v[%d:%d], v[%d:%d], v[%d:%d]" % (vP, vP + 3, vCG, vCG + 1, vD + 2, vD + 3, vP, vP + 3))
    o("    v_mfma_f32_16x16x16_bf16 v[%d:%d], v[%d:%d], v[%d:%d], v[%d:%d]" % (vP + 4, vP + 7, vCG, vCG + 1, vD + 6, vD + 7, vP + 4, vP + 7))
    o("    s_nop 7")
    o("    ds_write_b128 v%d, v[%d:%d]" % (vS + 1, vP, vP + 3))
    o("    ds_write_b128 v%d, v[%d:%d] offset:1024" % (vS + 1, vP + 4, vP + 7))
    o("    s_mov_b64 exec, 1")
    o("    ds_write_b32 v%d, v%d offset:%d" % (vS, vS + 3, L_LOCK))
    if DF:
        o("    s_andn2_b32 s38, s%d, 3" % (sb + 1))
        o("    v_mov_b32 v%d, s38" % (vS + 2))
        o("    ds_add_u32 v%d, v%d offset:%d" % (vS + 2, vOne, L_TC))
    o("    s_mov_b64 exec, -1")

spf(SPF % 10, "SP3")
if DPW:
    per = 320 // DPW
    assert DPN <= per
    o("    s_cmp_lt_u32 s40, %d" % (16 - DPW))
    o("    s_cbranch_scc1 DP_e")
    o("    s_cmp_lg_u32 s41, 0")
    o("    s_cbranch_scc1 DP_e")
    o("    s_sub_u32 s66, s40, %d" % (16 - DPW))
    o("    s_mul_i32 s66, s66, %d" % (per * 1024))
    o("    s_add_u32 s66, s66, s68")
    o("    v_mov_b32 v0, 0")
    for u in range(1, 4):
        if u > 1:
            o("DP_g%d:" % u)
            o("    ds_read_b32 v%d, v0 offset:%d" % (vQ, L_Q))
            o("    s_waitcnt lgkmcnt(0)")
            o("    v_readfirstlane_b32 s38, v%d" % vQ)
            o("    s_cmp_ge_u32 s38, %d" % (40 * (u - 1) + DPG + 16))
            o("    s_cbranch_scc1 DP_go%d" % u)
            o("    s_sleep 4")
            o("    s_branch DP_g%d" % u)
            o("DP_go%d:" % u)
        o("    s_and_b32 s38, s2, 7")
        o("    s_mul_i32 s38, s38, %d" % (DPN // 8))
        o("    s_mov_b32 s39, %d" % DPN)
        o("DP_l%d:" % u)
        o("    s_sub_u32 s36, s38, %d" % DPN)
        o("    s_min_u32 s38, s38, s36")
        o("    s_lshl_b32 s36, s38, 10")
        o("    s_add_u32 s36, s36, s66")
        for sec in range(4):
            o("    s_load_dword s67, s[4:5], s36 offset:%d" % (u * 256 + sec * 64))
        o("    s_add_u32 s38, s38, 1")
        o("    s_sub_u32 s39, s39, 1")
        o("    s_cmp_lg_u32 s39, 0")
        o("    s_cbranch_scc1 DP_l%d" % u)
    o("    s_mov_b64 exec, 1")
    o("    ds_add_rtn_u32 v%d, v%d, v%d offset:%d" % (vQ, vLaneOff, vOne, L_Q))
    o("    s_mov_b64 exec, -1")
    o("    s_waitcnt lgkmcnt(0)")
    o("    v_readfirstlane_b32 s38, v%d" % vQ)
    o("    s_branch DP_join")
    o("DP_e:")
o("    s_mov_b32 s38, s40")
o("    s_mov_b32 s71, 0")
if DPW:
    o("    s_cmp_lt_u32 s40, %d" % (16 - DPW))
    o("    s_cbranch_scc1 DP_join")
    o("    s_mov_b64 exec, 1")
    o("    ds_add_rtn_u32 v%d, v%d, v%d offset:%d" % (vQ, vLaneOff, vOne, L_Q))
    o("    s_mov_b64 exec, -1")
    o("    s_waitcnt lgkmcnt(0)")
    o("    v_readfirstlane_b32 s38, v%d" % vQ)
    o("DP_join:")
if not SYNCQ: dequeue()
o("    s_mov_b32 s60, 0")
gen_next(True)
o("    s_waitcnt lgkmcnt(0)")
issue_loads(0)
gen_to_slot(0)
if NBUF == 2:
    gen_next()
    o("    s_waitcnt lgkmcnt(0)")
    issue_loads(1)
    gen_to_slot(1)
else:
    for j in range(8):
        wr_read(j, vWR + 4 * j)
o("K2_loop:")
for b in range(NBUF):
    sb = 48 + 4 * b
    o("    s_and_b32 s39, s%d, 15" % (sb + 3))
    o("    s_cbranch_scc0 K2_main_done")
    o("    v_add_u32 v0, s%d, v%d" % (sb + 2, vSC))
    o("    ds_read_b64_tr_b16 v[%d:%d], v0 offset:%d" % (vS, vS + 1, L_S))
    o("    ds_read_b64_tr_b16 v[%d:%d], v0 offset:%d" % (vS + 2, vS + 3, L_S + 512))
    if LATE:
        vm_wait(1 - b)
        mm_all(b)
        gen_next()
        o("    s_waitcnt lgkmcnt(0)")
    else:
        gen_next()
        if SPM:
            o("    s_cmp_ge_u32 s%d, 3" % sb)
            o("    s_cbranch_scc1 SPM_e")
            o("    s_add_u32 s66, s%d, s69" % (sb + 1))
            o("    s_sub_u32 s39, s66, 40")
            o("    s_min_u32 s66, s66, s39")
            o("    s_lshl_b32 s39, s%d, 8" % sb)
            o("    s_add_u32 s39, s39, s68")
            o("    s_bitcmp0_b32 s%d, 4" % (sb + 3))
            o("    s_cbranch_scc1 SPM_2")
            o("    s_mul_i32 s66, s66, %d" % (SPM * 1024))
            o("    s_add_u32 s66, s66, s39")
            for n in range(SPM):
                for sec in range(4):
                    o("    s_load_dword s67, s[4:5], s66 offset:%d" % (n * 1024 + 256 + sec * 64))
            o("    s_branch SPM_e")
            o("SPM_2:")
            if SPM2:
                assert 40 * (SPM + SPM2) <= 320
                o("    s_mul_i32 s66, s66, %d" % (SPM2 * 1024))
                o("    s_add_u32 s66, s66, s39")
                for n in range(SPM2):
                    for sec in range(4):
                        o("    s_load_dword s67, s[4:5], s66 offset:%d" % ((40 * SPM + n) * 1024 + 256 + sec * 64))
            o("SPM_e:")
        vm_wait(1 - b)
        mm_all(b)
    issue_loads(b)
    o("    s_bitcmp0_b32 s%d, 5" % (sb + 3))
    o("    s_cbranch_scc1 K2_cont%d" % b)
    post(b)
    o("K2_cont%d:" % b)
    gen_to_slot(b)
o("    s_branch K2_loop")
o("K2_main_done:")
o("    s_cmp_eq_u32 s41, 0")
o("    s_cbranch_scc1 K2_final")
o("    s_add_u32 s42, s42, 1")
o("    s_cmp_ge_u32 s42, %d" % NSLOW)
o("    s_cbranch_scc1 K2_final")
o("    s_waitcnt vmcnt(0) lgkmcnt(0)")
o("    s_barrier")
o("    s_lshl_b32 s39, s40, 6")
o("    v_lshrrev_b32 v0, 3, v%d" % vL8)
o("    v_add_u32 v0, s39, v0")
o("    s_branch K2_round")

o("K2_final:")
stamp()
if STAMP:
    o("    s_memtime s[78:79]")
    o("    s_waitcnt lgkmcnt(0)")
    o("    s_sub_u32 s78, s78, s76")
vW = 32
vB = 64
vC = 96
if FSW:
    o("    s_cmp_lt_u32 s40, 12")
    o("    s_cbranch_scc1 K2_fin_end")
o("    s_and_b32 s44, s40, 3                 ; dp")
o("    s_lshr_b32 s45, s40, 2                ; rg")
o("    s_lshl_b32 s39, s44, 13")
o("    s_add_u32 s39, s39, 0x%x" % WS_WIMG)
o("    v_lshlrev_b32 v8, 1, v%d              ; lane*16" % vL8)
o("    v_add_u32 v8, s39, v8")
o("    v_add_u32 v9, 0x1000, v8")
o("    s_waitcnt vmcnt(0)")
for ts in range(8):
    base = "v8" if ts < 4 else "v9"
    o("    global_load_dwordx4 v[%d:%d], %s, s[22:23] offset:%d" % (vW + 4 * ts, vW + 4 * ts + 3, base, (ts & 3) * 1024))
o("    v_lshrrev_b32 v10, 3, v%d             ; lane" % vL8)
o("    v_bfe_u32 v11, v10, 2, 2              ; nl")
o("    v_and_b32 v12, 3, v10                 ; w")
o("    v_lshrrev_b32 v17, 4, v10             ; q")
o("    v_and_b32 v13, 15, v10")
o("    v_xor_b32 v13, v13, v17               ; q ^ col")
o("    v_lshlrev_b32 v15, 11, v11")
o("    v_lshl_add_u32 v15, v12, 8, v15")
o("    v_lshl_add_u32 v15, v13, 4, v15")
o("    v_lshlrev_b32 v16, 18, v11")
o("    v_lshl_add_u32 v16, v12, 8, v16")
o("    v_lshl_add_u32 v16, v17, 4, v16")
o("    s_lshl_b32 s39, s2, 10")
o("    s_lshl_b32 s46, s44, 6")
o("    s_add_u32 s39, s39, s46")
o("    v_add_u32 v16, s39, v16")
if DF:
    o("    s_lshl_b32 s39, s44, 2")
    o("    v_mov_b32 v8, s39")
    o("    v_mov_b32 v14, 1")
    o("    s_mov_b64 exec, 1")
    o("    ds_add_rtn_u32 v9, v8, v14 offset:%d" % L_FQ)
    o("    s_mov_b64 exec, -1")
    stamp()
    o("    s_waitcnt vmcnt(0)")
    o("K2_fin_loop:")
    o("    s_waitcnt lgkmcnt(0)")
    o("    v_readfirstlane_b32 s45, v9")
    o("    s_cmp_ge_u32 s45, 10")
    o("    s_cbranch_scc1 K2_fin_end")
    o("    s_lshl_b32 s39, s45, 2")
    o("    v_mov_b32 v10, s39")
    o("K2_fin_wait:")
    o("    ds_read_b32 v11, v10 offset:%d" % L_TC)
    o("    s_waitcnt lgkmcnt(0)")
    o("    v_readfirstlane_b32 s39, v11")
    o("    s_cmp_ge_u32 s39, 16")
    o("    s_cbranch_scc1 K2_fin_go")
    o("    s_sleep 2")
    o("    s_branch K2_fin_wait")
    o("K2_fin_go:")
else:
    o("    s_waitcnt lgkmcnt(0)")
    o("    s_barrier")
    stamp()
    o("    s_waitcnt vmcnt(0)")
    o("K2_fin_loop:")
o("    s_lshl_b32 s39, s45, 13               ; rt*8192")
o("    s_add_u32 s39, s39, %d" % L_AGG)
o("    v_add_u32 v18, s39, v15")
for s in range(4):
    if s:
        o("    v_xor_b32 v19, %d, v18" % (64 * s))
    a = "v19" if s else "v18"
    o("    ds_read_b128 v[%d:%d], %s" % (vB + 8 * s, vB + 8 * s + 3, a))
    o("    ds_read_b128 v[%d:%d], %s offset:1024" % (vB + 8 * s + 4, vB + 8 * s + 7, a))
if DF:
    o("    s_mov_b64 exec, 1")
    o("    ds_add_rtn_u32 v9, v8, v14 offset:%d" % L_FQ)
    o("    s_mov_b64 exec, -1")
for s in range(4):
    o("    s_waitcnt lgkmcnt(%d)" % (6 - 2 * s + (1 if DF else 0)))
    for p in range(4):
        o("    v_cvt_pk_bf16_f32 v%d, v%d, v%d" % (vC + 4 * s + p, vB + 8 * s + 2 * p, vB + 8 * s + 2 * p + 1))
o("    s_nop 1")
for s in range(4):
    for t in range(2):
        a = vW + 4 * (t * 4 + s)
        acc = 20 + 4 * t
        c = "0" if s == 0 else "v[%d:%d]" % (acc, acc + 3)
        o("    v_mfma_f32_16x16x32_bf16 v[%d:%d], v[%d:%d], v[%d:%d], %s" % (acc, acc + 3, a, a + 3, vC + 4 * s, vC + 4 * s + 3, c))
o("    s_lshl_b32 s39, s45, 20               ; rt*4*256*1024")
o("    s_nop 7")
for p in range(4):
    o("    v_cvt_pk_bf16_f32 v%d, v%d, v%d" % (28 + p, 20 + 2 * p, 21 + 2 * p))
o("    buffer_store_dwordx4 v[28:31], v16, s[28:31], s39 offen sc1")
if DF:
    o("    s_branch K2_fin_loop")
    o("K2_fin_end:")
else:
    o("    s_add_u32 s45, s45, 4")
    o("    s_cmp_lt_u32 s45, 10")
    o("    s_cbranch_scc1 K2_fin_loop")
if STAMP:
    stamp()
    o("    s_waitcnt vmcnt(0)")
    stamp()
    o("    s_lshl_b32 s39, s2, 4")
    o("    s_add_u32 s39, s39, s40")
    o("    s_lshl_b32 s39, s39, 6")
    o("    s_add_u32 s39, s39, 0x8000000")
    o("    v_mov_b32 v1, s39")
    for i in range(nstamp[0]):
        o("    v_mov_b32 v2, s%d" % (84 + 2 * i))
        o("    global_store_dword v1, v2, s[22:23] offset:%d" % (4 * i))
    o("    v_mov_b32 v2, s72")
    o("    global_store_dword v1, v2, s[22:23] offset:%d" % (4 * 11))
    o("    v_mov_b32 v2, s74")
    o("    global_store_dword v1, v2, s[22:23] offset:%d" % (4 * 12))
    o("    v_mov_b32 v2, s78")
    o("    global_store_dword v1, v2, s[22:23] offset:%d" % (4 * 13))
    o("    v_mov_b32 v2, s41")
    o("    global_store_dword v1, v2, s[22:23] offset:%d" % (4 * 14))
    o("    v_mov_b32 v2, s34")
    o("    global_store_dword v1, v2, s[22:23] offset:%d" % (4 * 15))
o("K2_done:")
o("    s_endpgm")

o('.section .rodata,"a"')
for kn, vg, sg in (("gs_bin_kernel", 48, 64 if STAMP else 32), (KN, 128, 102 if STAMP else 72)):
    o(".p2align 6")
    o(".amdhsa_kernel %s" % kn)
    o("  .amdhsa_next_free_vgpr %d" % vg)
    o("  .amdhsa_next_free_sgpr %d" % sg)
    o("  .amdhsa_accum_offset %d" % vg)
    o("  .amdhsa_group_segment_fixed_size 0")
    o("  .amdhsa_kernarg_size 88")
    o("  .amdhsa_user_sgpr_count 2")
    o("  .amdhsa_user_sgpr_kernarg_segment_ptr 1")
    o("  .amdhsa_system_sgpr_workgroup_id_x 1")
    o("  .amdhsa_float_denorm_mode_32 3")
    o(".end_amdhsa_kernel")

path = args[0] if args else "cdna_kernels/%s.s" % NAME
open(path, "w").write("\n".join(out) + "\n")
print("wrote", path, "K2_LDS", K2_LDS, "K1_LDS", K1_LDS, "L_S", L_S, "L_AGG", L_AGG)
```

```python
import sys
NAME = "gather_scatter__tensor_product_equiv_mace__graph"
N = 10000
E = 320000
CHUNK = 1280
NCHUNK = E // CHUNK
REC_BYTES = 20
WS_TAB = 0x700000
WS_WIMG = 0x780000

opts = [a for a in sys.argv[1:] if a.startswith("--")]
args = [a for a in sys.argv[1:] if not a.startswith("--")]
STAMP = "--stamp" in opts
def optval(name, default):
    for a in opts:
        if a.startswith("--" + name + "="):
            return int(a.split("=")[1])
    return default
NBUF = optval("nbuf", 1)
TABSC1 = optval("tabsc1", 0)
K1T = optval("k1t", 0)
KEYG = optval("keyg", 0)
NT2 = " nt" if optval("nt2", 0) else ""
K1ST = {0: "", 1: " sc1", 2: " nt"}[optval("k1st", 1)]
OST = {0: "", 1: " sc1", 2: " nt", 3: " sc1 nt"}[optval("ost", 1)]
K1D = optval("k1d", 0)
LAZYW = optval("lazyw", 0)
DF = optval("df", 1)
FSW = optval("fsw", 0)
ROT = optval("rot", 0)
DPW = optval("dpw", 0)
DPN = optval("dpn", 40)
DPG = optval("dpg", 8)
SPM = optval("spm", 0)
SPM2 = optval("spm2", 0)
SP0A = optval("sp0a", 0)
SP0B = optval("sp0b", 0)
B2T = optval("b2t", 0)
TLB = optval("tlb", 0)
SYNCQ = optval("syncq", 0)
LATE = optval("late", 0)
SKEW = optval("skew", 0)
PF1 = optval("pf1", 0)
PF2 = optval("pf2", 0)

out = []
def o(s=""):
    out.append(s)
nstamp = [0]
def stamp():
    if not STAMP: return
    i = nstamp[0]; nstamp[0] += 1
    o("    s_memrealtime s[%d:%d]" % (84 + 2 * i, 85 + 2 * i))
    o("    s_waitcnt lgkmcnt(0)")

HEADER = open("cdna_kernels/%s.s.ref" % NAME).read().split("\n")
hdr = [l for l in HEADER if l.startswith(";") and "@launch" not in l and "Override" not in l and "grid=ceil" not in l]

CAP = 1536
NKMAX = 40 + CAP // 32
L_WR = 0
L_CG = L_WR + 2048
L_CNT = L_CG + 2048
L_TABS = L_CNT + 256
L_LOCK = L_TABS + 256
L_FLAG = L_LOCK + 256
L_Q = L_FLAG + 4
L_FQ = L_FLAG + 16
L_TC = L_FLAG + 64
L_SOFF = L_FLAG + 256
L_S = L_SOFF + (NKMAX + 1) * 128
L_S = (L_S + 255) // 256 * 256
L_AGG = L_S + (CAP + 32) * 32
L_AGG = (L_AGG + 2047) // 2048 * 2048
L_END = L_AGG + 40 * 2048
K2_LDS = L_END
assert K2_LDS <= 160 * 1024
OOB = 0x7f000000

K1_THREADS = 640
K1L_HIST = 0
K1L_OFFS = 1024
K1L_STG = 2048
K1_LDS = K1L_STG + CHUNK * REC_BYTES

for l in hdr:
    o(l)
o("; @launch kernel=gs_bin_kernel grid=(256,1,1) block=(%d,1,1) lds=%d" % (K1_THREADS, K1_LDS))
o("; @launch kernel=%s_kernel grid=(256,1,1) block=(1024,1,1) lds=%d" % (NAME, K2_LDS))
o('.amdgcn_target "amdgcn-amd-amdhsa--gfx950"')
o(".text")

def dpp_scan(v):
    for sh in (1, 2, 4, 8):
        o("    s_nop 1")
        o("    v_add_u32_dpp %s, %s, %s row_shr:%d row_mask:0xf bank_mask:0xf bound_ctrl:0" % (v, v, v, sh))
    o("    s_nop 1")
    o("    v_add_u32_dpp %s, %s, %s row_bcast:15 row_mask:0xa bank_mask:0xf" % (v, v, v))
    o("    s_nop 1")
    o("    v_add_u32_dpp %s, %s, %s row_bcast:31 row_mask:0xc bank_mask:0xf" % (v, v, v))
    o("    s_nop 1")

o(".globl gs_bin_kernel")
o(".p2align 8")
o(".type gs_bin_kernel,@function")
o("gs_bin_kernel:")
k1n = [0]
def stamp1():
    if not STAMP: return
    i = k1n[0]; k1n[0] += 1
    o("    s_memrealtime s[%d:%d]" % (40 + 2 * i, 41 + 2 * i))
    o("    s_waitcnt lgkmcnt(0)")
def stamp1_flush():
    if not STAMP: return
    o("    s_mov_b64 exec, -1")
    o("    s_waitcnt vmcnt(0)")
    o("    s_memrealtime s[50:51]")
    o("    s_waitcnt lgkmcnt(0)")
    o("    v_lshrrev_b32 v1, 6, v0")
    o("    s_lshl_b32 s3, s2, 4")
    o("    v_add_u32 v1, s3, v1")
    o("    v_lshlrev_b32 v1, 6, v1")
    o("    v_add_u32 v1, 0x9000000, v1")
    for i in range(6):
        o("    v_mov_b32 v2, s%d" % (40 + 2 * i))
        o("    global_store_dword v1, v2, s[22:23] offset:%d" % (4 * i))
stamp1()
o("    s_cmp_ge_u32 s2, 256")
o("    s_cbranch_scc1 K1_done")
o("    s_load_dwordx16 s[4:19], s[0:1], 0")
o("    s_load_dwordx2 s[22:23], s[0:1], 80")
o("    s_cmp_ge_u32 s2, %d" % NCHUNK)
o("    s_cbranch_scc1 K1_wimg")
o("    s_mul_i32 s3, s2, %d" % CHUNK)
o("    v_lshl_add_u32 v1, v0, 1, s3")
o("    v_lshlrev_b32 v2, 2, v1               ; *4")
o("    v_lshlrev_b32 v3, 3, v1               ; *8")
o("    v_lshlrev_b32 v20, 2, v0              ; tid*4")
o("    v_mov_b32 v21, 0")
o("    v_mov_b32 v22, 1")
o("    s_waitcnt lgkmcnt(0)")
o("    global_load_dwordx2 v[4:5], v2, s[8:9] nt      ; dst")
def k1_rest():
    o("    global_load_dwordx2 v[6:7], v2, s[6:7] nt     ; src")
    o("    global_load_dwordx4 v[8:11], v3, s[10:11] nt  ; sh")
    o("    global_load_dwordx4 v[12:15], v3, s[12:13] nt ; ea")
if not K1D: k1_rest()
def k1_prefetch():
    n = 0
    if PF1 & 1:
        o("    s_lshr_b32 s3, s2, 3")
        o("    s_mul_i32 s3, s3, %d" % K1_THREADS)
        o("    s_and_b32 s26, s2, 7")
        o("    s_mul_i32 s26, s26, 2500")
        o("    s_add_u32 s3, s3, s26")
        o("    v_add_u32 v36, s3, v0")
        o("    v_subrev_u32 v37, 20000, v36")
        o("    v_min_u32 v36, v36, v37               ; mod 20000")
        o("    v_lshrrev_b32 v37, 1, v36")
        o("    v_and_b32 v36, 1, v36")
        o("    v_lshlrev_b32 v36, 7, v36")
        o("    v_lshl_add_u32 v36, v37, 10, v36")
        o("    global_load_dword v40, v36, s[4:5]")
        n += 1
    if PF1 & 2:
        o("    s_mul_i32 s3, s2, 240")
        o("    v_min_u32 v37, 239, v0")
        o("    v_add_u32 v36, s3, v37")
        o("    v_min_u32 v36, 59999, v36")
        o("    s_mov_b32 s26, 43691")
        o("    v_mul_lo_u32 v37, v36, s26")
        o("    v_lshrrev_b32 v37, 18, v37            ; /6")
        o("    v_mul_u32_u24 v39, 6, v37")
        o("    v_sub_u32 v39, v36, v39")
        o("    v_lshlrev_b32 v39, 7, v39")
        o("    v_lshl_add_u32 v36, v37, 10, v39")
        o("    global_load_dword v41, v36, s[4:5] offset:256")
        n += 1
    return n
NPF = 0
if TLB & 4:
    o("    s_mul_i32 s3, s2, %d" % (CHUNK * REC_BYTES))
    o("    v_mov_b32 v36, s3")
    o("    global_load_dword v40, v36, s[22:23]")
    o("    s_lshl_b32 s3, s2, 10")
    o("    s_add_u32 s3, s3, 0x%x" % WS_TAB)
    o("    v_mov_b32 v37, s3")
    o("    global_load_dword v41, v37, s[22:23]")
    NPF = 2
o("    v_cmp_gt_u32 vcc, 256, v0")
o("    s_and_saveexec_b64 s[24:25], vcc")
o("    ds_write_b32 v20, v21 offset:%d" % K1L_HIST)
o("    s_mov_b64 exec, s[24:25]")
o("    s_waitcnt lgkmcnt(0)")
o("    s_barrier")
if K1D == 1: k1_rest()
if K1D == 2:
    o("    s_waitcnt vmcnt(0)")
    k1_rest()
o("    s_waitcnt vmcnt(%d)" % (3 + NPF))
stamp1()
if PF1 & 4: NPF = k1_prefetch()
if KEYG:
    for d, r, t in (("v4", "v16", "v42"), ("v5", "v17", "v43")):
        o("    v_and_b32 %s, 7, %s" % (r, d))
        o("    v_bfe_u32 %s, %s, 3, 5" % (t, d))
        o("    v_lshlrev_b32 %s, 2, %s" % (t, t))
        o("    v_lshl_or_b32 %s, %s, 7, %s" % (r, r, t))
else:
    o("    v_and_b32 v16, 255, v4")
    o("    v_and_b32 v17, 255, v5")
    o("    v_lshlrev_b32 v16, 2, v16")
    o("    v_lshlrev_b32 v17, 2, v17")
o("    ds_add_rtn_u32 v18, v16, v22 offset:%d" % K1L_HIST)
o("    ds_add_rtn_u32 v19, v17, v22 offset:%d" % K1L_HIST)
o("    v_lshrrev_b32 v4, 8, v4")
o("    v_lshrrev_b32 v5, 8, v5")
o("    s_waitcnt lgkmcnt(0)")
o("    s_barrier")
o("    v_cmp_gt_u32 vcc, 64, v0")
o("    s_and_saveexec_b64 s[24:25], vcc")
o("    s_cbranch_execz K1_scan_done")
o("    v_lshlrev_b32 v23, 4, v0")
o("    ds_read_b128 v[24:27], v23 offset:%d" % K1L_HIST)
o("    s_waitcnt lgkmcnt(0)")
o("    v_add_u32 v28, v24, v25")
o("    v_add_u32 v29, v28, v26")
o("    v_add_u32 v30, v29, v27")
o("    v_mov_b32 v31, v30")
dpp_scan("v31")
o("    v_sub_u32 v32, v31, v30")
o("    v_add_u32 v33, v32, v24")
o("    v_add_u32 v34, v32, v28")
o("    v_add_u32 v35, v32, v29")
o("    ds_write_b128 v23, v[32:35] offset:%d" % K1L_OFFS)
o("    v_lshl_or_b32 v36, v24, 16, v32")
o("    v_lshl_or_b32 v37, v25, 16, v33")
o("    v_lshl_or_b32 v38, v26, 16, v34")
o("    v_lshl_or_b32 v39, v27, 16, v35")
o("    s_and_b32 s3, s2, 7")
o("    s_lshl_b32 s3, s3, 5")
o("    s_lshr_b32 s26, s2, 3")
o("    s_add_u32 s3, s3, s26")
o("    s_lshl_b32 s3, s3, 2")
o("    s_add_u32 s3, s3, 0x%x" % WS_TAB)
o("    v_lshl_add_u32 v23, v0, 12, s3        ; bucket 4l -> (4l)*1024")
for i in range(4):
    o("    global_store_dword v23, v%d, s[22:23] offset:%d%s" % (36 + i, 1024 * i, " sc1" if TABSC1 else ""))
o("    s_waitcnt lgkmcnt(0)")
o("K1_scan_done:")
o("    s_mov_b64 exec, s[24:25]")
o("    s_barrier")
stamp1()
o("    ds_read_b32 v24, v16 offset:%d" % K1L_OFFS)
o("    ds_read_b32 v25, v17 offset:%d" % K1L_OFFS)
o("    s_waitcnt vmcnt(%d)" % NPF)
stamp1()
if K1T:
    o("    v_cmp_gt_u32 vcc, %d, v0" % (128 * K1T))
    o("    s_and_saveexec_b64 s[26:27], vcc")
    o("    s_cbranch_execz K1_t_skip")
    o("    v_and_b32 v36, 63, v0")
    o("    v_min_u32 v36, 39, v36")
    o("    s_mul_i32 s3, s2, 40")
    o("    v_add_u32 v36, s3, v36")
    o("    v_lshrrev_b32 v37, 6, v0")
    o("    v_lshlrev_b32 v37, 7, v37")
    o("    v_lshl_add_u32 v36, v36, 10, v37")
    o("    global_load_dword v40, v36, s[4:5]")
    o("K1_t_skip:")
    o("    s_mov_b64 exec, s[26:27]")
o("    v_lshl_or_b32 v4, v4, 16, v6")
o("    v_lshl_or_b32 v5, v5, 16, v7")
o("    s_waitcnt lgkmcnt(0)")
o("    v_add_u32 v24, v24, v18")
o("    v_add_u32 v25, v25, v19")
o("    v_mul_u32_u24 v24, %d, v24" % REC_BYTES)
o("    v_mul_u32_u24 v25, %d, v25" % REC_BYTES)
o("    v_add_u32 v24, %d, v24" % K1L_STG)
o("    v_add_u32 v25, %d, v25" % K1L_STG)
o("    ds_write2_b32 v24, v8, v9 offset0:0 offset1:1")
o("    ds_write2_b32 v24, v12, v13 offset0:2 offset1:3")
o("    ds_write_b32 v24, v4 offset:16")
o("    ds_write2_b32 v25, v10, v11 offset0:0 offset1:1")
o("    ds_write2_b32 v25, v14, v15 offset0:2 offset1:3")
o("    ds_write_b32 v25, v5 offset:16")
o("    s_waitcnt lgkmcnt(0)")
o("    s_barrier")
stamp1()
o("    v_lshlrev_b32 v23, 4, v0")
o("    ds_read_b128 v[4:7], v23 offset:%d" % K1L_STG)
o("    ds_read_b128 v[8:11], v23 offset:%d" % (K1L_STG + K1_THREADS * 16))
o("    s_mul_i32 s3, s2, %d" % (CHUNK * REC_BYTES))
o("    v_add_u32 v24, s3, v23")
o("    v_add_u32 v25, %d, v24" % (K1_THREADS * 16))
o("    v_add_u32 v26, %d, v24" % (2 * K1_THREADS * 16))
o("    v_cmp_gt_u32 vcc, %d, v0" % (CHUNK * REC_BYTES // 16 - 2 * K1_THREADS))
o("    s_waitcnt lgkmcnt(1)")
o("    global_store_dwordx4 v24, v[4:7], s[22:23]" + K1ST)
o("    s_waitcnt lgkmcnt(0)")
o("    global_store_dwordx4 v25, v[8:11], s[22:23]" + K1ST)
o("    s_and_saveexec_b64 s[24:25], vcc")
o("    s_cbranch_execz K1_end2")
o("    ds_read_b128 v[12:15], v23 offset:%d" % (K1L_STG + 2 * K1_THREADS * 16))
o("    s_waitcnt lgkmcnt(0)")
o("    global_store_dwordx4 v26, v[12:15], s[22:23]" + K1ST)
o("K1_end2:")
stamp1_flush()
o("    s_endpgm")
o("K1_wimg:")
o("    s_cmp_ge_u32 s2, %d" % (NCHUNK + 4))
o("    s_cbranch_scc1 K1_done")
o("    v_cmp_gt_u32 vcc, 512, v0")
o("    s_and_saveexec_b64 s[24:25], vcc")
o("    s_cbranch_execz K1_done")
o("    s_sub_u32 s3, s2, %d                  ; dp" % NCHUNK)
o("    v_bfe_u32 v1, v0, 8, 1                ; t")
o("    v_bfe_u32 v2, v0, 6, 2                ; s")
o("    v_bfe_u32 v3, v0, 4, 2                ; q")
o("    v_bfe_u32 v5, v0, 2, 2                ; i>>2")
o("    v_and_b32 v6, 3, v0                   ; i&3")
o("    v_lshlrev_b32 v7, 3, v3               ; q*8")
o("    v_lshl_add_u32 v7, v2, 5, v7          ; c0 = 32s + 8q")
o("    v_lshlrev_b32 v8, 3, v5")
o("    v_lshl_add_u32 v8, v1, 2, v8")
o("    v_add_u32 v8, v8, v6")
o("    s_lshl_b32 s26, s3, 5")
o("    v_add_u32 v8, s26, v8                 ; d")
o("    v_lshlrev_b32 v8, 1, v8")
o("    v_lshl_add_u32 v8, v7, 8, v8")
o("    s_waitcnt lgkmcnt(0)")
for j in range(8):
    o("    global_load_ushort v%d, v8, s[18:19] offset:%d" % (16 + j, 256 * j))
o("    s_lshl_b32 s26, s3, 13")
o("    s_add_u32 s26, s26, 0x%x" % WS_WIMG)
o("    v_lshl_add_u32 v11, v0, 4, s26")
o("    s_waitcnt vmcnt(0)")
for p in range(4):
    o("    v_lshl_or_b32 v%d, v%d, 16, v%d" % (12 + p, 17 + 2 * p, 16 + 2 * p))
o("    global_store_dwordx4 v11, v[12:15], s[22:23] sc1")
o("K1_done:")
o("    s_endpgm")

KN = NAME + "_kernel"
o(".globl %s" % KN)
o(".p2align 8")
o(".type %s,@function" % KN)
o("%s:" % KN)
vLaneOff = 1; vSoffC = 2; vSC = 3; vAggC = 4; vL8 = 5; vND = 6; vQ = 7
vP = 8; vS = 16; vCG = 20; vT = 22; vOne = 23; vA = 24
vRB = [32, 64]; vD = 96; vWR = 64
vREC = 32
vMETA = 96; vRANK = 104; vCA = 112
MM = 8

TPC = 3
NSLOW = (E + 1023) // 1024
PFX = optval("pfx", 0)
PF0 = optval("pf0", 0)
TLB = optval("tlb", 0)
SPF = optval("spf", 0)
spf_u = [0]
def spf(nsl, tag):
    if nsl == 0: return
    o("    s_cmp_lt_u32 s40, 12")
    o("    s_cbranch_scc1 %s_e" % tag)
    o("    s_cmp_ge_u32 s2, 250")
    o("    s_cbranch_scc1 %s_e" % tag)
    o("    s_cmp_lg_u32 s41, 0")
    o("    s_cbranch_scc1 %s_e" % tag)
    for k in range(nsl):
        u = spf_u[0]; spf_u[0] += 1
        o("    s_mul_i32 s66, s2, %d" % (40 * 1024))
        o("    s_lshl_b32 s39, s40, 6")
        o("    s_add_u32 s66, s66, s39")
        o("    s_add_u32 s66, s66, %d" % (u * 256 - 12 * 64))
        o("    s_mov_b32 s39, 5")
        o("%s_l%d:" % (tag, k))
        for j in range(8):
            o("    s_load_dword s67, s[4:5], s66 offset:%d" % (j * 1024))
        o("    s_add_u32 s66, s66, 8192")
        o("    s_sub_u32 s39, s39, 1")
        o("    s_cmp_lg_u32 s39, 0")
        o("    s_cbranch_scc1 %s_l%d" % (tag, k))
    o("%s_e:" % tag)
PFM = optval("pfm", 0)
o("    s_cmp_ge_u32 s2, 256")
o("    s_cbranch_scc1 K2_done")
stamp()
o("    s_load_dwordx2 s[22:23], s[0:1], 80")
o("    s_load_dwordx16 s[4:19], s[0:1], 0")
o("    s_load_dwordx2 s[20:21], s[0:1], 64")
o("    v_and_b32 v8, 63, v0                  ; lane")
o("    v_lshrrev_b32 v9, 6, v0")
o("    s_mov_b32 s44, 21846")
o("    v_readfirstlane_b32 s40, v9")
o("    v_mul_lo_u32 v14, v0, s44")
o("    v_lshrrev_b32 v14, 16, v14")
o("    v_mul_u32_u24 v17, 3, v14")
o("    v_sub_u32 v17, v0, v17                ; i0 = tid%3")
if KEYG:
    o("    s_and_b32 s3, s2, 7")
    o("    s_lshl_b32 s3, s3, 5")
    o("    s_lshr_b32 s43, s2, 3")
    o("    s_or_b32 s3, s3, s43")
    o("    s_lshl_b32 s3, s3, 10")
else:
    o("    s_lshl_b32 s3, s2, 10")
o("    s_add_u32 s43, s3, 0x%x               ; TAB + b*1024" % WS_TAB)
o("    v_lshl_add_u32 v15, v14, 2, s43")
o("    v_and_b32 v16, 31, v14")
o("    v_lshrrev_b32 v14, 5, v14")
o("    v_lshl_add_u32 v14, v16, 3, v14       ; chunk")
o("    v_and_b32 v9, 15, v8                  ; col")
o("    v_lshrrev_b32 v10, 4, v8              ; g")
o("    v_lshlrev_b32 v%d, 4, v9              ; laneoff = col*16" % vLaneOff)
o("    s_cmp_ge_u32 s40, 12")
o("    s_waitcnt lgkmcnt(0)")
o("    s_cbranch_scc1 K2_hiwaves")
if TLB & 1:
    o("    s_mov_b32 s47, %d" % (CHUNK * REC_BYTES))
    o("    v_mul_lo_u32 v19, v16, s47")
    o("    s_mul_i32 s3, s2, 100")
    o("    v_add_u32 v19, s3, v19")
o("    global_load_dword v16, v15, s[22:23]")
if TLB & 1:
    o("    global_load_dword v120, v19, s[22:23]")
o("    s_branch K2_tabs_issued")
o("K2_hiwaves:")
o("    s_mov_b32 s24, s4")
o("    s_and_b32 s25, s5, 0xffff")
o("    s_mov_b32 s26, %d" % (N * 1024))
o("    s_mov_b32 s27, 0x00020000")
o("    s_cmp_eq_u32 s40, 13")
o("    s_cbranch_scc1 K2_cg_issue")
o("    s_cmp_lg_u32 s40, 14")
o("    s_cbranch_scc1 K2_pf")
for k in range(4):
    o("    global_load_dwordx4 v[%d:%d], v%d, s[16:17] offset:%d" % (96 + 4 * k, 96 + 4 * k + 3, vLaneOff, 256 * k))
o("    s_branch K2_pf")
o("K2_cg_issue:")
o("    v_lshrrev_b32 v11, 2, v9")
o("    v_lshlrev_b32 v18, 3, v10")
o("    v_lshl_add_u32 v18, v11, 1, v18")
for u in range(4):
    o("    global_load_ushort v%d, v18, s[14:15] offset:%d" % (96 + u, 32 * u))
o("K2_pf:")
NPF2 = 0
if TLB & 2:
    o("    v_subrev_u32 v24, 768, v0")
    o("    v_lshlrev_b32 v24, 16, v24")
    o("    buffer_load_dword v121, v24, s[24:27], 0 offen")
    o("    v_min_u32 v24, 0x9c0000, v24")
    o("    global_load_dword v122, v24, s[20:21]")
    NPF2 += 2
if PFX & 1:
    o("    s_lshr_b32 s3, s2, 3")
    o("    s_mul_i32 s3, s3, 313")
    o("    s_and_b32 s44, s2, 7")
    o("    s_mul_i32 s44, s44, 1250")
    o("    s_add_u32 s3, s3, s44")
    o("    s_sub_u32 s3, s3, 768")
    o("    v_add_u32 v24, s3, v0")
    o("    v_subrev_u32 v25, 10000, v24")
    o("    v_min_u32 v24, v24, v25")
    o("    v_lshlrev_b32 v24, 10, v24")
    o("    buffer_load_dword v120, v24, s[24:27], 0 offen")
    o("    buffer_load_dword v121, v24, s[24:27], 0 offen offset:128")
    o("    v_subrev_u32 v26, 768, v0")
    o("    v_lshrrev_b32 v24, 1, v26")
    o("    v_min_u32 v24, 56, v24")
    o("    s_add_u32 s3, s3, %d" % (768 + 256))
    o("    v_add_u32 v24, s3, v24")
    o("    v_subrev_u32 v25, 10000, v24")
    o("    v_min_u32 v24, v24, v25")
    o("    v_lshlrev_b32 v24, 10, v24")
    o("    v_and_b32 v26, 1, v26")
    o("    v_lshl_add_u32 v24, v26, 7, v24")
    o("    buffer_load_dword v122, v24, s[24:27], 0 offen")
    NPF2 += 3
if PFX & 2:
    o("    s_lshl_b32 s3, s2, 8")
    o("    s_sub_u32 s3, s3, 768")
    o("    v_add_u32 v24, s3, v0")
    o("    s_mov_b32 s44, 43691")
    o("    v_mul_lo_u32 v25, v24, s44")
    o("    v_lshrrev_b32 v25, 18, v25            ; /6")
    o("    v_mul_u32_u24 v26, 6, v25")
    o("    v_sub_u32 v26, v24, v26")
    o("    v_lshlrev_b32 v26, 7, v26")
    o("    v_lshl_add_u32 v24, v25, 10, v26")
    o("    buffer_load_dword v124, v24, s[24:27], 0 offen offset:256")
    NPF2 += 1
if PFX & 4:
    o("    s_mul_i32 s3, s2, 313")
    o("    s_sub_u32 s3, s3, 768")
    o("    v_add_u32 v24, s3, v0")
    o("    v_lshlrev_b32 v24, 7, v24")
    o("    buffer_load_dword v124, v24, s[24:27], 0 offen")
    o("    v_subrev_u32 v26, 768, v0")
    o("    v_min_u32 v26, 56, v26")
    o("    s_add_u32 s3, s3, %d" % (768 + 256))
    o("    v_add_u32 v24, s3, v26")
    o("    v_lshlrev_b32 v24, 7, v24")
    o("    buffer_load_dword v125, v24, s[24:27], 0 offen")
    NPF2 += 2
o("K2_tabs_issued:")
o("    v_lshlrev_b32 v%d, 5, v10             ; g*32" % vSoffC)
o("    v_lshrrev_b32 v11, 2, v9              ; r = col>>2")
o("    v_and_b32 v12, 3, v9                  ; c = col&3")
o("    v_lshl_add_u32 v13, v11, 2, v10       ; 4r+g")
o("    v_lshlrev_b32 v13, 5, v13")
o("    v_lshl_add_u32 v%d, v12, 3, v13       ; (4r+g)*32 + c*8" % vSC)
o("    v_xor_b32 v13, v9, v10                ; col ^ w")
o("    v_lshlrev_b32 v13, 4, v13")
o("    v_lshl_add_u32 v%d, v10, 8, v13       ; w*256 + (col^w)*16" % vAggC)
o("    v_lshlrev_b32 v%d, 3, v8              ; lane*8" % vL8)
o("    v_mov_b32 v%d, 1" % vOne)
o("    s_mov_b32 s32, 0x05040100")
o("    s_mov_b32 s33, 0x07060302")
o("    s_mov_b32 s41, 0")
o("    s_mov_b32 s42, 0                      ; round")
o("    s_mov_b32 s70, 160")
o("    s_cmp_ge_u32 s40, 12")
o("    s_cselect_b32 s70, %d, s70" % (FSW if FSW else 160))
o("    s_lshr_b32 s68, s2, 3")
o("    s_mul_i32 s68, s68, 313")
o("    s_min_u32 s68, s68, %d" % (N - 320))
o("    s_lshl_b32 s68, s68, 10")
o("    s_and_b32 s69, s2, 7")
o("    s_mul_i32 s69, s69, 5")
o("    s_mov_b32 s24, s4")
o("    s_and_b32 s25, s5, 0xffff")
o("    s_mov_b32 s26, %d" % (N * 1024))
o("    s_mov_b32 s27, 0x00020000")
o("    s_mov_b32 s28, s20")
o("    s_and_b32 s29, s21, 0xffff")
o("    s_mov_b32 s30, %d" % (N * 1024))
o("    s_mov_b32 s31, 0x00020000")
def round_init():
    o("    v_lshlrev_b32 v18, 4, v0")
    for i in range(4):
        o("    v_mov_b32 v%d, 0x%x" % (24 + i, OOB))
    o("    v_mov_b32 v28, 0")
    o("    v_mov_b32 v29, %d" % (16 - DPW))
    o("    v_cmp_gt_u32 vcc, 64, v0")
    o("    s_and_saveexec_b64 s[44:45], vcc")
    o("    v_lshlrev_b32 v19, 2, v0")
    o("    ds_write_b32 v19, v28 offset:%d" % L_CNT)
    o("    ds_write_b32 v19, v28 offset:%d" % L_LOCK)
    o("    ds_write_b32 v19, v28 offset:%d" % L_FLAG)
    o("    v_mov_b32 v19, 0")
    o("    ds_write_b64 v19, v[28:29] offset:%d" % L_FLAG)
    o("    s_mov_b64 exec, s[44:45]")
    o("    v_cmp_gt_u32 vcc, %d, v0" % ((NKMAX + 1) * 128 // 16))
    o("    s_and_saveexec_b64 s[44:45], vcc")
    o("    ds_write_b128 v18, v[24:27] offset:%d" % L_SOFF)
    o("    s_mov_b64 exec, s[44:45]")
    for m in range(MM):
        o("    s_mov_b64 s[%d:%d], 0" % (48 + 2 * m, 49 + 2 * m))
    o("    s_mov_b64 s[64:65], 0")
round_init()
o("    s_waitcnt lgkmcnt(0)")
o("    s_barrier")
stamp()
def zero_big():
    o("    v_lshlrev_b32 v18, 4, v0              ; tid*16")
    for i in range(4):
        o("    v_mov_b32 v%d, 0" % (28 + i))
    nz = (L_END - L_S) // 16
    full = nz // 1024
    rem = nz - full * 1024
    o("    v_add_u32 v25, %d, v18" % L_S)
    o("    v_add_u32 v26, %d, v18" % (L_S + 65536))
    o("    v_add_u32 v27, %d, v18" % (L_S + 131072))
    for i in range(full):
        off = i * 16384
        o("    ds_write_b128 v%d, v[28:31] offset:%d" % (25 + off // 65536, off % 65536))
    if rem:
        off = full * 16384
        o("    v_cmp_gt_u32 vcc, %d, v0" % rem)
        o("    s_and_saveexec_b64 s[44:45], vcc")
        o("    ds_write_b128 v%d, v[28:31] offset:%d" % (25 + off // 65536, off % 65536))
        o("    s_mov_b64 exec, s[44:45]")
o("    s_cmp_lt_u32 s40, 12")
o("    s_cbranch_scc1 K2_lowaves")
zero_big()
o("    s_cmp_eq_u32 s40, 13")
o("    s_cbranch_scc1 K2_cg_build")
o("    s_cmp_lg_u32 s40, 14")
o("    s_cbranch_scc1 K2_S_done")
o("    s_waitcnt vmcnt(%d)" % NPF2)
for i in range(4):
    for k in range(4):
        o("    v_lshlrev_b32 v%d, 16, v%d" % (112 + k, 96 + 4 * k + i))
        o("    v_and_b32 v%d, 0xffff0000, v%d" % (116 + k, 96 + 4 * k + i))
    o("    ds_write_b128 v%d, v[112:115] offset:%d" % (vLaneOff, L_WR + 256 * (2 * i)))
    o("    ds_write_b128 v%d, v[116:119] offset:%d" % (vLaneOff, L_WR + 256 * (2 * i + 1)))
o("    s_branch K2_S_done")
o("K2_cg_build:")
o("    v_and_b32 v19, 1, v12")
o("    v_lshlrev_b32 v19, 4, v19             ; shift 0/16")
o("    v_cmp_gt_u32 vcc, 2, v12")
o("    s_waitcnt vmcnt(%d)" % NPF2)
for u in range(4):
    o("    v_lshlrev_b32 v20, v19, v%d" % (96 + u))
    o("    v_cndmask_b32 v%d, 0, v20, vcc" % (112 + 2 * u))
    o("    v_xor_b32 v%d, v20, v%d" % (113 + 2 * u, 112 + 2 * u))
    o("    ds_write_b64 v%d, v[%d:%d] offset:%d" % (vL8, 112 + 2 * u, 113 + 2 * u, L_CG + 512 * u))
o("    s_branch K2_S_done")
o("K2_lowaves:")
o("    v_cmp_gt_u32 vcc, %d, v14" % NCHUNK)
o("    s_mov_b32 s47, %d" % (CHUNK * REC_BYTES))
o("    s_waitcnt vmcnt(%d)" % (1 if TLB & 1 else 0))
if STAMP:
    o("    s_memrealtime s[72:73]")
    o("    s_waitcnt lgkmcnt(0)")
o("    v_lshrrev_b32 v18, 16, v16            ; cnt")
o("    v_cndmask_b32 v18, 0, v18, vcc")
o("    v_and_b32 v19, 0xffff, v16            ; start")
o("    v_add_u32 v19, v19, v17")
o("    v_mul_u32_u24 v19, %d, v19" % REC_BYTES)
o("    v_mad_u32_u24 v19, v14, s47, v19")
for m in range(MM):
    o("    v_cmp_lt_u32 vcc, v17, v18")
    o("    s_and_b64 exec, exec, vcc")
    o("    s_cbranch_execz K2_loads_done0")
    o("    s_mov_b64 s[%d:%d], exec" % (48 + 2 * m, 49 + 2 * m))
    o("    global_load_dwordx4 v[%d:%d], v19, s[22:23] offset:%d%s" % (vREC + 8 * m, vREC + 8 * m + 3, m * TPC * REC_BYTES, NT2))
    o("    global_load_dword v%d, v19, s[22:23] offset:%d%s" % (vMETA + m, m * TPC * REC_BYTES + 16, NT2))
    o("    v_add_u32 v17, %d, v17" % TPC)
o("    v_cmp_lt_u32 vcc, v17, v18")
o("    s_mov_b64 s[64:65], vcc")
o("K2_loads_done0:")
o("    s_mov_b64 exec, -1")
if PF0 == 1:
    o("    s_lshr_b32 s3, s2, 3")
    o("    s_mul_i32 s3, s3, 625")
    o("    s_and_b32 s44, s2, 7")
    o("    s_mul_i32 s44, s44, 2500")
    o("    s_add_u32 s3, s3, s44")
    o("    v_min_u32 v24, 624, v0")
    o("    v_add_u32 v24, s3, v24")
    o("    v_subrev_u32 v25, 20000, v24")
    o("    v_min_u32 v24, v24, v25")
if PF0 == 2:
    o("    s_mul_i32 s3, s2, 79")
    o("    v_min_u32 v24, 78, v0")
    o("    v_add_u32 v24, s3, v24")
if PF0:
    o("    v_lshrrev_b32 v25, 1, v24")
    o("    v_and_b32 v24, 1, v24")
    o("    v_lshlrev_b32 v24, 7, v24")
    o("    v_lshl_add_u32 v24, v25, 10, v24")
    o("    buffer_load_dword v120, v24, s[24:27], 0 offen")
zero_big()
if PF0:
    o("    s_cmp_eq_u64 s[64:65], 0")
    o("    s_cbranch_scc1 K2_noflag0")
    o("    v_mov_b32 v19, 0")
    o("    ds_write_b32 v19, v%d offset:%d" % (vOne, L_FLAG))
    o("K2_noflag0:")
    o("    s_waitcnt vmcnt(1)")
    o("    s_branch K2_recs_ready")
else:
    o("    s_branch K2_loads_done")

o("K2_round:")
round_init()
o("    s_lshl_b32 s3, s42, 10")
o("    v_add_u32 v14, s3, v0                 ; edge")
o("    v_cmp_gt_u32 vcc, %d, v14" % E)
o("    v_min_u32 v14, %d, v14" % (E - 1))
o("    v_lshlrev_b32 v15, 2, v14")
o("    v_lshlrev_b32 v16, 3, v14")
o("    global_load_dword v17, v15, s[8:9]")
o("    global_load_dword v18, v15, s[6:7]")
o("    global_load_dwordx2 v[%d:%d], v16, s[10:11]" % (vREC, vREC + 1))
o("    global_load_dwordx2 v[%d:%d], v16, s[12:13]" % (vREC + 2, vREC + 3))
o("    s_waitcnt vmcnt(0) lgkmcnt(0)")
o("    s_barrier")
o("    v_and_b32 v19, 255, v17")
o("    v_cmp_eq_u32 s[46:47], s2, v19")
o("    v_lshrrev_b32 v17, 8, v17")
o("    v_lshl_or_b32 v%d, v17, 16, v18" % vMETA)
o("    s_and_b64 s[48:49], vcc, s[46:47]")

o("K2_loads_done:")
o("    s_cmp_eq_u64 s[64:65], 0")
o("    s_cbranch_scc1 K2_noflag")
o("    v_mov_b32 v19, 0")
o("    ds_write_b32 v19, v%d offset:%d" % (vOne, L_FLAG))
o("K2_noflag:")
o("    s_waitcnt vmcnt(0)")
o("K2_recs_ready:")
if STAMP:
    o("    s_memrealtime s[74:75]")
    o("    s_waitcnt lgkmcnt(0)")
for m in range(MM):
    o("    s_mov_b64 exec, s[%d:%d]" % (48 + 2 * m, 49 + 2 * m))
    o("    s_cbranch_execz K2_rank_done")
    o("    v_lshrrev_b32 v%d, 16, v%d" % (vCA + m, vMETA + m))
    o("    v_lshlrev_b32 v%d, 2, v%d" % (vCA + m, vCA + m))
    o("    ds_add_rtn_u32 v%d, v%d, v%d offset:%d" % (vRANK + m, vCA + m, vOne, L_CNT))
o("K2_rank_done:")
for m in range(MM):
    o("    s_mov_b64 exec, s[%d:%d]" % (48 + 2 * m, 49 + 2 * m))
    o("    s_cbranch_execz K2_S_done")
    r = vREC + 8 * m
    o("    v_lshlrev_b32 v8, 16, v%d" % r)
    o("    v_and_b32 v9, 0xffff0000, v%d" % r)
    o("    v_lshlrev_b32 v10, 16, v%d" % (r + 1))
    o("    v_and_b32 v11, 0xffff0000, v%d" % (r + 1))
    o("    v_lshlrev_b32 v12, 16, v%d" % (r + 2))
    o("    v_and_b32 v13, 0xffff0000, v%d" % (r + 2))
    o("    v_lshlrev_b32 v14, 16, v%d" % (r + 3))
    o("    v_and_b32 v15, 0xffff0000, v%d" % (r + 3))
    for v in range(4):
        o("    v_pk_mul_f32 v[28:29], v[12:13], v[%d:%d] op_sel:[0,%d] op_sel_hi:[1,%d]" % (8 + (v & 2), 9 + (v & 2), v & 1, v & 1))
        o("    v_pk_mul_f32 v[30:31], v[14:15], v[%d:%d] op_sel:[0,%d] op_sel_hi:[1,%d]" % (8 + (v & 2), 9 + (v & 2), v & 1, v & 1))
        o("    v_cvt_pk_bf16_f32 v%d, v28, v29" % (r + 2 * v))
        o("    v_cvt_pk_bf16_f32 v%d, v30, v31" % (r + 2 * v + 1))
    o("    v_and_b32 v%d, 0xffff, v%d" % (vMETA + m, vMETA + m))
    o("    v_lshlrev_b32 v%d, 10, v%d" % (vMETA + m, vMETA + m))
o("K2_S_done:")
o("    s_mov_b64 exec, -1")
spf(SPF // 100, "SP1")
def sp0(n0, n, tag):
    if n == 0: return
    o("    s_cmp_lt_u32 s40, 12")
    o("    s_cbranch_scc1 %s_e" % tag)
    o("    s_cmp_lg_u32 s41, 0")
    o("    s_cbranch_scc1 %s_e" % tag)
    o("    s_sub_u32 s66, s40, 12")
    o("    s_mul_i32 s66, s66, %d" % (80 * 1024))
    o("    s_add_u32 s66, s66, s68")
    o("    s_lshl_b32 s38, s69, 1")
    o("    s_add_u32 s38, s38, %d" % n0)
    o("    s_mov_b32 s39, %d" % n)
    o("%s_l:" % tag)
    o("    s_sub_u32 s36, s38, 80")
    o("    s_min_u32 s38, s38, s36")
    o("    s_lshl_b32 s36, s38, 10")
    o("    s_add_u32 s36, s36, s66")
    for sec in range(4):
        o("    s_load_dword s67, s[4:5], s36 offset:%d" % (sec * 64))
    o("    s_add_u32 s38, s38, 1")
    o("    s_sub_u32 s39, s39, 1")
    o("    s_cmp_lg_u32 s39, 0")
    o("    s_cbranch_scc1 %s_l" % tag)
    o("%s_e:" % tag)
sp0(0, SP0A, "SQ1")
o("    s_waitcnt lgkmcnt(0)")
o("    s_barrier")
stamp()
if B2T:
    o("    s_cmp_lt_u32 s40, 12")
    o("    s_cbranch_scc1 K2_b2t_e")
    o("    s_cmp_lg_u32 s41, 0")
    o("    s_cbranch_scc1 K2_b2t_e")
    if B2T & 1:
        o("    s_lshr_b32 s3, s2, 3")
        o("    s_mul_i32 s3, s3, 625")
        o("    s_sub_u32 s3, s3, 768")
        o("    v_add_u32 v24, s3, v0")
        o("    v_lshrrev_b32 v25, 1, v24")
        o("    v_and_b32 v24, 1, v24")
        o("    v_lshlrev_b32 v24, 7, v24")
        o("    v_lshl_add_u32 v24, v25, 10, v24")
        o("    buffer_load_dword v120, v24, s[24:27], 0 offen")
        if B2T & 4:
            o("    v_add_u32 v24, 0x20000, v24")
            o("    buffer_load_dword v121, v24, s[24:27], 0 offen")
    if B2T & 2:
        o("    s_lshl_b32 s3, s2, 8")
        o("    s_sub_u32 s3, s3, 768")
        o("    v_add_u32 v24, s3, v0")
        o("    s_mov_b32 s44, 43691")
        o("    v_mul_lo_u32 v25, v24, s44")
        o("    v_lshrrev_b32 v25, 18, v25            ; /6")
        o("    v_mul_u32_u24 v26, 6, v25")
        o("    v_sub_u32 v26, v24, v26")
        o("    v_lshlrev_b32 v26, 7, v26")
        o("    v_lshl_add_u32 v24, v25, 10, v26")
        o("    buffer_load_dword v124, v24, s[24:27], 0 offen offset:256")
    o("K2_b2t_e:")
o("    v_lshrrev_b32 v19, 1, v%d             ; lane*4" % vL8)
o("    ds_read_b32 v24, v19 offset:%d" % L_CNT)
o("    v_mov_b32 v20, 0")
o("    ds_read_b32 v21, v20 offset:%d" % L_FLAG)
o("    s_waitcnt lgkmcnt(0)")
o("    v_add_u32 v25, 31, v24")
o("    v_lshrrev_b32 v25, 5, v25             ; nks")
o("    v_lshl_or_b32 v26, v25, 16, v24       ; packed")
o("    v_mov_b32 v27, v26")
dpp_scan("v27")
o("    v_readlane_b32 s34, v27, 63")
o("    v_readfirstlane_b32 s35, v21")
o("    v_sub_u32 v27, v27, v26")
o("    ds_write_b32 v19, v27 offset:%d" % L_TABS)
o("    s_and_b32 s36, s34, 0xffff            ; total")
o("    s_lshr_b32 s34, s34, 16               ; nK")
o("    s_cmp_gt_u32 s36, %d" % CAP)
o("    s_cselect_b32 s36, 1, 0")
o("    s_or_b32 s35, s35, s36")
o("    s_cmp_eq_u32 s35, 0")
o("    s_cbranch_scc1 K2_ok")
o("    s_mov_b32 s41, 1")
o("    s_waitcnt lgkmcnt(0)")
o("    s_barrier")
o("    s_branch K2_round")
o("K2_ok:")
o("    v_and_b32 v20, 0xffff, v27")
o("    v_lshrrev_b32 v21, 16, v27")
o("    v_lshl_or_b32 v20, v21, 11, v20")
o("    v_lshl_or_b32 v%d, v24, 18, v20       ; node desc: Sstart | kstart<<11 | cnt<<18" % vND)
for m in range(MM):
    o("    s_mov_b64 exec, s[%d:%d]" % (48 + 2 * m, 49 + 2 * m))
    o("    s_cbranch_execz K2_tabs_done")
    o("    ds_read_b32 v%d, v%d offset:%d" % (vCA + m, vCA + m, L_TABS))
o("K2_tabs_done:")
o("    s_waitcnt lgkmcnt(0)")
for m in range(MM):
    o("    s_mov_b64 exec, s[%d:%d]" % (48 + 2 * m, 49 + 2 * m))
    o("    s_cbranch_execz K2_scatter_done")
    r = vREC + 8 * m
    rank = vRANK + m
    tb = vCA + m
    o("    v_and_b32 v25, 0xffff, v%d" % tb)
    o("    v_add_lshl_u32 v25, v25, v%d, 5" % rank)
    o("    ds_write_b128 v25, v[%d:%d] offset:%d" % (r, r + 3, L_S))
    o("    ds_write_b128 v25, v[%d:%d] offset:%d" % (r + 4, r + 7, L_S + 16))
    o("    v_lshrrev_b32 v26, 16, v%d" % tb)
    o("    v_lshrrev_b32 v27, 5, v%d" % rank)
    o("    v_add_lshl_u32 v26, v26, v27, 7")
    o("    v_and_b32 v27, 3, v%d" % rank)
    o("    v_lshl_add_u32 v26, v27, 5, v26")
    o("    v_and_or_b32 v26, v%d, 28, v26" % rank)
    o("    ds_write_b32 v26, v%d offset:%d" % (vMETA + m, L_SOFF))
o("K2_scatter_done:")
o("    s_mov_b64 exec, -1")
spf((SPF // 10) % 10, "SP2")
sp0(SP0A, SP0B, "SQ2")
o("    s_waitcnt lgkmcnt(0)")
o("    s_barrier")
stamp()
if STAMP:
    o("    s_memtime s[76:77]")
    o("    s_waitcnt lgkmcnt(0)")

NITEM = 160
uid = [0]
def dequeue():
    o("    s_mov_b64 exec, 1")
    o("    ds_add_rtn_u32 v%d, v%d, v%d offset:%d" % (vQ, vLaneOff, vOne, L_Q))
    o("    s_mov_b64 exec, -1")

def gen_next(first_id_in_s38=False):
    t = "G%d" % uid[0]; uid[0] += 1
    if first_id_in_s38:
        o("    s_branch %s_dec" % t)
    else:
        o("    s_cmp_eq_u32 s62, 0")
        o("    s_cbranch_scc1 %s_retry" % t)
        o("    s_add_u32 s63, s63, 1")
        o("    s_add_u32 s64, s64, 1024")
        o("    s_mov_b32 s65, 0")
        o("    s_branch %s_cnt" % t)
    o("%s_retry:" % t)
    if SYNCQ:
        if FSW:
            o("    s_cmp_ge_u32 s71, s70")
            o("    s_mov_b32 s38, 1000")
            o("    s_cbranch_scc1 %s_dec" % t)
        dequeue()
        o("    s_waitcnt lgkmcnt(0)")
        o("    v_readfirstlane_b32 s38, v%d" % vQ)
        if FSW:
            o("    s_mov_b32 s71, s38")
    else:
        o("    s_waitcnt lgkmcnt(0)")
        o("    v_readfirstlane_b32 s38, v%d" % vQ)
        if FSW:
            o("    s_cmp_ge_u32 s38, s70")
            o("    s_cbranch_scc0 %s_dq" % t)
            o("    v_mov_b32 v%d, 1000" % vQ)
            o("    s_branch %s_dec" % t)
            o("%s_dq:" % t)
        dequeue()
    o("%s_dec:" % t)
    o("    s_cmp_lt_u32 s38, %d" % NITEM)
    o("    s_cbranch_scc1 %s_valid" % t)
    o("    s_mov_b32 s65, 0")
    o("    s_mov_b32 s62, 0")
    o("    s_branch %s_end" % t)
    o("%s_valid:" % t)
    if SKEW:
        o("    s_lshr_b32 s39, s38, 2")
        o("    v_readlane_b32 s39, v%d, s39" % vT)
        o("    s_lshl_b32 s60, s38, 3")
        o("    s_lshr_b32 s39, s39, s60")
        o("    s_bfe_u32 s60, s39, 0x20006           ; u")
        o("    s_and_b32 s61, s39, 63                ; node")
    else:
        o("    s_mul_i32 s60, s38, 1639")
        o("    s_lshr_b32 s60, s60, 16               ; u = id / 40")
        o("    s_mul_i32 s61, s60, 40")
        o("    s_sub_u32 s61, s38, s61               ; node")
        if ROT:
            o("    s_lshr_b32 s39, s2, %d" % (ROT - 1))
            o("    s_add_u32 s60, s60, s39")
            o("    s_and_b32 s60, s60, 3")
    if PFM:
        o("    s_andn2_b32 s39, s61, 1")
        o("    s_cmp_lg_u32 s39, %d" % (PFM & ~1))
        o("    s_cbranch_scc1 %s_nopf" % t)
        o("    s_and_b32 s39, s61, 1")
        o("    s_mul_i32 s39, s39, 40")
        o("    s_mul_i32 s36, s2, 80")
        o("    s_add_u32 s39, s39, s36")
        o("    v_lshrrev_b32 v0, 3, v%d" % vL8)
        o("    v_min_u32 v0, 39, v0")
        o("    v_add_u32 v0, s39, v0")
        o("    v_lshrrev_b32 v%d, 1, v0" % vCG)
        o("    v_and_b32 v0, 1, v0")
        o("    v_lshlrev_b32 v0, 7, v0")
        o("    v_lshl_add_u32 v0, v%d, 10, v0" % vCG)
        o("    s_lshl_b32 s36, s60, 8")
        o("    s_cmp_eq_u32 s60, 3")
        o("    s_cbranch_scc1 %s_nopf" % t)
        o("    buffer_load_dword v%d, v0, s[24:27], s36 offen offset:256" % vT)
        o("%s_nopf:" % t)
    o("    v_readlane_b32 s39, v%d, s61" % vND)
    o("    s_lshr_b32 s62, s39, 18               ; cnt")
    if DF:
        o("    s_cbranch_scc1 %s_ne" % t)
        o("    s_andn2_b32 s39, s61, 3")
        o("    v_mov_b32 v0, s39")
        o("    s_mov_b64 exec, 1")
        o("    ds_add_u32 v0, v%d offset:%d" % (vOne, L_TC))
        o("    s_mov_b64 exec, -1")
        o("    s_branch %s_retry" % t)
        o("%s_ne:" % t)
    else:
        o("    s_cbranch_scc0 %s_retry" % t)
    o("    s_bfe_u32 s63, s39, 0x7000b           ; kstart")
    o("    s_and_b32 s64, s39, 0x7ff")
    o("    s_lshl_b32 s64, s64, 5")
    o("    s_mov_b32 s65, 16")
    o("%s_cnt:" % t)
    o("    s_min_u32 s39, s62, 32")
    o("    s_sub_u32 s62, s62, s39")
    o("    s_add_u32 s39, s39, 3")
    o("    s_lshr_b32 s39, s39, 2")
    o("    s_or_b32 s65, s65, s39")
    o("    s_cmp_eq_u32 s62, 0")
    o("    s_cselect_b32 s39, 32, 0")
    o("    s_or_b32 s65, s65, s39")
    o("    s_lshl_b32 s39, s63, 7")
    o("    v_add_u32 v0, s39, v%d" % vSoffC)
    o("    ds_read_b128 v[%d:%d], v0 offset:%d" % (vA, vA + 3, L_SOFF))
    o("    ds_read_b128 v[%d:%d], v0 offset:%d" % (vA + 4, vA + 7, L_SOFF + 16))
    o("%s_end:" % t)

def issue_loads(b):
    t = "L%d" % uid[0]; uid[0] += 1
    o("    s_lshl_b32 s37, s60, 8")
    if "--u0" in opts: o("    s_mov_b32 s37, 0")
    o("    s_and_b32 s39, s65, 15")
    o("    s_cbranch_scc0 %s_e" % t)
    for j in range(8):
        o("    v_add_u32 v%d, v%d, v%d" % (vA + j, vA + j, vLaneOff))
        if j < 7:
            o("    s_cmp_eq_u32 s39, %d" % (j + 1))
        o("    buffer_load_dwordx4 v[%d:%d], v%d, s[24:27], s37 offen" % (vRB[b] + 4 * j, vRB[b] + 4 * j + 3, vA + j))
        if j < 7:
            o("    s_cbranch_scc1 %s_e" % t)
    o("%s_e:" % t)

def gen_to_slot(b):
    sb = 48 + 4 * b
    o("    s_mov_b64 s[%d:%d], s[60:61]" % (sb, sb + 1))
    o("    s_mov_b64 s[%d:%d], s[64:65]" % (sb + 2, sb + 3))

def perms(b, j, pbase, npair):
    i = j >> 1
    sel = "s32" if (j & 1) == 0 else "s33"
    for jj in range(npair):
        a = vRB[b] + 4 * (2 * jj) + i
        c = vRB[b] + 4 * (2 * jj + 1) + i
        o("    v_perm_b32 v%d, v%d, v%d, %s" % (pbase + jj, c, a, sel))
def mm(b, acc, npair):
    if "--nomm" in opts: return
    sb = 48 + 4 * b
    t = "Z%d" % uid[0]; uid[0] += 1
    o("    s_bitcmp0_b32 s%d, 0" % (sb + 3))
    o("    s_cbranch_scc1 %s" % t)
    for i in range(4):
        o("    v_mov_b32 v%d, 0" % (vRB[b] + 4 * (2 * npair - 1) + i))
    o("%s:" % t)
    k16 = npair <= 2
    if npair in (1, 3):
        o("    v_mov_b32 v%d, 0" % (vP + npair))
        o("    v_mov_b32 v%d, 0" % (vP + 4 + npair))
    perms(b, 0, vP, npair)
    for j in range(8):
        if j + 1 < 8:
            perms(b, j + 1, vP + 4 * ((j + 1) & 1), npair)
        if npair == 1 or j == 7:
            o("    s_nop 0")
        pb = vP + 4 * (j & 1)
        c = "v[%d:%d]" % (vD + 4 * j, vD + 4 * j + 3) if acc else "0"
        if k16:
            o("    v_mfma_f32_16x16x16_bf16 v[%d:%d], v[%d:%d], v[%d:%d], %s" % (vD + 4 * j, vD + 4 * j + 3, vS, vS + 1, pb, pb + 1, c))
        else:
            o("    v_mfma_f32_16x16x32_bf16 v[%d:%d], v[%d:%d], v[%d:%d], %s" % (vD + 4 * j, vD + 4 * j + 3, vS, vS + 3, pb, pb + 3, c))

def mm_all(b):
    sb = 48 + 4 * b
    o("    s_and_b32 s39, s%d, 15" % (sb + 3))
    o("    s_bitcmp0_b32 s%d, 4" % (sb + 3))
    o("    s_cbranch_scc1 M%d_acc" % b)
    for acc in (False, True):
        a = "a" if acc else "f"
        if acc: o("M%d_acc:" % b)
        o("    s_cmp_gt_u32 s39, 6")
        o("    s_cbranch_scc1 M%d%s4" % (b, a))
        o("    s_cmp_gt_u32 s39, 4")
        o("    s_cbranch_scc1 M%d%s3" % (b, a))
        o("    s_cmp_gt_u32 s39, 2")
        o("    s_cbranch_scc1 M%d%s2" % (b, a))
        for npair in (1, 2, 3, 4):
            o("M%d%s%d:" % (b, a, npair))
            mm(b, acc, npair)
            if not (acc and npair == 4):
                o("    s_branch M%d_done" % b)
    o("M%d_done:" % b)

def vm_wait(other):
    if NBUF == 1:
        o("    s_waitcnt vmcnt(0) lgkmcnt(0)")
        return
    t = "W%d" % uid[0]; uid[0] += 1
    sb = 48 + 4 * other
    o("    s_and_b32 s39, s%d, 15" % (sb + 3))
    o("    s_cmp_eq_u32 s39, 8")
    o("    s_cbranch_scc1 %s_8" % t)
    o("    s_cmp_ge_u32 s39, 4")
    o("    s_cbranch_scc1 %s_hi" % t)
    o("    s_cmp_ge_u32 s39, 2")
    o("    s_cbranch_scc1 %s_2" % t)
    o("    s_waitcnt vmcnt(0)")
    o("%s_2:" % t)
    o("    s_waitcnt vmcnt(2)")
    o("%s_hi:" % t)
    o("    s_cmp_ge_u32 s39, 6")
    o("    s_cbranch_scc1 %s_6" % t)
    o("    s_waitcnt vmcnt(4)")
    o("%s_6:" % t)
    o("    s_waitcnt vmcnt(6)")
    o("%s_8:" % t)
    o("    s_waitcnt vmcnt(8) lgkmcnt(0)")

def tile_fma(j, w):
    d = vD + 4 * j
    o("    v_mul_f32 v%d, v%d, v%d" % (d, d, w))
    for k in range(1, 4):
        o("    v_fmac_f32 v%d, v%d, v%d" % (d, d + k, w + k))
def wr_read(j, w):
    o("    ds_read_b128 v[%d:%d], v%d offset:%d" % (w, w + 3, vLaneOff, L_WR + 256 * j))
def lock_try():
    o("    s_mov_b64 exec, 1")
    o("    ds_wrxchg_rtn_b32 v%d, v%d, v%d offset:%d" % (vS + 2, vS, vOne, L_LOCK))
    o("    s_mov_b64 exec, -1")
    o("    ds_read_b128 v[%d:%d], v%d" % (vP, vP + 3, vS + 1))
    o("    ds_read_b128 v[%d:%d], v%d offset:1024" % (vP + 4, vP + 7, vS + 1))

def post(b):
    if "--nopost" in opts: return
    sb = 48 + 4 * b
    t = "P%d" % b
    if NBUF == 2:
        wr_read(0, vP); wr_read(1, vP + 4); wr_read(2, vA); wr_read(3, vA + 4)
    o("    s_lshl_b32 s38, s%d, 9" % sb)
    o("    v_add_u32 v0, s38, v%d" % vL8)
    o("    ds_read_b64 v[%d:%d], v0 offset:%d" % (vCG, vCG + 1, L_CG))
    o("    s_lshl_b32 s38, s%d, 2" % (sb + 1))
    o("    v_mov_b32 v%d, s38                    ; lock addr" % vS)
    o("    s_and_b32 s38, s%d, 3" % (sb + 1))
    o("    s_lshl_b32 s38, s38, 6")
    o("    s_lshl_b32 s39, s%d, 11" % (sb + 1))
    o("    s_add_u32 s39, s39, %d" % L_AGG)
    o("    s_or_b32 s38, s38, s39")
    o("    v_xor_b32 v%d, s38, v%d               ; agg addr" % (vS + 1, vAggC))
    o("    v_mov_b32 v%d, 0" % (vS + 3))
    if NBUF == 2:
        o("    s_waitcnt lgkmcnt(4)")
        tile_fma(0, vP)
        o("    s_waitcnt lgkmcnt(3)")
        tile_fma(1, vP + 4)
        wr_read(4, vP); wr_read(5, vP + 4)
        o("    s_waitcnt lgkmcnt(4)")
        tile_fma(2, vA)
        o("    s_waitcnt lgkmcnt(3)")
        tile_fma(3, vA + 4)
        wr_read(6, vA); wr_read(7, vA + 4)
        o("    v_cvt_pk_bf16_f32 v%d, v%d, v%d" % (vD + 2, vD, vD + 4))
        o("    v_cvt_pk_bf16_f32 v%d, v%d, v%d" % (vD + 3, vD + 8, vD + 12))
        o("    s_waitcnt lgkmcnt(3)")
        tile_fma(4, vP)
        o("    s_waitcnt lgkmcnt(2)")
        tile_fma(5, vP + 4)
        lock_try()
        o("    s_waitcnt lgkmcnt(4)")
        tile_fma(6, vA)
        o("    s_waitcnt lgkmcnt(3)")
        tile_fma(7, vA + 4)
    else:
        for j in range(4):
            tile_fma(j, vWR + 4 * j)
        o("    v_cvt_pk_bf16_f32 v%d, v%d, v%d" % (vD + 2, vD, vD + 4))
        o("    v_cvt_pk_bf16_f32 v%d, v%d, v%d" % (vD + 3, vD + 8, vD + 12))
        lock_try()
        for j in range(4, 8):
            tile_fma(j, vWR + 4 * j)
    o("    v_cvt_pk_bf16_f32 v%d, v%d, v%d" % (vD + 6, vD + 16, vD + 20))
    o("    v_cvt_pk_bf16_f32 v%d, v%d, v%d" % (vD + 7, vD + 24, vD + 28))
    o("%s_chk:" % t)
    o("    s_waitcnt lgkmcnt(0)")
    o("    v_readfirstlane_b32 s38, v%d" % (vS + 2))
    o("    s_cmp_eq_u32 s38, 0")
    o("    s_cbranch_scc1 %s_got" % t)
    lock_try()
    o("    s_branch %s_chk" % t)
    o("%s_got:" % t)
    o("    v_mfma_f32_16x16x16_bf16 v[%d:%d], v[%d:%d], v[%d:%d], v[%d:%d]" % (vP, vP + 3, vCG, vCG + 1, vD + 2, vD + 3, vP, vP + 3))
    o("    v_mfma_f32_16x16x16_bf16 v[%d:%d], v[%d:%d], v[%d:%d], v[%d:%d]" % (vP + 4, vP + 7, vCG, vCG + 1, vD + 6, vD + 7, vP + 4, vP + 7))
    o("    s_nop 7")
    o("    ds_write_b128 v%d, v[%d:%d]" % (vS + 1, vP, vP + 3))
    o("    ds_write_b128 v%d, v[%d:%d] offset:1024" % (vS + 1, vP + 4, vP + 7))
    o("    s_mov_b64 exec, 1")
    o("    ds_write_b32 v%d, v%d offset:%d" % (vS, vS + 3, L_LOCK))
    if DF:
        o("    s_andn2_b32 s38, s%d, 3" % (sb + 1))
        o("    v_mov_b32 v%d, s38" % (vS + 2))
        o("    ds_add_u32 v%d, v%d offset:%d" % (vS + 2, vOne, L_TC))
    o("    s_mov_b64 exec, -1")

spf(SPF % 10, "SP3")
if DPW:
    per = 320 // DPW
    assert DPN <= per
    o("    s_cmp_lt_u32 s40, %d" % (16 - DPW))
    o("    s_cbranch_scc1 DP_e")
    o("    s_cmp_lg_u32 s41, 0")
    o("    s_cbranch_scc1 DP_e")
    o("    s_sub_u32 s66, s40, %d" % (16 - DPW))
    o("    s_mul_i32 s66, s66, %d" % (per * 1024))
    o("    s_add_u32 s66, s66, s68")
    o("    v_mov_b32 v0, 0")
    for u in range(1, 4):
        if u > 1:
            o("DP_g%d:" % u)
            o("    ds_read_b32 v%d, v0 offset:%d" % (vQ, L_Q))
            o("    s_waitcnt lgkmcnt(0)")
            o("    v_readfirstlane_b32 s38, v%d" % vQ)
            o("    s_cmp_ge_u32 s38, %d" % (40 * (u - 1) + DPG + 16))
            o("    s_cbranch_scc1 DP_go%d" % u)
            o("    s_sleep 4")
            o("    s_branch DP_g%d" % u)
            o("DP_go%d:" % u)
        o("    s_and_b32 s38, s2, 7")
        o("    s_mul_i32 s38, s38, %d" % (DPN // 8))
        o("    s_mov_b32 s39, %d" % DPN)
        o("DP_l%d:" % u)
        o("    s_sub_u32 s36, s38, %d" % DPN)
        o("    s_min_u32 s38, s38, s36")
        o("    s_lshl_b32 s36, s38, 10")
        o("    s_add_u32 s36, s36, s66")
        for sec in range(4):
            o("    s_load_dword s67, s[4:5], s36 offset:%d" % (u * 256 + sec * 64))
        o("    s_add_u32 s38, s38, 1")
        o("    s_sub_u32 s39, s39, 1")
        o("    s_cmp_lg_u32 s39, 0")
        o("    s_cbranch_scc1 DP_l%d" % u)
    o("    s_mov_b64 exec, 1")
    o("    ds_add_rtn_u32 v%d, v%d, v%d offset:%d" % (vQ, vLaneOff, vOne, L_Q))
    o("    s_mov_b64 exec, -1")
    o("    s_waitcnt lgkmcnt(0)")
    o("    v_readfirstlane_b32 s38, v%d" % vQ)
    o("    s_branch DP_join")
    o("DP_e:")
o("    s_mov_b32 s38, s40")
o("    s_mov_b32 s71, 0")
if DPW:
    o("    s_cmp_lt_u32 s40, %d" % (16 - DPW))
    o("    s_cbranch_scc1 DP_join")
    o("    s_mov_b64 exec, 1")
    o("    ds_add_rtn_u32 v%d, v%d, v%d offset:%d" % (vQ, vLaneOff, vOne, L_Q))
    o("    s_mov_b64 exec, -1")
    o("    s_waitcnt lgkmcnt(0)")
    o("    v_readfirstlane_b32 s38, v%d" % vQ)
    o("DP_join:")
if not SYNCQ: dequeue()
o("    s_mov_b32 s60, 0")
gen_next(True)
o("    s_waitcnt lgkmcnt(0)")
issue_loads(0)
gen_to_slot(0)
if NBUF == 2:
    gen_next()
    o("    s_waitcnt lgkmcnt(0)")
    issue_loads(1)
    gen_to_slot(1)
else:
    for j in range(8):
        wr_read(j, vWR + 4 * j)
o("K2_loop:")
for b in range(NBUF):
    sb = 48 + 4 * b
    o("    s_and_b32 s39, s%d, 15" % (sb + 3))
    o("    s_cbranch_scc0 K2_main_done")
    o("    v_add_u32 v0, s%d, v%d" % (sb + 2, vSC))
    o("    ds_read_b64_tr_b16 v[%d:%d], v0 offset:%d" % (vS, vS + 1, L_S))
    o("    ds_read_b64_tr_b16 v[%d:%d], v0 offset:%d" % (vS + 2, vS + 3, L_S + 512))
    if LATE:
        vm_wait(1 - b)
        mm_all(b)
        gen_next()
        o("    s_waitcnt lgkmcnt(0)")
    else:
        gen_next()
        if SPM:
            o("    s_cmp_ge_u32 s%d, 3" % sb)
            o("    s_cbranch_scc1 SPM_e")
            o("    s_add_u32 s66, s%d, s69" % (sb + 1))
            o("    s_sub_u32 s39, s66, 40")
            o("    s_min_u32 s66, s66, s39")
            o("    s_lshl_b32 s39, s%d, 8" % sb)
            o("    s_add_u32 s39, s39, s68")
            o("    s_bitcmp0_b32 s%d, 4" % (sb + 3))
            o("    s_cbranch_scc1 SPM_2")
            o("    s_mul_i32 s66, s66, %d" % (SPM * 1024))
            o("    s_add_u32 s66, s66, s39")
            for n in range(SPM):
                for sec in range(4):
                    o("    s_load_dword s67, s[4:5], s66 offset:%d" % (n * 1024 + 256 + sec * 64))
            o("    s_branch SPM_e")
            o("SPM_2:")
            if SPM2:
                assert 40 * (SPM + SPM2) <= 320
                o("    s_mul_i32 s66, s66, %d" % (SPM2 * 1024))
                o("    s_add_u32 s66, s66, s39")
                for n in range(SPM2):
                    for sec in range(4):
                        o("    s_load_dword s67, s[4:5], s66 offset:%d" % ((40 * SPM + n) * 1024 + 256 + sec * 64))
            o("SPM_e:")
        vm_wait(1 - b)
        mm_all(b)
    issue_loads(b)
    o("    s_bitcmp0_b32 s%d, 5" % (sb + 3))
    o("    s_cbranch_scc1 K2_cont%d" % b)
    post(b)
    o("K2_cont%d:" % b)
    gen_to_slot(b)
o("    s_branch K2_loop")
o("K2_main_done:")
o("    s_cmp_eq_u32 s41, 0")
o("    s_cbranch_scc1 K2_final")
o("    s_add_u32 s42, s42, 1")
o("    s_cmp_ge_u32 s42, %d" % NSLOW)
o("    s_cbranch_scc1 K2_final")
o("    s_waitcnt vmcnt(0) lgkmcnt(0)")
o("    s_barrier")
o("    s_lshl_b32 s39, s40, 6")
o("    v_lshrrev_b32 v0, 3, v%d" % vL8)
o("    v_add_u32 v0, s39, v0")
o("    s_branch K2_round")

o("K2_final:")
stamp()
if STAMP:
    o("    s_memtime s[78:79]")
    o("    s_waitcnt lgkmcnt(0)")
    o("    s_sub_u32 s78, s78, s76")
vW = 32
vB = 64
vC = 96
if FSW:
    o("    s_cmp_lt_u32 s40, 12")
    o("    s_cbranch_scc1 K2_fin_end")
o("    s_and_b32 s44, s40, 3                 ; dp")
o("    s_lshr_b32 s45, s40, 2                ; rg")
if LAZYW:
    o("    s_lshl_b32 s39, s44, 2")
    o("    v_mov_b32 v8, s39")
    o("    ds_read_b32 v9, v8 offset:%d" % L_FQ)
    o("    s_waitcnt lgkmcnt(0)")
    o("    v_readfirstlane_b32 s39, v9")
    o("    s_cmp_ge_u32 s39, %d" % LAZYW)
    o("    s_cbranch_scc1 K2_fin_end")
o("    s_lshl_b32 s39, s44, 13")
o("    s_add_u32 s39, s39, 0x%x" % WS_WIMG)
o("    v_lshlrev_b32 v8, 1, v%d              ; lane*16" % vL8)
o("    v_add_u32 v8, s39, v8")
o("    v_add_u32 v9, 0x1000, v8")
o("    s_waitcnt vmcnt(0)")
for ts in range(8):
    base = "v8" if ts < 4 else "v9"
    o("    global_load_dwordx4 v[%d:%d], %s, s[22:23] offset:%d" % (vW + 4 * ts, vW + 4 * ts + 3, base, (ts & 3) * 1024))
o("    v_lshrrev_b32 v10, 3, v%d             ; lane" % vL8)
o("    v_bfe_u32 v11, v10, 2, 2              ; nl")
o("    v_and_b32 v12, 3, v10                 ; w")
o("    v_lshrrev_b32 v17, 4, v10             ; q")
o("    v_and_b32 v13, 15, v10")
o("    v_xor_b32 v13, v13, v17               ; q ^ col")
o("    v_lshlrev_b32 v15, 11, v11")
o("    v_lshl_add_u32 v15, v12, 8, v15")
o("    v_lshl_add_u32 v15, v13, 4, v15")
o("    v_lshlrev_b32 v16, 18, v11")
o("    v_lshl_add_u32 v16, v12, 8, v16")
o("    v_lshl_add_u32 v16, v17, 4, v16")
o("    s_lshl_b32 s39, s2, 10")
o("    s_lshl_b32 s46, s44, 6")
o("    s_add_u32 s39, s39, s46")
o("    v_add_u32 v16, s39, v16")
if DF:
    o("    s_lshl_b32 s39, s44, 2")
    o("    v_mov_b32 v8, s39")
    o("    v_mov_b32 v14, 1")
    o("    s_mov_b64 exec, 1")
    o("    ds_add_rtn_u32 v9, v8, v14 offset:%d" % L_FQ)
    o("    s_mov_b64 exec, -1")
    stamp()
    o("    s_waitcnt vmcnt(0)")
    o("K2_fin_loop:")
    o("    s_waitcnt lgkmcnt(0)")
    o("    v_readfirstlane_b32 s45, v9")
    o("    s_cmp_ge_u32 s45, 10")
    o("    s_cbranch_scc1 K2_fin_end")
    o("    s_lshl_b32 s39, s45, 2")
    o("    v_mov_b32 v10, s39")
    o("K2_fin_wait:")
    o("    ds_read_b32 v11, v10 offset:%d" % L_TC)
    o("    s_waitcnt lgkmcnt(0)")
    o("    v_readfirstlane_b32 s39, v11")
    o("    s_cmp_ge_u32 s39, 16")
    o("    s_cbranch_scc1 K2_fin_go")
    o("    s_sleep 2")
    o("    s_branch K2_fin_wait")
    o("K2_fin_go:")
else:
    o("    s_waitcnt lgkmcnt(0)")
    o("    s_barrier")
    stamp()
    o("    s_waitcnt vmcnt(0)")
    o("K2_fin_loop:")
o("    s_lshl_b32 s39, s45, 13               ; rt*8192")
o("    s_add_u32 s39, s39, %d" % L_AGG)
o("    v_add_u32 v18, s39, v15")
for s in range(4):
    if s:
        o("    v_xor_b32 v19, %d, v18" % (64 * s))
    a = "v19" if s else "v18"
    o("    ds_read_b128 v[%d:%d], %s" % (vB + 8 * s, vB + 8 * s + 3, a))
    o("    ds_read_b128 v[%d:%d], %s offset:1024" % (vB + 8 * s + 4, vB + 8 * s + 7, a))
if DF:
    o("    s_mov_b64 exec, 1")
    o("    ds_add_rtn_u32 v9, v8, v14 offset:%d" % L_FQ)
    o("    s_mov_b64 exec, -1")
for s in range(4):
    o("    s_waitcnt lgkmcnt(%d)" % (6 - 2 * s + (1 if DF else 0)))
    for p in range(4):
        o("    v_cvt_pk_bf16_f32 v%d, v%d, v%d" % (vC + 4 * s + p, vB + 8 * s + 2 * p, vB + 8 * s + 2 * p + 1))
o("    s_nop 1")
for s in range(4):
    for t in range(2):
        a = vW + 4 * (t * 4 + s)
        acc = 20 + 4 * t
        c = "0" if s == 0 else "v[%d:%d]" % (acc, acc + 3)
        o("    v_mfma_f32_16x16x32_bf16 v[%d:%d], v[%d:%d], v[%d:%d], %s" % (acc, acc + 3, a, a + 3, vC + 4 * s, vC + 4 * s + 3, c))
o("    s_lshl_b32 s39, s45, 20               ; rt*4*256*1024")
o("    s_nop 7")
for p in range(4):
    o("    v_cvt_pk_bf16_f32 v%d, v%d, v%d" % (28 + p, 20 + 2 * p, 21 + 2 * p))
o("    buffer_store_dwordx4 v[28:31], v16, s[28:31], s39 offen" + OST)
if DF:
    o("    s_branch K2_fin_loop")
    o("K2_fin_end:")
else:
    o("    s_add_u32 s45, s45, 4")
    o("    s_cmp_lt_u32 s45, 10")
    o("    s_cbranch_scc1 K2_fin_loop")
if STAMP:
    stamp()
    o("    s_waitcnt vmcnt(0)")
    stamp()
    o("    s_lshl_b32 s39, s2, 4")
    o("    s_add_u32 s39, s39, s40")
    o("    s_lshl_b32 s39, s39, 6")
    o("    s_add_u32 s39, s39, 0x8000000")
    o("    v_mov_b32 v1, s39")
    for i in range(nstamp[0]):
        o("    v_mov_b32 v2, s%d" % (84 + 2 * i))
        o("    global_store_dword v1, v2, s[22:23] offset:%d" % (4 * i))
    o("    v_mov_b32 v2, s72")
    o("    global_store_dword v1, v2, s[22:23] offset:%d" % (4 * 11))
    o("    v_mov_b32 v2, s74")
    o("    global_store_dword v1, v2, s[22:23] offset:%d" % (4 * 12))
    o("    v_mov_b32 v2, s78")
    o("    global_store_dword v1, v2, s[22:23] offset:%d" % (4 * 13))
    o("    v_mov_b32 v2, s41")
    o("    global_store_dword v1, v2, s[22:23] offset:%d" % (4 * 14))
    o("    v_mov_b32 v2, s34")
    o("    global_store_dword v1, v2, s[22:23] offset:%d" % (4 * 15))
o("K2_done:")
o("    s_endpgm")

o('.section .rodata,"a"')
for kn, vg, sg in (("gs_bin_kernel", 48, 64 if STAMP else 32), (KN, 128, 102 if STAMP else 72)):
    o(".p2align 6")
    o(".amdhsa_kernel %s" % kn)
    o("  .amdhsa_next_free_vgpr %d" % vg)
    o("  .amdhsa_next_free_sgpr %d" % sg)
    o("  .amdhsa_accum_offset %d" % vg)
    o("  .amdhsa_group_segment_fixed_size 0")
    o("  .amdhsa_kernarg_size 88")
    o("  .amdhsa_user_sgpr_count 2")
    o("  .amdhsa_user_sgpr_kernarg_segment_ptr 1")
    o("  .amdhsa_system_sgpr_workgroup_id_x 1")
    o("  .amdhsa_float_denorm_mode_32 3")
    o(".end_amdhsa_kernel")

path = args[0] if args else "cdna_kernels/%s.s" % NAME
open(path, "w").write("\n".join(out) + "\n")
print("wrote", path, "K2_LDS", K2_LDS, "K1_LDS", K1_LDS, "L_S", L_S, "L_AGG", L_AGG)
```

```python
import sys
NAME = "gather_scatter__tensor_product_equiv_mace__graph"
N = 10000
E = 320000
CHUNK = 1280
NCHUNK = E // CHUNK
REC_BYTES = 20
WS_TAB = 0x700000
WS_WIMG = 0x780000

opts = [a for a in sys.argv[1:] if a.startswith("--")]
args = [a for a in sys.argv[1:] if not a.startswith("--")]
STAMP = "--stamp" in opts
def optval(name, default):
    for a in opts:
        if a.startswith("--" + name + "="):
            return int(a.split("=")[1])
    return default
NBUF = optval("nbuf", 1)
TABSC1 = optval("tabsc1", 0)
K1T = optval("k1t", 0)
LB1 = optval("lb1", 0)
RPF = optval("rpf", 0)
KEYG = optval("keyg", 0)
NT2 = " nt" if optval("nt2", 0) else ""
K1ST = {0: "", 1: " sc1", 2: " nt"}[optval("k1st", 1)]
OST = {0: "", 1: " sc1", 2: " nt", 3: " sc1 nt"}[optval("ost", 1)]
K1D = optval("k1d", 0)
LAZYW = optval("lazyw", 0)
DF = optval("df", 1)
FSW = optval("fsw", 0)
ROT = optval("rot", 0)
DPW = optval("dpw", 0)
DPN = optval("dpn", 40)
DPG = optval("dpg", 8)
SPM = optval("spm", 0)
SPM2 = optval("spm2", 0)
SP0A = optval("sp0a", 0)
SP0B = optval("sp0b", 0)
B2T = optval("b2t", 0)
TLB = optval("tlb", 0)
SYNCQ = optval("syncq", 0)
LATE = optval("late", 0)
SKEW = optval("skew", 0)
PF1 = optval("pf1", 0)
PF2 = optval("pf2", 0)

out = []
def o(s=""):
    out.append(s)
nstamp = [0]
def stamp():
    if not STAMP: return
    i = nstamp[0]; nstamp[0] += 1
    o("    s_memrealtime s[%d:%d]" % (84 + 2 * i, 85 + 2 * i))
    o("    s_waitcnt lgkmcnt(0)")

HEADER = open("cdna_kernels/%s.s.ref" % NAME).read().split("\n")
hdr = [l for l in HEADER if l.startswith(";") and "@launch" not in l and "Override" not in l and "grid=ceil" not in l]

CAP = 1536
NKMAX = 40 + CAP // 32
L_WR = 0
L_CG = L_WR + 2048
L_CNT = L_CG + 2048
L_TABS = L_CNT + 256
L_LOCK = L_TABS + 256
L_FLAG = L_LOCK + 256
L_Q = L_FLAG + 4
L_FQ = L_FLAG + 16
L_TC = L_FLAG + 64
L_SOFF = L_FLAG + 256
L_S = L_SOFF + (NKMAX + 1) * 128
L_S = (L_S + 255) // 256 * 256
L_AGG = L_S + (CAP + 32) * 32
L_AGG = (L_AGG + 2047) // 2048 * 2048
L_END = L_AGG + 40 * 2048
K2_LDS = L_END
assert K2_LDS <= 160 * 1024
OOB = 0x7f000000

K1_THREADS = 640
K1L_HIST = 0
K1L_OFFS = 1024
K1L_STG = 2048
K1_LDS = K1L_STG + CHUNK * REC_BYTES

for l in hdr:
    o(l)
o("; @launch kernel=gs_bin_kernel grid=(256,1,1) block=(%d,1,1) lds=%d" % (K1_THREADS, K1_LDS))
o("; @launch kernel=%s_kernel grid=(256,1,1) block=(1024,1,1) lds=%d" % (NAME, K2_LDS))
o('.amdgcn_target "amdgcn-amd-amdhsa--gfx950"')
o(".text")

def dpp_scan(v):
    for sh in (1, 2, 4, 8):
        o("    s_nop 1")
        o("    v_add_u32_dpp %s, %s, %s row_shr:%d row_mask:0xf bank_mask:0xf bound_ctrl:0" % (v, v, v, sh))
    o("    s_nop 1")
    o("    v_add_u32_dpp %s, %s, %s row_bcast:15 row_mask:0xa bank_mask:0xf" % (v, v, v))
    o("    s_nop 1")
    o("    v_add_u32_dpp %s, %s, %s row_bcast:31 row_mask:0xc bank_mask:0xf" % (v, v, v))
    o("    s_nop 1")

o(".globl gs_bin_kernel")
o(".p2align 8")
o(".type gs_bin_kernel,@function")
o("gs_bin_kernel:")
k1n = [0]
def stamp1():
    if not STAMP: return
    i = k1n[0]; k1n[0] += 1
    o("    s_memrealtime s[%d:%d]" % (40 + 2 * i, 41 + 2 * i))
    o("    s_waitcnt lgkmcnt(0)")
def stamp1_flush():
    if not STAMP: return
    o("    s_mov_b64 exec, -1")
    o("    s_waitcnt vmcnt(0)")
    o("    s_memrealtime s[50:51]")
    o("    s_waitcnt lgkmcnt(0)")
    if "--dbgstamp" in opts:
        o("    s_load_dwordx2 s[52:53], s[0:1], 72")
        o("    s_waitcnt lgkmcnt(0)")
        o("    v_cmp_eq_u32 vcc, 0, v0")
        o("    s_and_saveexec_b64 s[24:25], vcc")
        o("    s_cbranch_execz DBG1_skip")
        o("    v_mov_b32 v3, 0")
        o("    s_not_b32 s3, s40")
        o("    v_mov_b32 v2, s3")
        o("    global_atomic_umax v3, v2, s[52:53] offset:0")
        o("    v_mov_b32 v2, s42")
        o("    global_atomic_umax v3, v2, s[52:53] offset:4")
        o("    v_mov_b32 v2, s46")
        o("    global_atomic_umax v3, v2, s[52:53] offset:8")
        o("    v_mov_b32 v2, s50")
        o("    global_atomic_umax v3, v2, s[52:53] offset:12")
        o("DBG1_skip:")
        o("    s_mov_b64 exec, -1")
    o("    v_lshrrev_b32 v1, 6, v0")
    o("    s_lshl_b32 s3, s2, 4")
    o("    v_add_u32 v1, s3, v1")
    o("    v_lshlrev_b32 v1, 6, v1")
    o("    v_add_u32 v1, 0x9000000, v1")
    for i in range(6):
        o("    v_mov_b32 v2, s%d" % (40 + 2 * i))
        o("    global_store_dword v1, v2, s[22:23] offset:%d" % (4 * i))
stamp1()
o("    s_cmp_ge_u32 s2, 256")
o("    s_cbranch_scc1 K1_done")
o("    s_load_dwordx16 s[4:19], s[0:1], 0")
o("    s_load_dwordx2 s[22:23], s[0:1], 80")
o("    s_cmp_ge_u32 s2, %d" % NCHUNK)
o("    s_cbranch_scc1 K1_wimg")
o("    s_mul_i32 s3, s2, %d" % CHUNK)
o("    v_lshl_add_u32 v1, v0, 1, s3")
o("    v_lshlrev_b32 v2, 2, v1               ; *4")
o("    v_lshlrev_b32 v3, 3, v1               ; *8")
o("    v_lshlrev_b32 v20, 2, v0              ; tid*4")
o("    v_mov_b32 v21, 0")
o("    v_mov_b32 v22, 1")
o("    s_waitcnt lgkmcnt(0)")
o("    global_load_dwordx2 v[4:5], v2, s[8:9] nt      ; dst")
def k1_rest():
    o("    global_load_dwordx2 v[6:7], v2, s[6:7] nt     ; src")
    o("    global_load_dwordx4 v[8:11], v3, s[10:11] nt  ; sh")
    o("    global_load_dwordx4 v[12:15], v3, s[12:13] nt ; ea")
if not K1D: k1_rest()
def k1_prefetch():
    n = 0
    if PF1 & 1:
        o("    s_lshr_b32 s3, s2, 3")
        o("    s_mul_i32 s3, s3, %d" % K1_THREADS)
        o("    s_and_b32 s26, s2, 7")
        o("    s_mul_i32 s26, s26, 2500")
        o("    s_add_u32 s3, s3, s26")
        o("    v_add_u32 v36, s3, v0")
        o("    v_subrev_u32 v37, 20000, v36")
        o("    v_min_u32 v36, v36, v37               ; mod 20000")
        o("    v_lshrrev_b32 v37, 1, v36")
        o("    v_and_b32 v36, 1, v36")
        o("    v_lshlrev_b32 v36, 7, v36")
        o("    v_lshl_add_u32 v36, v37, 10, v36")
        o("    global_load_dword v40, v36, s[4:5]")
        n += 1
    if PF1 & 2:
        o("    s_mul_i32 s3, s2, 240")
        o("    v_min_u32 v37, 239, v0")
        o("    v_add_u32 v36, s3, v37")
        o("    v_min_u32 v36, 59999, v36")
        o("    s_mov_b32 s26, 43691")
        o("    v_mul_lo_u32 v37, v36, s26")
        o("    v_lshrrev_b32 v37, 18, v37            ; /6")
        o("    v_mul_u32_u24 v39, 6, v37")
        o("    v_sub_u32 v39, v36, v39")
        o("    v_lshlrev_b32 v39, 7, v39")
        o("    v_lshl_add_u32 v36, v37, 10, v39")
        o("    global_load_dword v41, v36, s[4:5] offset:256")
        n += 1
    return n
NPF = 0
if TLB & 4:
    o("    s_mul_i32 s3, s2, %d" % (CHUNK * REC_BYTES))
    o("    v_mov_b32 v36, s3")
    o("    global_load_dword v40, v36, s[22:23]")
    o("    s_lshl_b32 s3, s2, 10")
    o("    s_add_u32 s3, s3, 0x%x" % WS_TAB)
    o("    v_mov_b32 v37, s3")
    o("    global_load_dword v41, v37, s[22:23]")
    NPF = 2
o("    v_cmp_gt_u32 vcc, 256, v0")
o("    s_and_saveexec_b64 s[24:25], vcc")
o("    ds_write_b32 v20, v21 offset:%d" % K1L_HIST)
o("    s_mov_b64 exec, s[24:25]")
o("    s_waitcnt lgkmcnt(0)")
o("    s_barrier")
if K1D == 1: k1_rest()
if K1D == 2:
    o("    s_waitcnt vmcnt(0)")
    k1_rest()
o("    s_waitcnt vmcnt(%d)" % (3 + NPF))
stamp1()
if PF1 & 4: NPF = k1_prefetch()
if KEYG:
    for d, r, t in (("v4", "v16", "v42"), ("v5", "v17", "v43")):
        o("    v_and_b32 %s, 7, %s" % (r, d))
        o("    v_bfe_u32 %s, %s, 3, 5" % (t, d))
        o("    v_lshlrev_b32 %s, 2, %s" % (t, t))
        o("    v_lshl_or_b32 %s, %s, 7, %s" % (r, r, t))
else:
    o("    v_and_b32 v16, 255, v4")
    o("    v_and_b32 v17, 255, v5")
    o("    v_lshlrev_b32 v16, 2, v16")
    o("    v_lshlrev_b32 v17, 2, v17")
o("    ds_add_rtn_u32 v18, v16, v22 offset:%d" % K1L_HIST)
o("    ds_add_rtn_u32 v19, v17, v22 offset:%d" % K1L_HIST)
o("    v_lshrrev_b32 v4, 8, v4")
o("    v_lshrrev_b32 v5, 8, v5")
o("    s_waitcnt lgkmcnt(0)")
o("    s_barrier")
o("    v_cmp_gt_u32 vcc, 64, v0")
o("    s_and_saveexec_b64 s[24:25], vcc")
o("    s_cbranch_execz K1_scan_done")
o("    v_lshlrev_b32 v23, 4, v0")
o("    ds_read_b128 v[24:27], v23 offset:%d" % K1L_HIST)
o("    s_waitcnt lgkmcnt(0)")
o("    v_add_u32 v28, v24, v25")
o("    v_add_u32 v29, v28, v26")
o("    v_add_u32 v30, v29, v27")
o("    v_mov_b32 v31, v30")
dpp_scan("v31")
o("    v_sub_u32 v32, v31, v30")
o("    v_add_u32 v33, v32, v24")
o("    v_add_u32 v34, v32, v28")
o("    v_add_u32 v35, v32, v29")
o("    ds_write_b128 v23, v[32:35] offset:%d" % K1L_OFFS)
o("    v_lshl_or_b32 v36, v24, 16, v32")
o("    v_lshl_or_b32 v37, v25, 16, v33")
o("    v_lshl_or_b32 v38, v26, 16, v34")
o("    v_lshl_or_b32 v39, v27, 16, v35")
o("    s_and_b32 s3, s2, 7")
o("    s_lshl_b32 s3, s3, 5")
o("    s_lshr_b32 s26, s2, 3")
o("    s_add_u32 s3, s3, s26")
o("    s_lshl_b32 s3, s3, 2")
o("    s_add_u32 s3, s3, 0x%x" % WS_TAB)
o("    v_lshl_add_u32 v23, v0, 12, s3        ; bucket 4l -> (4l)*1024")
for i in range(4):
    o("    global_store_dword v23, v%d, s[22:23] offset:%d%s" % (36 + i, 1024 * i, " sc1" if TABSC1 else ""))
o("    s_waitcnt lgkmcnt(0)")
o("K1_scan_done:")
o("    s_mov_b64 exec, s[24:25]")
o("    s_barrier")
stamp1()
o("    ds_read_b32 v24, v16 offset:%d" % K1L_OFFS)
o("    ds_read_b32 v25, v17 offset:%d" % K1L_OFFS)
o("    s_waitcnt vmcnt(%d)" % NPF)
stamp1()
if K1T:
    o("    v_cmp_gt_u32 vcc, %d, v0" % (128 * K1T))
    o("    s_and_saveexec_b64 s[26:27], vcc")
    o("    s_cbranch_execz K1_t_skip")
    o("    v_and_b32 v36, 63, v0")
    o("    v_min_u32 v36, 39, v36")
    o("    s_mul_i32 s3, s2, 40")
    o("    v_add_u32 v36, s3, v36")
    o("    v_lshrrev_b32 v37, 6, v0")
    o("    v_lshlrev_b32 v37, 7, v37")
    o("    v_lshl_add_u32 v36, v36, 10, v37")
    o("    global_load_dword v40, v36, s[4:5]")
    o("K1_t_skip:")
    o("    s_mov_b64 exec, s[26:27]")
o("    v_lshl_or_b32 v4, v4, 16, v6")
o("    v_lshl_or_b32 v5, v5, 16, v7")
o("    s_waitcnt lgkmcnt(0)")
o("    v_add_u32 v24, v24, v18")
o("    v_add_u32 v25, v25, v19")
o("    v_mul_u32_u24 v24, %d, v24" % REC_BYTES)
o("    v_mul_u32_u24 v25, %d, v25" % REC_BYTES)
o("    v_add_u32 v24, %d, v24" % K1L_STG)
o("    v_add_u32 v25, %d, v25" % K1L_STG)
o("    ds_write2_b32 v24, v8, v9 offset0:0 offset1:1")
o("    ds_write2_b32 v24, v12, v13 offset0:2 offset1:3")
o("    ds_write_b32 v24, v4 offset:16")
o("    ds_write2_b32 v25, v10, v11 offset0:0 offset1:1")
o("    ds_write2_b32 v25, v14, v15 offset0:2 offset1:3")
o("    ds_write_b32 v25, v5 offset:16")
o("    s_waitcnt lgkmcnt(0)")
o("    s_barrier")
stamp1()
o("    v_lshlrev_b32 v23, 4, v0")
o("    ds_read_b128 v[4:7], v23 offset:%d" % K1L_STG)
o("    ds_read_b128 v[8:11], v23 offset:%d" % (K1L_STG + K1_THREADS * 16))
o("    s_mul_i32 s3, s2, %d" % (CHUNK * REC_BYTES))
o("    v_add_u32 v24, s3, v23")
o("    v_add_u32 v25, %d, v24" % (K1_THREADS * 16))
o("    v_add_u32 v26, %d, v24" % (2 * K1_THREADS * 16))
o("    v_cmp_gt_u32 vcc, %d, v0" % (CHUNK * REC_BYTES // 16 - 2 * K1_THREADS))
o("    s_waitcnt lgkmcnt(1)")
o("    global_store_dwordx4 v24, v[4:7], s[22:23]" + K1ST)
o("    s_waitcnt lgkmcnt(0)")
o("    global_store_dwordx4 v25, v[8:11], s[22:23]" + K1ST)
o("    s_and_saveexec_b64 s[24:25], vcc")
o("    s_cbranch_execz K1_end2")
o("    ds_read_b128 v[12:15], v23 offset:%d" % (K1L_STG + 2 * K1_THREADS * 16))
o("    s_waitcnt lgkmcnt(0)")
o("    global_store_dwordx4 v26, v[12:15], s[22:23]" + K1ST)
o("K1_end2:")
stamp1_flush()
o("    s_endpgm")
o("K1_wimg:")
o("    s_cmp_ge_u32 s2, %d" % (NCHUNK + 4))
o("    s_cbranch_scc1 K1_done")
o("    v_cmp_gt_u32 vcc, 512, v0")
o("    s_and_saveexec_b64 s[24:25], vcc")
o("    s_cbranch_execz K1_done")
o("    s_sub_u32 s3, s2, %d                  ; dp" % NCHUNK)
o("    v_bfe_u32 v1, v0, 8, 1                ; t")
o("    v_bfe_u32 v2, v0, 6, 2                ; s")
o("    v_bfe_u32 v3, v0, 4, 2                ; q")
o("    v_bfe_u32 v5, v0, 2, 2                ; i>>2")
o("    v_and_b32 v6, 3, v0                   ; i&3")
o("    v_lshlrev_b32 v7, 3, v3               ; q*8")
o("    v_lshl_add_u32 v7, v2, 5, v7          ; c0 = 32s + 8q")
o("    v_lshlrev_b32 v8, 3, v5")
o("    v_lshl_add_u32 v8, v1, 2, v8")
o("    v_add_u32 v8, v8, v6")
o("    s_lshl_b32 s26, s3, 5")
o("    v_add_u32 v8, s26, v8                 ; d")
o("    v_lshlrev_b32 v8, 1, v8")
o("    v_lshl_add_u32 v8, v7, 8, v8")
o("    s_waitcnt lgkmcnt(0)")
for j in range(8):
    o("    global_load_ushort v%d, v8, s[18:19] offset:%d" % (16 + j, 256 * j))
o("    s_lshl_b32 s26, s3, 13")
o("    s_add_u32 s26, s26, 0x%x" % WS_WIMG)
o("    v_lshl_add_u32 v11, v0, 4, s26")
o("    s_waitcnt vmcnt(0)")
for p in range(4):
    o("    v_lshl_or_b32 v%d, v%d, 16, v%d" % (12 + p, 17 + 2 * p, 16 + 2 * p))
o("    global_store_dwordx4 v11, v[12:15], s[22:23] sc1")
o("K1_done:")
o("    s_endpgm")

KN = NAME + "_kernel"
o(".globl %s" % KN)
o(".p2align 8")
o(".type %s,@function" % KN)
o("%s:" % KN)
vLaneOff = 1; vSoffC = 2; vSC = 3; vAggC = 4; vL8 = 5; vND = 6; vQ = 7
vP = 8; vS = 16; vCG = 20; vT = 22; vOne = 23; vA = 24
vRB = [32, 64]; vD = 96; vWR = 64
vREC = 32
vMETA = 96; vRANK = 104; vCA = 112
MM = 8

TPC = 3
NSLOW = (E + 1023) // 1024
PFX = optval("pfx", 0)
PF0 = optval("pf0", 0)
TLB = optval("tlb", 0)
SPF = optval("spf", 0)
spf_u = [0]
def spf(nsl, tag):
    if nsl == 0: return
    o("    s_cmp_lt_u32 s40, 12")
    o("    s_cbranch_scc1 %s_e" % tag)
    o("    s_cmp_ge_u32 s2, 250")
    o("    s_cbranch_scc1 %s_e" % tag)
    o("    s_cmp_lg_u32 s41, 0")
    o("    s_cbranch_scc1 %s_e" % tag)
    for k in range(nsl):
        u = spf_u[0]; spf_u[0] += 1
        o("    s_mul_i32 s66, s2, %d" % (40 * 1024))
        o("    s_lshl_b32 s39, s40, 6")
        o("    s_add_u32 s66, s66, s39")
        o("    s_add_u32 s66, s66, %d" % (u * 256 - 12 * 64))
        o("    s_mov_b32 s39, 5")
        o("%s_l%d:" % (tag, k))
        for j in range(8):
            o("    s_load_dword s67, s[4:5], s66 offset:%d" % (j * 1024))
        o("    s_add_u32 s66, s66, 8192")
        o("    s_sub_u32 s39, s39, 1")
        o("    s_cmp_lg_u32 s39, 0")
        o("    s_cbranch_scc1 %s_l%d" % (tag, k))
    o("%s_e:" % tag)
PFM = optval("pfm", 0)
o("    s_cmp_ge_u32 s2, 256")
o("    s_cbranch_scc1 K2_done")
stamp()
o("    s_load_dwordx2 s[22:23], s[0:1], 80")
o("    s_load_dwordx16 s[4:19], s[0:1], 0")
o("    s_load_dwordx2 s[20:21], s[0:1], 64")
o("    v_and_b32 v8, 63, v0                  ; lane")
o("    v_lshrrev_b32 v9, 6, v0")
o("    s_mov_b32 s44, 21846")
o("    v_readfirstlane_b32 s40, v9")
o("    v_mul_lo_u32 v14, v0, s44")
o("    v_lshrrev_b32 v14, 16, v14")
o("    v_mul_u32_u24 v17, 3, v14")
o("    v_sub_u32 v17, v0, v17                ; i0 = tid%3")
if KEYG:
    o("    s_and_b32 s3, s2, 7")
    o("    s_lshl_b32 s3, s3, 5")
    o("    s_lshr_b32 s43, s2, 3")
    o("    s_or_b32 s3, s3, s43")
    o("    s_lshl_b32 s3, s3, 10")
else:
    o("    s_lshl_b32 s3, s2, 10")
o("    s_add_u32 s43, s3, 0x%x               ; TAB + b*1024" % WS_TAB)
o("    v_lshl_add_u32 v15, v14, 2, s43")
o("    v_and_b32 v16, 31, v14")
o("    v_lshrrev_b32 v14, 5, v14")
o("    v_lshl_add_u32 v14, v16, 3, v14       ; chunk")
o("    v_and_b32 v9, 15, v8                  ; col")
o("    v_lshrrev_b32 v10, 4, v8              ; g")
o("    v_lshlrev_b32 v%d, 4, v9              ; laneoff = col*16" % vLaneOff)
o("    s_cmp_ge_u32 s40, 12")
o("    s_waitcnt lgkmcnt(0)")
o("    s_cbranch_scc1 K2_hiwaves")
if TLB & 1:
    o("    s_mov_b32 s47, %d" % (CHUNK * REC_BYTES))
    o("    v_mul_lo_u32 v19, v16, s47")
    o("    s_mul_i32 s3, s2, 100")
    o("    v_add_u32 v19, s3, v19")
o("    global_load_dword v16, v15, s[22:23]")
if TLB & 1:
    o("    global_load_dword v120, v19, s[22:23]")
o("    s_branch K2_tabs_issued")
o("K2_hiwaves:")
if RPF:
    o("    v_subrev_u32 v24, 768, v0")
    o("    v_lshrrev_b32 v25, 5, v24")
    o("    s_andn2_b32 s3, s2, 7")
    o("    v_add_u32 v25, s3, v25                ; chunk")
    o("    v_min_u32 v25, %d, v25" % (NCHUNK - 1))
    o("    s_mov_b32 s47, %d" % (CHUNK * REC_BYTES))
    o("    v_mul_lo_u32 v25, v25, s47")
    o("    v_and_b32 v24, 31, v24")
    o("    v_lshl_add_u32 v24, v24, 7, v25")
    o("    s_and_b32 s3, s2, 7")
    o("    s_mul_i32 s3, s3, 3200")
    o("    v_add_u32 v24, s3, v24")
    o("    v_max_u32 v24, 448, v24")
    o("    global_load_dword v123, v24, s[22:23] offset:-448")
o("    s_mov_b32 s24, s4")
o("    s_and_b32 s25, s5, 0xffff")
o("    s_mov_b32 s26, %d" % (N * 1024))
o("    s_mov_b32 s27, 0x00020000")
o("    s_cmp_eq_u32 s40, 13")
o("    s_cbranch_scc1 K2_cg_issue")
o("    s_cmp_lg_u32 s40, 14")
o("    s_cbranch_scc1 K2_pf")
for k in range(4):
    o("    global_load_dwordx4 v[%d:%d], v%d, s[16:17] offset:%d" % (96 + 4 * k, 96 + 4 * k + 3, vLaneOff, 256 * k))
o("    s_branch K2_pf")
o("K2_cg_issue:")
o("    v_lshrrev_b32 v11, 2, v9")
o("    v_lshlrev_b32 v18, 3, v10")
o("    v_lshl_add_u32 v18, v11, 1, v18")
for u in range(4):
    o("    global_load_ushort v%d, v18, s[14:15] offset:%d" % (96 + u, 32 * u))
o("K2_pf:")
NPF2 = 0
if TLB & 2:
    o("    v_subrev_u32 v24, 768, v0")
    o("    v_lshlrev_b32 v24, 16, v24")
    o("    buffer_load_dword v121, v24, s[24:27], 0 offen")
    o("    v_min_u32 v24, 0x9c0000, v24")
    o("    global_load_dword v122, v24, s[20:21]")
    NPF2 += 2
if PFX & 1:
    o("    s_lshr_b32 s3, s2, 3")
    o("    s_mul_i32 s3, s3, 313")
    o("    s_and_b32 s44, s2, 7")
    o("    s_mul_i32 s44, s44, 1250")
    o("    s_add_u32 s3, s3, s44")
    o("    s_sub_u32 s3, s3, 768")
    o("    v_add_u32 v24, s3, v0")
    o("    v_subrev_u32 v25, 10000, v24")
    o("    v_min_u32 v24, v24, v25")
    o("    v_lshlrev_b32 v24, 10, v24")
    o("    buffer_load_dword v120, v24, s[24:27], 0 offen")
    o("    buffer_load_dword v121, v24, s[24:27], 0 offen offset:128")
    o("    v_subrev_u32 v26, 768, v0")
    o("    v_lshrrev_b32 v24, 1, v26")
    o("    v_min_u32 v24, 56, v24")
    o("    s_add_u32 s3, s3, %d" % (768 + 256))
    o("    v_add_u32 v24, s3, v24")
    o("    v_subrev_u32 v25, 10000, v24")
    o("    v_min_u32 v24, v24, v25")
    o("    v_lshlrev_b32 v24, 10, v24")
    o("    v_and_b32 v26, 1, v26")
    o("    v_lshl_add_u32 v24, v26, 7, v24")
    o("    buffer_load_dword v122, v24, s[24:27], 0 offen")
    NPF2 += 3
if PFX & 2:
    o("    s_lshl_b32 s3, s2, 8")
    o("    s_sub_u32 s3, s3, 768")
    o("    v_add_u32 v24, s3, v0")
    o("    s_mov_b32 s44, 43691")
    o("    v_mul_lo_u32 v25, v24, s44")
    o("    v_lshrrev_b32 v25, 18, v25            ; /6")
    o("    v_mul_u32_u24 v26, 6, v25")
    o("    v_sub_u32 v26, v24, v26")
    o("    v_lshlrev_b32 v26, 7, v26")
    o("    v_lshl_add_u32 v24, v25, 10, v26")
    o("    buffer_load_dword v124, v24, s[24:27], 0 offen offset:256")
    NPF2 += 1
if PFX & 4:
    o("    s_mul_i32 s3, s2, 313")
    o("    s_sub_u32 s3, s3, 768")
    o("    v_add_u32 v24, s3, v0")
    o("    v_lshlrev_b32 v24, 7, v24")
    o("    buffer_load_dword v124, v24, s[24:27], 0 offen")
    o("    v_subrev_u32 v26, 768, v0")
    o("    v_min_u32 v26, 56, v26")
    o("    s_add_u32 s3, s3, %d" % (768 + 256))
    o("    v_add_u32 v24, s3, v26")
    o("    v_lshlrev_b32 v24, 7, v24")
    o("    buffer_load_dword v125, v24, s[24:27], 0 offen")
    NPF2 += 2
o("K2_tabs_issued:")
o("    v_lshlrev_b32 v%d, 5, v10             ; g*32" % vSoffC)
o("    v_lshrrev_b32 v11, 2, v9              ; r = col>>2")
o("    v_and_b32 v12, 3, v9                  ; c = col&3")
o("    v_lshl_add_u32 v13, v11, 2, v10       ; 4r+g")
o("    v_lshlrev_b32 v13, 5, v13")
o("    v_lshl_add_u32 v%d, v12, 3, v13       ; (4r+g)*32 + c*8" % vSC)
o("    v_xor_b32 v13, v9, v10                ; col ^ w")
o("    v_lshlrev_b32 v13, 4, v13")
o("    v_lshl_add_u32 v%d, v10, 8, v13       ; w*256 + (col^w)*16" % vAggC)
o("    v_lshlrev_b32 v%d, 3, v8              ; lane*8" % vL8)
o("    v_mov_b32 v%d, 1" % vOne)
o("    s_mov_b32 s32, 0x05040100")
o("    s_mov_b32 s33, 0x07060302")
o("    s_mov_b32 s41, 0")
o("    s_mov_b32 s42, 0                      ; round")
o("    s_mov_b32 s70, 160")
o("    s_cmp_ge_u32 s40, 12")
o("    s_cselect_b32 s70, %d, s70" % (FSW if FSW else 160))
o("    s_lshr_b32 s68, s2, 3")
o("    s_mul_i32 s68, s68, 313")
o("    s_min_u32 s68, s68, %d" % (N - 320))
o("    s_lshl_b32 s68, s68, 10")
o("    s_and_b32 s69, s2, 7")
o("    s_mul_i32 s69, s69, 5")
o("    s_mov_b32 s24, s4")
o("    s_and_b32 s25, s5, 0xffff")
o("    s_mov_b32 s26, %d" % (N * 1024))
o("    s_mov_b32 s27, 0x00020000")
o("    s_mov_b32 s28, s20")
o("    s_and_b32 s29, s21, 0xffff")
o("    s_mov_b32 s30, %d" % (N * 1024))
o("    s_mov_b32 s31, 0x00020000")
def round_init():
    o("    v_lshlrev_b32 v18, 4, v0")
    for i in range(4):
        o("    v_mov_b32 v%d, 0x%x" % (24 + i, OOB))
    o("    v_mov_b32 v28, 0")
    o("    v_mov_b32 v29, %d" % (16 - DPW))
    o("    v_cmp_gt_u32 vcc, 64, v0")
    o("    s_and_saveexec_b64 s[44:45], vcc")
    o("    v_lshlrev_b32 v19, 2, v0")
    o("    ds_write_b32 v19, v28 offset:%d" % L_CNT)
    o("    ds_write_b32 v19, v28 offset:%d" % L_LOCK)
    o("    ds_write_b32 v19, v28 offset:%d" % L_FLAG)
    o("    v_mov_b32 v19, 0")
    o("    ds_write_b64 v19, v[28:29] offset:%d" % L_FLAG)
    o("    s_mov_b64 exec, s[44:45]")
    o("    v_cmp_gt_u32 vcc, %d, v0" % ((NKMAX + 1) * 128 // 16))
    o("    s_and_saveexec_b64 s[44:45], vcc")
    o("    ds_write_b128 v18, v[24:27] offset:%d" % L_SOFF)
    o("    s_mov_b64 exec, s[44:45]")
    for m in range(MM):
        o("    s_mov_b64 s[%d:%d], 0" % (48 + 2 * m, 49 + 2 * m))
    o("    s_mov_b64 s[64:65], 0")
round_init()
def barrier1():
    o("    s_waitcnt lgkmcnt(0)")
    o("    s_barrier")
if not LB1:
    barrier1()
stamp()
def zero_big():
    o("    v_lshlrev_b32 v18, 4, v0              ; tid*16")
    for i in range(4):
        o("    v_mov_b32 v%d, 0" % (28 + i))
    nz = (L_END - L_S) // 16
    full = nz // 1024
    rem = nz - full * 1024
    o("    v_add_u32 v25, %d, v18" % L_S)
    o("    v_add_u32 v26, %d, v18" % (L_S + 65536))
    o("    v_add_u32 v27, %d, v18" % (L_S + 131072))
    for i in range(full):
        off = i * 16384
        o("    ds_write_b128 v%d, v[28:31] offset:%d" % (25 + off // 65536, off % 65536))
    if rem:
        off = full * 16384
        o("    v_cmp_gt_u32 vcc, %d, v0" % rem)
        o("    s_and_saveexec_b64 s[44:45], vcc")
        o("    ds_write_b128 v%d, v[28:31] offset:%d" % (25 + off // 65536, off % 65536))
        o("    s_mov_b64 exec, s[44:45]")
o("    s_cmp_lt_u32 s40, 12")
o("    s_cbranch_scc1 K2_lowaves")
if LB1: barrier1()
zero_big()
o("    s_cmp_eq_u32 s40, 13")
o("    s_cbranch_scc1 K2_cg_build")
o("    s_cmp_lg_u32 s40, 14")
o("    s_cbranch_scc1 K2_S_done")
o("    s_waitcnt vmcnt(%d)" % NPF2)
for i in range(4):
    for k in range(4):
        o("    v_lshlrev_b32 v%d, 16, v%d" % (112 + k, 96 + 4 * k + i))
        o("    v_and_b32 v%d, 0xffff0000, v%d" % (116 + k, 96 + 4 * k + i))
    o("    ds_write_b128 v%d, v[112:115] offset:%d" % (vLaneOff, L_WR + 256 * (2 * i)))
    o("    ds_write_b128 v%d, v[116:119] offset:%d" % (vLaneOff, L_WR + 256 * (2 * i + 1)))
o("    s_branch K2_S_done")
o("K2_cg_build:")
o("    v_and_b32 v19, 1, v12")
o("    v_lshlrev_b32 v19, 4, v19             ; shift 0/16")
o("    v_cmp_gt_u32 vcc, 2, v12")
o("    s_waitcnt vmcnt(%d)" % NPF2)
for u in range(4):
    o("    v_lshlrev_b32 v20, v19, v%d" % (96 + u))
    o("    v_cndmask_b32 v%d, 0, v20, vcc" % (112 + 2 * u))
    o("    v_xor_b32 v%d, v20, v%d" % (113 + 2 * u, 112 + 2 * u))
    o("    ds_write_b64 v%d, v[%d:%d] offset:%d" % (vL8, 112 + 2 * u, 113 + 2 * u, L_CG + 512 * u))
o("    s_branch K2_S_done")
o("K2_lowaves:")
o("    v_cmp_gt_u32 vcc, %d, v14" % NCHUNK)
o("    s_mov_b32 s47, %d" % (CHUNK * REC_BYTES))
o("    s_waitcnt vmcnt(%d)" % (1 if TLB & 1 else 0))
if STAMP:
    o("    s_memrealtime s[72:73]")
    o("    s_waitcnt lgkmcnt(0)")
o("    v_lshrrev_b32 v18, 16, v16            ; cnt")
o("    v_cndmask_b32 v18, 0, v18, vcc")
o("    v_and_b32 v19, 0xffff, v16            ; start")
o("    v_add_u32 v19, v19, v17")
o("    v_mul_u32_u24 v19, %d, v19" % REC_BYTES)
o("    v_mad_u32_u24 v19, v14, s47, v19")
for m in range(MM):
    o("    v_cmp_lt_u32 vcc, v17, v18")
    o("    s_and_b64 exec, exec, vcc")
    o("    s_cbranch_execz K2_loads_done0")
    o("    s_mov_b64 s[%d:%d], exec" % (48 + 2 * m, 49 + 2 * m))
    o("    global_load_dwordx4 v[%d:%d], v19, s[22:23] offset:%d%s" % (vREC + 8 * m, vREC + 8 * m + 3, m * TPC * REC_BYTES, NT2))
    o("    global_load_dword v%d, v19, s[22:23] offset:%d%s" % (vMETA + m, m * TPC * REC_BYTES + 16, NT2))
    o("    v_add_u32 v17, %d, v17" % TPC)
o("    v_cmp_lt_u32 vcc, v17, v18")
o("    s_mov_b64 s[64:65], vcc")
o("K2_loads_done0:")
o("    s_mov_b64 exec, -1")
if LB1: barrier1()
if PF0 == 1:
    o("    s_lshr_b32 s3, s2, 3")
    o("    s_mul_i32 s3, s3, 625")
    o("    s_and_b32 s44, s2, 7")
    o("    s_mul_i32 s44, s44, 2500")
    o("    s_add_u32 s3, s3, s44")
    o("    v_min_u32 v24, 624, v0")
    o("    v_add_u32 v24, s3, v24")
    o("    v_subrev_u32 v25, 20000, v24")
    o("    v_min_u32 v24, v24, v25")
if PF0 == 2:
    o("    s_mul_i32 s3, s2, 79")
    o("    v_min_u32 v24, 78, v0")
    o("    v_add_u32 v24, s3, v24")
if PF0:
    o("    v_lshrrev_b32 v25, 1, v24")
    o("    v_and_b32 v24, 1, v24")
    o("    v_lshlrev_b32 v24, 7, v24")
    o("    v_lshl_add_u32 v24, v25, 10, v24")
    o("    buffer_load_dword v120, v24, s[24:27], 0 offen")
zero_big()
if PF0:
    o("    s_cmp_eq_u64 s[64:65], 0")
    o("    s_cbranch_scc1 K2_noflag0")
    o("    v_mov_b32 v19, 0")
    o("    ds_write_b32 v19, v%d offset:%d" % (vOne, L_FLAG))
    o("K2_noflag0:")
    o("    s_waitcnt vmcnt(1)")
    o("    s_branch K2_recs_ready")
else:
    o("    s_branch K2_loads_done")

o("K2_round:")
round_init()
o("    s_lshl_b32 s3, s42, 10")
o("    v_add_u32 v14, s3, v0                 ; edge")
o("    v_cmp_gt_u32 vcc, %d, v14" % E)
o("    v_min_u32 v14, %d, v14" % (E - 1))
o("    v_lshlrev_b32 v15, 2, v14")
o("    v_lshlrev_b32 v16, 3, v14")
o("    global_load_dword v17, v15, s[8:9]")
o("    global_load_dword v18, v15, s[6:7]")
o("    global_load_dwordx2 v[%d:%d], v16, s[10:11]" % (vREC, vREC + 1))
o("    global_load_dwordx2 v[%d:%d], v16, s[12:13]" % (vREC + 2, vREC + 3))
o("    s_waitcnt vmcnt(0) lgkmcnt(0)")
o("    s_barrier")
o("    v_and_b32 v19, 255, v17")
o("    v_cmp_eq_u32 s[46:47], s2, v19")
o("    v_lshrrev_b32 v17, 8, v17")
o("    v_lshl_or_b32 v%d, v17, 16, v18" % vMETA)
o("    s_and_b64 s[48:49], vcc, s[46:47]")

o("K2_loads_done:")
o("    s_cmp_eq_u64 s[64:65], 0")
o("    s_cbranch_scc1 K2_noflag")
o("    v_mov_b32 v19, 0")
o("    ds_write_b32 v19, v%d offset:%d" % (vOne, L_FLAG))
o("K2_noflag:")
o("    s_waitcnt vmcnt(0)")
o("K2_recs_ready:")
if STAMP:
    o("    s_memrealtime s[74:75]")
    o("    s_waitcnt lgkmcnt(0)")
for m in range(MM):
    o("    s_mov_b64 exec, s[%d:%d]" % (48 + 2 * m, 49 + 2 * m))
    o("    s_cbranch_execz K2_rank_done")
    o("    v_lshrrev_b32 v%d, 16, v%d" % (vCA + m, vMETA + m))
    o("    v_lshlrev_b32 v%d, 2, v%d" % (vCA + m, vCA + m))
    o("    ds_add_rtn_u32 v%d, v%d, v%d offset:%d" % (vRANK + m, vCA + m, vOne, L_CNT))
o("K2_rank_done:")
for m in range(MM):
    o("    s_mov_b64 exec, s[%d:%d]" % (48 + 2 * m, 49 + 2 * m))
    o("    s_cbranch_execz K2_S_done")
    r = vREC + 8 * m
    o("    v_lshlrev_b32 v8, 16, v%d" % r)
    o("    v_and_b32 v9, 0xffff0000, v%d" % r)
    o("    v_lshlrev_b32 v10, 16, v%d" % (r + 1))
    o("    v_and_b32 v11, 0xffff0000, v%d" % (r + 1))
    o("    v_lshlrev_b32 v12, 16, v%d" % (r + 2))
    o("    v_and_b32 v13, 0xffff0000, v%d" % (r + 2))
    o("    v_lshlrev_b32 v14, 16, v%d" % (r + 3))
    o("    v_and_b32 v15, 0xffff0000, v%d" % (r + 3))
    for v in range(4):
        o("    v_pk_mul_f32 v[28:29], v[12:13], v[%d:%d] op_sel:[0,%d] op_sel_hi:[1,%d]" % (8 + (v & 2), 9 + (v & 2), v & 1, v & 1))
        o("    v_pk_mul_f32 v[30:31], v[14:15], v[%d:%d] op_sel:[0,%d] op_sel_hi:[1,%d]" % (8 + (v & 2), 9 + (v & 2), v & 1, v & 1))
        o("    v_cvt_pk_bf16_f32 v%d, v28, v29" % (r + 2 * v))
        o("    v_cvt_pk_bf16_f32 v%d, v30, v31" % (r + 2 * v + 1))
    o("    v_and_b32 v%d, 0xffff, v%d" % (vMETA + m, vMETA + m))
    o("    v_lshlrev_b32 v%d, 10, v%d" % (vMETA + m, vMETA + m))
o("K2_S_done:")
o("    s_mov_b64 exec, -1")
spf(SPF // 100, "SP1")
def sp0(n0, n, tag):
    if n == 0: return
    o("    s_cmp_lt_u32 s40, 12")
    o("    s_cbranch_scc1 %s_e" % tag)
    o("    s_cmp_lg_u32 s41, 0")
    o("    s_cbranch_scc1 %s_e" % tag)
    o("    s_sub_u32 s66, s40, 12")
    o("    s_mul_i32 s66, s66, %d" % (80 * 1024))
    o("    s_add_u32 s66, s66, s68")
    o("    s_lshl_b32 s38, s69, 1")
    o("    s_add_u32 s38, s38, %d" % n0)
    o("    s_mov_b32 s39, %d" % n)
    o("%s_l:" % tag)
    o("    s_sub_u32 s36, s38, 80")
    o("    s_min_u32 s38, s38, s36")
    o("    s_lshl_b32 s36, s38, 10")
    o("    s_add_u32 s36, s36, s66")
    for sec in range(4):
        o("    s_load_dword s67, s[4:5], s36 offset:%d" % (sec * 64))
    o("    s_add_u32 s38, s38, 1")
    o("    s_sub_u32 s39, s39, 1")
    o("    s_cmp_lg_u32 s39, 0")
    o("    s_cbranch_scc1 %s_l" % tag)
    o("%s_e:" % tag)
sp0(0, SP0A, "SQ1")
o("    s_waitcnt lgkmcnt(0)")
o("    s_barrier")
stamp()
if B2T:
    o("    s_cmp_lt_u32 s40, 12")
    o("    s_cbranch_scc1 K2_b2t_e")
    o("    s_cmp_lg_u32 s41, 0")
    o("    s_cbranch_scc1 K2_b2t_e")
    if B2T & 1:
        o("    s_lshr_b32 s3, s2, 3")
        o("    s_mul_i32 s3, s3, 625")
        o("    s_sub_u32 s3, s3, 768")
        o("    v_add_u32 v24, s3, v0")
        o("    v_lshrrev_b32 v25, 1, v24")
        o("    v_and_b32 v24, 1, v24")
        o("    v_lshlrev_b32 v24, 7, v24")
        o("    v_lshl_add_u32 v24, v25, 10, v24")
        o("    buffer_load_dword v120, v24, s[24:27], 0 offen")
        if B2T & 4:
            o("    v_add_u32 v24, 0x20000, v24")
            o("    buffer_load_dword v121, v24, s[24:27], 0 offen")
    if B2T & 2:
        o("    s_lshl_b32 s3, s2, 8")
        o("    s_sub_u32 s3, s3, 768")
        o("    v_add_u32 v24, s3, v0")
        o("    s_mov_b32 s44, 43691")
        o("    v_mul_lo_u32 v25, v24, s44")
        o("    v_lshrrev_b32 v25, 18, v25            ; /6")
        o("    v_mul_u32_u24 v26, 6, v25")
        o("    v_sub_u32 v26, v24, v26")
        o("    v_lshlrev_b32 v26, 7, v26")
        o("    v_lshl_add_u32 v24, v25, 10, v26")
        o("    buffer_load_dword v124, v24, s[24:27], 0 offen offset:256")
    o("K2_b2t_e:")
o("    v_lshrrev_b32 v19, 1, v%d             ; lane*4" % vL8)
o("    ds_read_b32 v24, v19 offset:%d" % L_CNT)
o("    v_mov_b32 v20, 0")
o("    ds_read_b32 v21, v20 offset:%d" % L_FLAG)
o("    s_waitcnt lgkmcnt(0)")
o("    v_add_u32 v25, 31, v24")
o("    v_lshrrev_b32 v25, 5, v25             ; nks")
o("    v_lshl_or_b32 v26, v25, 16, v24       ; packed")
o("    v_mov_b32 v27, v26")
dpp_scan("v27")
o("    v_readlane_b32 s34, v27, 63")
o("    v_readfirstlane_b32 s35, v21")
o("    v_sub_u32 v27, v27, v26")
o("    ds_write_b32 v19, v27 offset:%d" % L_TABS)
o("    s_and_b32 s36, s34, 0xffff            ; total")
o("    s_lshr_b32 s34, s34, 16               ; nK")
o("    s_cmp_gt_u32 s36, %d" % CAP)
o("    s_cselect_b32 s36, 1, 0")
o("    s_or_b32 s35, s35, s36")
o("    s_cmp_eq_u32 s35, 0")
o("    s_cbranch_scc1 K2_ok")
o("    s_mov_b32 s41, 1")
o("    s_waitcnt lgkmcnt(0)")
o("    s_barrier")
o("    s_branch K2_round")
o("K2_ok:")
o("    v_and_b32 v20, 0xffff, v27")
o("    v_lshrrev_b32 v21, 16, v27")
o("    v_lshl_or_b32 v20, v21, 11, v20")
o("    v_lshl_or_b32 v%d, v24, 18, v20       ; node desc: Sstart | kstart<<11 | cnt<<18" % vND)
for m in range(MM):
    o("    s_mov_b64 exec, s[%d:%d]" % (48 + 2 * m, 49 + 2 * m))
    o("    s_cbranch_execz K2_tabs_done")
    o("    ds_read_b32 v%d, v%d offset:%d" % (vCA + m, vCA + m, L_TABS))
o("K2_tabs_done:")
o("    s_waitcnt lgkmcnt(0)")
for m in range(MM):
    o("    s_mov_b64 exec, s[%d:%d]" % (48 + 2 * m, 49 + 2 * m))
    o("    s_cbranch_execz K2_scatter_done")
    r = vREC + 8 * m
    rank = vRANK + m
    tb = vCA + m
    o("    v_and_b32 v25, 0xffff, v%d" % tb)
    o("    v_add_lshl_u32 v25, v25, v%d, 5" % rank)
    o("    ds_write_b128 v25, v[%d:%d] offset:%d" % (r, r + 3, L_S))
    o("    ds_write_b128 v25, v[%d:%d] offset:%d" % (r + 4, r + 7, L_S + 16))
    o("    v_lshrrev_b32 v26, 16, v%d" % tb)
    o("    v_lshrrev_b32 v27, 5, v%d" % rank)
    o("    v_add_lshl_u32 v26, v26, v27, 7")
    o("    v_and_b32 v27, 3, v%d" % rank)
    o("    v_lshl_add_u32 v26, v27, 5, v26")
    o("    v_and_or_b32 v26, v%d, 28, v26" % rank)
    o("    ds_write_b32 v26, v%d offset:%d" % (vMETA + m, L_SOFF))
o("K2_scatter_done:")
o("    s_mov_b64 exec, -1")
spf((SPF // 10) % 10, "SP2")
sp0(SP0A, SP0B, "SQ2")
o("    s_waitcnt lgkmcnt(0)")
o("    s_barrier")
stamp()
if STAMP:
    o("    s_memtime s[76:77]")
    o("    s_waitcnt lgkmcnt(0)")

NITEM = 160
uid = [0]
def dequeue():
    o("    s_mov_b64 exec, 1")
    o("    ds_add_rtn_u32 v%d, v%d, v%d offset:%d" % (vQ, vLaneOff, vOne, L_Q))
    o("    s_mov_b64 exec, -1")

def gen_next(first_id_in_s38=False):
    t = "G%d" % uid[0]; uid[0] += 1
    if first_id_in_s38:
        o("    s_branch %s_dec" % t)
    else:
        o("    s_cmp_eq_u32 s62, 0")
        o("    s_cbranch_scc1 %s_retry" % t)
        o("    s_add_u32 s63, s63, 1")
        o("    s_add_u32 s64, s64, 1024")
        o("    s_mov_b32 s65, 0")
        o("    s_branch %s_cnt" % t)
    o("%s_retry:" % t)
    if SYNCQ:
        if FSW:
            o("    s_cmp_ge_u32 s71, s70")
            o("    s_mov_b32 s38, 1000")
            o("    s_cbranch_scc1 %s_dec" % t)
        dequeue()
        o("    s_waitcnt lgkmcnt(0)")
        o("    v_readfirstlane_b32 s38, v%d" % vQ)
        if FSW:
            o("    s_mov_b32 s71, s38")
    else:
        o("    s_waitcnt lgkmcnt(0)")
        o("    v_readfirstlane_b32 s38, v%d" % vQ)
        if FSW:
            o("    s_cmp_ge_u32 s38, s70")
            o("    s_cbranch_scc0 %s_dq" % t)
            o("    v_mov_b32 v%d, 1000" % vQ)
            o("    s_branch %s_dec" % t)
            o("%s_dq:" % t)
        dequeue()
    o("%s_dec:" % t)
    o("    s_cmp_lt_u32 s38, %d" % NITEM)
    o("    s_cbranch_scc1 %s_valid" % t)
    o("    s_mov_b32 s65, 0")
    o("    s_mov_b32 s62, 0")
    o("    s_branch %s_end" % t)
    o("%s_valid:" % t)
    if SKEW:
        o("    s_lshr_b32 s39, s38, 2")
        o("    v_readlane_b32 s39, v%d, s39" % vT)
        o("    s_lshl_b32 s60, s38, 3")
        o("    s_lshr_b32 s39, s39, s60")
        o("    s_bfe_u32 s60, s39, 0x20006           ; u")
        o("    s_and_b32 s61, s39, 63                ; node")
    else:
        o("    s_mul_i32 s60, s38, 1639")
        o("    s_lshr_b32 s60, s60, 16               ; u = id / 40")
        o("    s_mul_i32 s61, s60, 40")
        o("    s_sub_u32 s61, s38, s61               ; node")
        if ROT:
            o("    s_lshr_b32 s39, s2, %d" % (ROT - 1))
            o("    s_add_u32 s60, s60, s39")
            o("    s_and_b32 s60, s60, 3")
    if PFM:
        o("    s_andn2_b32 s39, s61, 1")
        o("    s_cmp_lg_u32 s39, %d" % (PFM & ~1))
        o("    s_cbranch_scc1 %s_nopf" % t)
        o("    s_and_b32 s39, s61, 1")
        o("    s_mul_i32 s39, s39, 40")
        o("    s_mul_i32 s36, s2, 80")
        o("    s_add_u32 s39, s39, s36")
        o("    v_lshrrev_b32 v0, 3, v%d" % vL8)
        o("    v_min_u32 v0, 39, v0")
        o("    v_add_u32 v0, s39, v0")
        o("    v_lshrrev_b32 v%d, 1, v0" % vCG)
        o("    v_and_b32 v0, 1, v0")
        o("    v_lshlrev_b32 v0, 7, v0")
        o("    v_lshl_add_u32 v0, v%d, 10, v0" % vCG)
        o("    s_lshl_b32 s36, s60, 8")
        o("    s_cmp_eq_u32 s60, 3")
        o("    s_cbranch_scc1 %s_nopf" % t)
        o("    buffer_load_dword v%d, v0, s[24:27], s36 offen offset:256" % vT)
        o("%s_nopf:" % t)
    o("    v_readlane_b32 s39, v%d, s61" % vND)
    o("    s_lshr_b32 s62, s39, 18               ; cnt")
    if DF:
        o("    s_cbranch_scc1 %s_ne" % t)
        o("    s_andn2_b32 s39, s61, 3")
        o("    v_mov_b32 v0, s39")
        o("    s_mov_b64 exec, 1")
        o("    ds_add_u32 v0, v%d offset:%d" % (vOne, L_TC))
        o("    s_mov_b64 exec, -1")
        o("    s_branch %s_retry" % t)
        o("%s_ne:" % t)
    else:
        o("    s_cbranch_scc0 %s_retry" % t)
    o("    s_bfe_u32 s63, s39, 0x7000b           ; kstart")
    o("    s_and_b32 s64, s39, 0x7ff")
    o("    s_lshl_b32 s64, s64, 5")
    o("    s_mov_b32 s65, 16")
    o("%s_cnt:" % t)
    o("    s_min_u32 s39, s62, 32")
    o("    s_sub_u32 s62, s62, s39")
    o("    s_add_u32 s39, s39, 3")
    o("    s_lshr_b32 s39, s39, 2")
    o("    s_or_b32 s65, s65, s39")
    o("    s_cmp_eq_u32 s62, 0")
    o("    s_cselect_b32 s39, 32, 0")
    o("    s_or_b32 s65, s65, s39")
    o("    s_lshl_b32 s39, s63, 7")
    o("    v_add_u32 v0, s39, v%d" % vSoffC)
    o("    ds_read_b128 v[%d:%d], v0 offset:%d" % (vA, vA + 3, L_SOFF))
    o("    ds_read_b128 v[%d:%d], v0 offset:%d" % (vA + 4, vA + 7, L_SOFF + 16))
    o("%s_end:" % t)

def issue_loads(b):
    t = "L%d" % uid[0]; uid[0] += 1
    o("    s_lshl_b32 s37, s60, 8")
    if "--u0" in opts: o("    s_mov_b32 s37, 0")
    o("    s_and_b32 s39, s65, 15")
    o("    s_cbranch_scc0 %s_e" % t)
    for j in range(8):
        o("    v_add_u32 v%d, v%d, v%d" % (vA + j, vA + j, vLaneOff))
        if j < 7:
            o("    s_cmp_eq_u32 s39, %d" % (j + 1))
        o("    buffer_load_dwordx4 v[%d:%d], v%d, s[24:27], s37 offen" % (vRB[b] + 4 * j, vRB[b] + 4 * j + 3, vA + j))
        if j < 7:
            o("    s_cbranch_scc1 %s_e" % t)
    o("%s_e:" % t)

def gen_to_slot(b):
    sb = 48 + 4 * b
    o("    s_mov_b64 s[%d:%d], s[60:61]" % (sb, sb + 1))
    o("    s_mov_b64 s[%d:%d], s[64:65]" % (sb + 2, sb + 3))

def perms(b, j, pbase, npair):
    i = j >> 1
    sel = "s32" if (j & 1) == 0 else "s33"
    for jj in range(npair):
        a = vRB[b] + 4 * (2 * jj) + i
        c = vRB[b] + 4 * (2 * jj + 1) + i
        o("    v_perm_b32 v%d, v%d, v%d, %s" % (pbase + jj, c, a, sel))
def mm(b, acc, npair):
    if "--nomm" in opts: return
    sb = 48 + 4 * b
    t = "Z%d" % uid[0]; uid[0] += 1
    o("    s_bitcmp0_b32 s%d, 0" % (sb + 3))
    o("    s_cbranch_scc1 %s" % t)
    for i in range(4):
        o("    v_mov_b32 v%d, 0" % (vRB[b] + 4 * (2 * npair - 1) + i))
    o("%s:" % t)
    k16 = npair <= 2
    if npair in (1, 3):
        o("    v_mov_b32 v%d, 0" % (vP + npair))
        o("    v_mov_b32 v%d, 0" % (vP + 4 + npair))
    perms(b, 0, vP, npair)
    for j in range(8):
        if j + 1 < 8:
            perms(b, j + 1, vP + 4 * ((j + 1) & 1), npair)
        if npair == 1 or j == 7:
            o("    s_nop 0")
        pb = vP + 4 * (j & 1)
        c = "v[%d:%d]" % (vD + 4 * j, vD + 4 * j + 3) if acc else "0"
        if k16:
            o("    v_mfma_f32_16x16x16_bf16 v[%d:%d], v[%d:%d], v[%d:%d], %s" % (vD + 4 * j, vD + 4 * j + 3, vS, vS + 1, pb, pb + 1, c))
        else:
            o("    v_mfma_f32_16x16x32_bf16 v[%d:%d], v[%d:%d], v[%d:%d], %s" % (vD + 4 * j, vD + 4 * j + 3, vS, vS + 3, pb, pb + 3, c))

def mm_all(b):
    sb = 48 + 4 * b
    o("    s_and_b32 s39, s%d, 15" % (sb + 3))
    o("    s_bitcmp0_b32 s%d, 4" % (sb + 3))
    o("    s_cbranch_scc1 M%d_acc" % b)
    for acc in (False, True):
        a = "a" if acc else "f"
        if acc: o("M%d_acc:" % b)
        o("    s_cmp_gt_u32 s39, 6")
        o("    s_cbranch_scc1 M%d%s4" % (b, a))
        o("    s_cmp_gt_u32 s39, 4")
        o("    s_cbranch_scc1 M%d%s3" % (b, a))
        o("    s_cmp_gt_u32 s39, 2")
        o("    s_cbranch_scc1 M%d%s2" % (b, a))
        for npair in (1, 2, 3, 4):
            o("M%d%s%d:" % (b, a, npair))
            mm(b, acc, npair)
            if not (acc and npair == 4):
                o("    s_branch M%d_done" % b)
    o("M%d_done:" % b)

def vm_wait(other):
    if NBUF == 1:
        o("    s_waitcnt vmcnt(0) lgkmcnt(0)")
        return
    t = "W%d" % uid[0]; uid[0] += 1
    sb = 48 + 4 * other
    o("    s_and_b32 s39, s%d, 15" % (sb + 3))
    o("    s_cmp_eq_u32 s39, 8")
    o("    s_cbranch_scc1 %s_8" % t)
    o("    s_cmp_ge_u32 s39, 4")
    o("    s_cbranch_scc1 %s_hi" % t)
    o("    s_cmp_ge_u32 s39, 2")
    o("    s_cbranch_scc1 %s_2" % t)
    o("    s_waitcnt vmcnt(0)")
    o("%s_2:" % t)
    o("    s_waitcnt vmcnt(2)")
    o("%s_hi:" % t)
    o("    s_cmp_ge_u32 s39, 6")
    o("    s_cbranch_scc1 %s_6" % t)
    o("    s_waitcnt vmcnt(4)")
    o("%s_6:" % t)
    o("    s_waitcnt vmcnt(6)")
    o("%s_8:" % t)
    o("    s_waitcnt vmcnt(8) lgkmcnt(0)")

def tile_fma(j, w):
    d = vD + 4 * j
    o("    v_mul_f32 v%d, v%d, v%d" % (d, d, w))
    for k in range(1, 4):
        o("    v_fmac_f32 v%d, v%d, v%d" % (d, d + k, w + k))
def wr_read(j, w):
    o("    ds_read_b128 v[%d:%d], v%d offset:%d" % (w, w + 3, vLaneOff, L_WR + 256 * j))
def lock_try():
    o("    s_mov_b64 exec, 1")
    o("    ds_wrxchg_rtn_b32 v%d, v%d, v%d offset:%d" % (vS + 2, vS, vOne, L_LOCK))
    o("    s_mov_b64 exec, -1")
    o("    ds_read_b128 v[%d:%d], v%d" % (vP, vP + 3, vS + 1))
    o("    ds_read_b128 v[%d:%d], v%d offset:1024" % (vP + 4, vP + 7, vS + 1))

def post(b):
    if "--nopost" in opts: return
    sb = 48 + 4 * b
    t = "P%d" % b
    if NBUF == 2:
        wr_read(0, vP); wr_read(1, vP + 4); wr_read(2, vA); wr_read(3, vA + 4)
    o("    s_lshl_b32 s38, s%d, 9" % sb)
    o("    v_add_u32 v0, s38, v%d" % vL8)
    o("    ds_read_b64 v[%d:%d], v0 offset:%d" % (vCG, vCG + 1, L_CG))
    o("    s_lshl_b32 s38, s%d, 2" % (sb + 1))
    o("    v_mov_b32 v%d, s38                    ; lock addr" % vS)
    o("    s_and_b32 s38, s%d, 3" % (sb + 1))
    o("    s_lshl_b32 s38, s38, 6")
    o("    s_lshl_b32 s39, s%d, 11" % (sb + 1))
    o("    s_add_u32 s39, s39, %d" % L_AGG)
    o("    s_or_b32 s38, s38, s39")
    o("    v_xor_b32 v%d, s38, v%d               ; agg addr" % (vS + 1, vAggC))
    o("    v_mov_b32 v%d, 0" % (vS + 3))
    if NBUF == 2:
        o("    s_waitcnt lgkmcnt(4)")
        tile_fma(0, vP)
        o("    s_waitcnt lgkmcnt(3)")
        tile_fma(1, vP + 4)
        wr_read(4, vP); wr_read(5, vP + 4)
        o("    s_waitcnt lgkmcnt(4)")
        tile_fma(2, vA)
        o("    s_waitcnt lgkmcnt(3)")
        tile_fma(3, vA + 4)
        wr_read(6, vA); wr_read(7, vA + 4)
        o("    v_cvt_pk_bf16_f32 v%d, v%d, v%d" % (vD + 2, vD, vD + 4))
        o("    v_cvt_pk_bf16_f32 v%d, v%d, v%d" % (vD + 3, vD + 8, vD + 12))
        o("    s_waitcnt lgkmcnt(3)")
        tile_fma(4, vP)
        o("    s_waitcnt lgkmcnt(2)")
        tile_fma(5, vP + 4)
        lock_try()
        o("    s_waitcnt lgkmcnt(4)")
        tile_fma(6, vA)
        o("    s_waitcnt lgkmcnt(3)")
        tile_fma(7, vA + 4)
    else:
        for j in range(4):
            tile_fma(j, vWR + 4 * j)
        o("    v_cvt_pk_bf16_f32 v%d, v%d, v%d" % (vD + 2, vD, vD + 4))
        o("    v_cvt_pk_bf16_f32 v%d, v%d, v%d" % (vD + 3, vD + 8, vD + 12))
        lock_try()
        for j in range(4, 8):
            tile_fma(j, vWR + 4 * j)
    o("    v_cvt_pk_bf16_f32 v%d, v%d, v%d" % (vD + 6, vD + 16, vD + 20))
    o("    v_cvt_pk_bf16_f32 v%d, v%d, v%d" % (vD + 7, vD + 24, vD + 28))
    o("%s_chk:" % t)
    o("    s_waitcnt lgkmcnt(0)")
    o("    v_readfirstlane_b32 s38, v%d" % (vS + 2))
    o("    s_cmp_eq_u32 s38, 0")
    o("    s_cbranch_scc1 %s_got" % t)
    lock_try()
    o("    s_branch %s_chk" % t)
    o("%s_got:" % t)
    o("    v_mfma_f32_16x16x16_bf16 v[%d:%d], v[%d:%d], v[%d:%d], v[%d:%d]" % (vP, vP + 3, vCG, vCG + 1, vD + 2, vD + 3, vP, vP + 3))
    o("    v_mfma_f32_16x16x16_bf16 v[%d:%d], v[%d:%d], v[%d:%d], v[%d:%d]" % (vP + 4, vP + 7, vCG, vCG + 1, vD + 6, vD + 7, vP + 4, vP + 7))
    o("    s_nop 7")
    o("    ds_write_b128 v%d, v[%d:%d]" % (vS + 1, vP, vP + 3))
    o("    ds_write_b128 v%d, v[%d:%d] offset:1024" % (vS + 1, vP + 4, vP + 7))
    o("    s_mov_b64 exec, 1")
    o("    ds_write_b32 v%d, v%d offset:%d" % (vS, vS + 3, L_LOCK))
    if DF:
        o("    s_andn2_b32 s38, s%d, 3" % (sb + 1))
        o("    v_mov_b32 v%d, s38" % (vS + 2))
        o("    ds_add_u32 v%d, v%d offset:%d" % (vS + 2, vOne, L_TC))
    o("    s_mov_b64 exec, -1")

spf(SPF % 10, "SP3")
if DPW:
    per = 320 // DPW
    assert DPN <= per
    o("    s_cmp_lt_u32 s40, %d" % (16 - DPW))
    o("    s_cbranch_scc1 DP_e")
    o("    s_cmp_lg_u32 s41, 0")
    o("    s_cbranch_scc1 DP_e")
    o("    s_sub_u32 s66, s40, %d" % (16 - DPW))
    o("    s_mul_i32 s66, s66, %d" % (per * 1024))
    o("    s_add_u32 s66, s66, s68")
    o("    v_mov_b32 v0, 0")
    for u in range(1, 4):
        if u > 1:
            o("DP_g%d:" % u)
            o("    ds_read_b32 v%d, v0 offset:%d" % (vQ, L_Q))
            o("    s_waitcnt lgkmcnt(0)")
            o("    v_readfirstlane_b32 s38, v%d" % vQ)
            o("    s_cmp_ge_u32 s38, %d" % (40 * (u - 1) + DPG + 16))
            o("    s_cbranch_scc1 DP_go%d" % u)
            o("    s_sleep 4")
            o("    s_branch DP_g%d" % u)
            o("DP_go%d:" % u)
        o("    s_and_b32 s38, s2, 7")
        o("    s_mul_i32 s38, s38, %d" % (DPN // 8))
        o("    s_mov_b32 s39, %d" % DPN)
        o("DP_l%d:" % u)
        o("    s_sub_u32 s36, s38, %d" % DPN)
        o("    s_min_u32 s38, s38, s36")
        o("    s_lshl_b32 s36, s38, 10")
        o("    s_add_u32 s36, s36, s66")
        for sec in range(4):
            o("    s_load_dword s67, s[4:5], s36 offset:%d" % (u * 256 + sec * 64))
        o("    s_add_u32 s38, s38, 1")
        o("    s_sub_u32 s39, s39, 1")
        o("    s_cmp_lg_u32 s39, 0")
        o("    s_cbranch_scc1 DP_l%d" % u)
    o("    s_mov_b64 exec, 1")
    o("    ds_add_rtn_u32 v%d, v%d, v%d offset:%d" % (vQ, vLaneOff, vOne, L_Q))
    o("    s_mov_b64 exec, -1")
    o("    s_waitcnt lgkmcnt(0)")
    o("    v_readfirstlane_b32 s38, v%d" % vQ)
    o("    s_branch DP_join")
    o("DP_e:")
o("    s_mov_b32 s38, s40")
o("    s_mov_b32 s71, 0")
if DPW:
    o("    s_cmp_lt_u32 s40, %d" % (16 - DPW))
    o("    s_cbranch_scc1 DP_join")
    o("    s_mov_b64 exec, 1")
    o("    ds_add_rtn_u32 v%d, v%d, v%d offset:%d" % (vQ, vLaneOff, vOne, L_Q))
    o("    s_mov_b64 exec, -1")
    o("    s_waitcnt lgkmcnt(0)")
    o("    v_readfirstlane_b32 s38, v%d" % vQ)
    o("DP_join:")
if not SYNCQ: dequeue()
o("    s_mov_b32 s60, 0")
gen_next(True)
o("    s_waitcnt lgkmcnt(0)")
issue_loads(0)
gen_to_slot(0)
if NBUF == 2:
    gen_next()
    o("    s_waitcnt lgkmcnt(0)")
    issue_loads(1)
    gen_to_slot(1)
else:
    for j in range(8):
        wr_read(j, vWR + 4 * j)
o("K2_loop:")
for b in range(NBUF):
    sb = 48 + 4 * b
    o("    s_and_b32 s39, s%d, 15" % (sb + 3))
    o("    s_cbranch_scc0 K2_main_done")
    o("    v_add_u32 v0, s%d, v%d" % (sb + 2, vSC))
    o("    ds_read_b64_tr_b16 v[%d:%d], v0 offset:%d" % (vS, vS + 1, L_S))
    o("    ds_read_b64_tr_b16 v[%d:%d], v0 offset:%d" % (vS + 2, vS + 3, L_S + 512))
    if LATE:
        vm_wait(1 - b)
        mm_all(b)
        gen_next()
        o("    s_waitcnt lgkmcnt(0)")
    else:
        gen_next()
        if SPM:
            o("    s_cmp_ge_u32 s%d, 3" % sb)
            o("    s_cbranch_scc1 SPM_e")
            o("    s_add_u32 s66, s%d, s69" % (sb + 1))
            o("    s_sub_u32 s39, s66, 40")
            o("    s_min_u32 s66, s66, s39")
            o("    s_lshl_b32 s39, s%d, 8" % sb)
            o("    s_add_u32 s39, s39, s68")
            o("    s_bitcmp0_b32 s%d, 4" % (sb + 3))
            o("    s_cbranch_scc1 SPM_2")
            o("    s_mul_i32 s66, s66, %d" % (SPM * 1024))
            o("    s_add_u32 s66, s66, s39")
            for n in range(SPM):
                for sec in range(4):
                    o("    s_load_dword s67, s[4:5], s66 offset:%d" % (n * 1024 + 256 + sec * 64))
            o("    s_branch SPM_e")
            o("SPM_2:")
            if SPM2:
                assert 40 * (SPM + SPM2) <= 320
                o("    s_mul_i32 s66, s66, %d" % (SPM2 * 1024))
                o("    s_add_u32 s66, s66, s39")
                for n in range(SPM2):
                    for sec in range(4):
                        o("    s_load_dword s67, s[4:5], s66 offset:%d" % ((40 * SPM + n) * 1024 + 256 + sec * 64))
            o("SPM_e:")
        vm_wait(1 - b)
        mm_all(b)
    issue_loads(b)
    o("    s_bitcmp0_b32 s%d, 5" % (sb + 3))
    o("    s_cbranch_scc1 K2_cont%d" % b)
    post(b)
    o("K2_cont%d:" % b)
    gen_to_slot(b)
o("    s_branch K2_loop")
o("K2_main_done:")
o("    s_cmp_eq_u32 s41, 0")
o("    s_cbranch_scc1 K2_final")
o("    s_add_u32 s42, s42, 1")
o("    s_cmp_ge_u32 s42, %d" % NSLOW)
o("    s_cbranch_scc1 K2_final")
o("    s_waitcnt vmcnt(0) lgkmcnt(0)")
o("    s_barrier")
o("    s_lshl_b32 s39, s40, 6")
o("    v_lshrrev_b32 v0, 3, v%d" % vL8)
o("    v_add_u32 v0, s39, v0")
o("    s_branch K2_round")

o("K2_final:")
stamp()
if STAMP:
    o("    s_memtime s[78:79]")
    o("    s_waitcnt lgkmcnt(0)")
    o("    s_sub_u32 s78, s78, s76")
vW = 32
vB = 64
vC = 96
if FSW:
    o("    s_cmp_lt_u32 s40, 12")
    o("    s_cbranch_scc1 K2_fin_end")
o("    s_and_b32 s44, s40, 3                 ; dp")
o("    s_lshr_b32 s45, s40, 2                ; rg")
if LAZYW:
    o("    s_lshl_b32 s39, s44, 2")
    o("    v_mov_b32 v8, s39")
    o("    ds_read_b32 v9, v8 offset:%d" % L_FQ)
    o("    s_waitcnt lgkmcnt(0)")
    o("    v_readfirstlane_b32 s39, v9")
    o("    s_cmp_ge_u32 s39, %d" % LAZYW)
    o("    s_cbranch_scc1 K2_fin_end")
o("    s_lshl_b32 s39, s44, 13")
o("    s_add_u32 s39, s39, 0x%x" % WS_WIMG)
o("    v_lshlrev_b32 v8, 1, v%d              ; lane*16" % vL8)
o("    v_add_u32 v8, s39, v8")
o("    v_add_u32 v9, 0x1000, v8")
o("    s_waitcnt vmcnt(0)")
for ts in range(8):
    base = "v8" if ts < 4 else "v9"
    o("    global_load_dwordx4 v[%d:%d], %s, s[22:23] offset:%d" % (vW + 4 * ts, vW + 4 * ts + 3, base, (ts & 3) * 1024))
o("    v_lshrrev_b32 v10, 3, v%d             ; lane" % vL8)
o("    v_bfe_u32 v11, v10, 2, 2              ; nl")
o("    v_and_b32 v12, 3, v10                 ; w")
o("    v_lshrrev_b32 v17, 4, v10             ; q")
o("    v_and_b32 v13, 15, v10")
o("    v_xor_b32 v13, v13, v17               ; q ^ col")
o("    v_lshlrev_b32 v15, 11, v11")
o("    v_lshl_add_u32 v15, v12, 8, v15")
o("    v_lshl_add_u32 v15, v13, 4, v15")
o("    v_lshlrev_b32 v16, 18, v11")
o("    v_lshl_add_u32 v16, v12, 8, v16")
o("    v_lshl_add_u32 v16, v17, 4, v16")
o("    s_lshl_b32 s39, s2, 10")
o("    s_lshl_b32 s46, s44, 6")
o("    s_add_u32 s39, s39, s46")
o("    v_add_u32 v16, s39, v16")
if DF:
    o("    s_lshl_b32 s39, s44, 2")
    o("    v_mov_b32 v8, s39")
    o("    v_mov_b32 v14, 1")
    o("    s_mov_b64 exec, 1")
    o("    ds_add_rtn_u32 v9, v8, v14 offset:%d" % L_FQ)
    o("    s_mov_b64 exec, -1")
    stamp()
    o("    s_waitcnt vmcnt(0)")
    o("K2_fin_loop:")
    o("    s_waitcnt lgkmcnt(0)")
    o("    v_readfirstlane_b32 s45, v9")
    o("    s_cmp_ge_u32 s45, 10")
    o("    s_cbranch_scc1 K2_fin_end")
    o("    s_lshl_b32 s39, s45, 2")
    o("    v_mov_b32 v10, s39")
    o("K2_fin_wait:")
    o("    ds_read_b32 v11, v10 offset:%d" % L_TC)
    o("    s_waitcnt lgkmcnt(0)")
    o("    v_readfirstlane_b32 s39, v11")
    o("    s_cmp_ge_u32 s39, 16")
    o("    s_cbranch_scc1 K2_fin_go")
    o("    s_sleep 2")
    o("    s_branch K2_fin_wait")
    o("K2_fin_go:")
else:
    o("    s_waitcnt lgkmcnt(0)")
    o("    s_barrier")
    stamp()
    o("    s_waitcnt vmcnt(0)")
    o("K2_fin_loop:")
o("    s_lshl_b32 s39, s45, 13               ; rt*8192")
o("    s_add_u32 s39, s39, %d" % L_AGG)
o("    v_add_u32 v18, s39, v15")
for s in range(4):
    if s:
        o("    v_xor_b32 v19, %d, v18" % (64 * s))
    a = "v19" if s else "v18"
    o("    ds_read_b128 v[%d:%d], %s" % (vB + 8 * s, vB + 8 * s + 3, a))
    o("    ds_read_b128 v[%d:%d], %s offset:1024" % (vB + 8 * s + 4, vB + 8 * s + 7, a))
if DF:
    o("    s_mov_b64 exec, 1")
    o("    ds_add_rtn_u32 v9, v8, v14 offset:%d" % L_FQ)
    o("    s_mov_b64 exec, -1")
for s in range(4):
    o("    s_waitcnt lgkmcnt(%d)" % (6 - 2 * s + (1 if DF else 0)))
    for p in range(4):
        o("    v_cvt_pk_bf16_f32 v%d, v%d, v%d" % (vC + 4 * s + p, vB + 8 * s + 2 * p, vB + 8 * s + 2 * p + 1))
o("    s_nop 1")
for s in range(4):
    for t in range(2):
        a = vW + 4 * (t * 4 + s)
        acc = 20 + 4 * t
        c = "0" if s == 0 else "v[%d:%d]" % (acc, acc + 3)
        o("    v_mfma_f32_16x16x32_bf16 v[%d:%d], v[%d:%d], v[%d:%d], %s" % (acc, acc + 3, a, a + 3, vC + 4 * s, vC + 4 * s + 3, c))
o("    s_lshl_b32 s39, s45, 20               ; rt*4*256*1024")
o("    s_nop 7")
for p in range(4):
    o("    v_cvt_pk_bf16_f32 v%d, v%d, v%d" % (28 + p, 20 + 2 * p, 21 + 2 * p))
o("    buffer_store_dwordx4 v[28:31], v16, s[28:31], s39 offen" + OST)
if DF:
    o("    s_branch K2_fin_loop")
    o("K2_fin_end:")
else:
    o("    s_add_u32 s45, s45, 4")
    o("    s_cmp_lt_u32 s45, 10")
    o("    s_cbranch_scc1 K2_fin_loop")
if STAMP:
    stamp()
    o("    s_waitcnt vmcnt(0)")
    stamp()
    o("    s_lshl_b32 s39, s2, 4")
    o("    s_add_u32 s39, s39, s40")
    o("    s_lshl_b32 s39, s39, 6")
    o("    s_add_u32 s39, s39, 0x8000000")
    o("    v_mov_b32 v1, s39")
    for i in range(nstamp[0]):
        o("    v_mov_b32 v2, s%d" % (84 + 2 * i))
        o("    global_store_dword v1, v2, s[22:23] offset:%d" % (4 * i))
    if "--dbgstamp" in opts:
        o("    s_load_dwordx2 s[66:67], s[0:1], 72")
        o("    s_waitcnt lgkmcnt(0)")
        o("    s_cmp_lg_u32 s40, 0")
        o("    s_cbranch_scc1 DBG_skip")
        o("    v_mov_b32 v3, 0")
        o("    s_mov_b64 exec, 1")
        for i in range(nstamp[0]):
            o("    v_mov_b32 v2, s%d" % (84 + 2 * i))
            o("    global_atomic_umax v3, v2, s[66:67] offset:%d" % (-512 + 20 + 4 * i))
        o("    s_not_b32 s39, s84")
        o("    v_mov_b32 v2, s39")
        o("    global_atomic_umax v3, v2, s[66:67] offset:%d" % (-512 + 16))
        o("    s_mov_b64 exec, -1")
        o("DBG_skip:")
    o("    v_mov_b32 v2, s72")
    o("    global_store_dword v1, v2, s[22:23] offset:%d" % (4 * 11))
    o("    v_mov_b32 v2, s74")
    o("    global_store_dword v1, v2, s[22:23] offset:%d" % (4 * 12))
    o("    v_mov_b32 v2, s78")
    o("    global_store_dword v1, v2, s[22:23] offset:%d" % (4 * 13))
    o("    v_mov_b32 v2, s41")
    o("    global_store_dword v1, v2, s[22:23] offset:%d" % (4 * 14))
    o("    v_mov_b32 v2, s34")
    o("    global_store_dword v1, v2, s[22:23] offset:%d" % (4 * 15))
o("K2_done:")
o("    s_endpgm")

o('.section .rodata,"a"')
for kn, vg, sg in (("gs_bin_kernel", 48, 64 if STAMP else 32), (KN, 128, 102 if STAMP else 72)):
    o(".p2align 6")
    o(".amdhsa_kernel %s" % kn)
    o("  .amdhsa_next_free_vgpr %d" % vg)
    o("  .amdhsa_next_free_sgpr %d" % sg)
    o("  .amdhsa_accum_offset %d" % vg)
    o("  .amdhsa_group_segment_fixed_size 0")
    o("  .amdhsa_kernarg_size 88")
    o("  .amdhsa_user_sgpr_count 2")
    o("  .amdhsa_user_sgpr_kernarg_segment_ptr 1")
    o("  .amdhsa_system_sgpr_workgroup_id_x 1")
    o("  .amdhsa_float_denorm_mode_32 3")
    o(".end_amdhsa_kernel")

path = args[0] if args else "cdna_kernels/%s.s" % NAME
open(path, "w").write("\n".join(out) + "\n")
print("wrote", path, "K2_LDS", K2_LDS, "K1_LDS", K1_LDS, "L_S", L_S, "L_AGG", L_AGG)
```

```python
import sys
NAME = "gather_scatter__tensor_product_equiv_mace__graph"
N = 10000
E = 320000
CHUNK = 1280
NCHUNK = E // CHUNK
REC_BYTES = 20
WS_TAB = 0x700000
WS_WIMG = 0x780000

opts = [a for a in sys.argv[1:] if a.startswith("--")]
args = [a for a in sys.argv[1:] if not a.startswith("--")]
STAMP = "--stamp" in opts
def optval(name, default):
    for a in opts:
        if a.startswith("--" + name + "="):
            return int(a.split("=")[1])
    return default
NBUF = optval("nbuf", 1)
TABSC1 = optval("tabsc1", 0)
K1T = optval("k1t", 0)
LB1 = optval("lb1", 0)
RPF = optval("rpf", 0)
KEYG = optval("keyg", 0)
NT2 = " nt" if optval("nt2", 0) else ""
K1ST = {0: "", 1: " sc1", 2: " nt"}[optval("k1st", 1)]
OST = {0: "", 1: " sc1", 2: " nt", 3: " sc1 nt"}[optval("ost", 1)]
K1D = optval("k1d", 0)
LAZYW = optval("lazyw", 0)
DF = optval("df", 1)
FSW = optval("fsw", 0)
ROT = optval("rot", 0)
DPW = optval("dpw", 0)
DPN = optval("dpn", 40)
DPG = optval("dpg", 8)
SPM = optval("spm", 0)
SPM2 = optval("spm2", 0)
SP0A = optval("sp0a", 0)
SP0B = optval("sp0b", 0)
B2T = optval("b2t", 0)
TLB = optval("tlb", 0)
SYNCQ = optval("syncq", 0)
LATE = optval("late", 0)
SKEW = optval("skew", 0)
PF1 = optval("pf1", 0)
PF2 = optval("pf2", 0)

out = []
def o(s=""):
    out.append(s)
nstamp = [0]
def stamp():
    if not STAMP: return
    i = nstamp[0]; nstamp[0] += 1
    o("    s_memrealtime s[%d:%d]" % (84 + 2 * i, 85 + 2 * i))
    o("    s_waitcnt lgkmcnt(0)")

HEADER = open("cdna_kernels/%s.s.ref" % NAME).read().split("\n")
hdr = [l for l in HEADER if l.startswith(";") and "@launch" not in l and "Override" not in l and "grid=ceil" not in l]

CAP = 1536
NKMAX = 40 + CAP // 32
L_WR = 0
L_CG = L_WR + 2048
L_CNT = L_CG + 2048
L_TABS = L_CNT + 256
L_LOCK = L_TABS + 256
L_FLAG = L_LOCK + 256
L_Q = L_FLAG + 4
L_FQ = L_FLAG + 16
L_TC = L_FLAG + 64
L_SOFF = L_FLAG + 256
L_S = L_SOFF + (NKMAX + 1) * 128
L_S = (L_S + 255) // 256 * 256
L_AGG = L_S + (CAP + 32) * 32
L_AGG = (L_AGG + 2047) // 2048 * 2048
L_END = L_AGG + 40 * 2048
K2_LDS = L_END
assert K2_LDS <= 160 * 1024
OOB = 0x7f000000

K1_THREADS = 640
K1L_HIST = 0
K1L_OFFS = 1024
K1L_STG = 2048
K1_LDS = K1L_STG + CHUNK * REC_BYTES

for l in hdr:
    o(l)
o("; @launch kernel=gs_bin_kernel grid=(256,1,1) block=(%d,1,1) lds=%d" % (K1_THREADS, K1_LDS))
o("; @launch kernel=%s_kernel grid=(256,1,1) block=(1024,1,1) lds=%d" % (NAME, K2_LDS))
o('.amdgcn_target "amdgcn-amd-amdhsa--gfx950"')
o(".text")

def dpp_scan(v):
    for sh in (1, 2, 4, 8):
        o("    s_nop 1")
        o("    v_add_u32_dpp %s, %s, %s row_shr:%d row_mask:0xf bank_mask:0xf bound_ctrl:0" % (v, v, v, sh))
    o("    s_nop 1")
    o("    v_add_u32_dpp %s, %s, %s row_bcast:15 row_mask:0xa bank_mask:0xf" % (v, v, v))
    o("    s_nop 1")
    o("    v_add_u32_dpp %s, %s, %s row_bcast:31 row_mask:0xc bank_mask:0xf" % (v, v, v))
    o("    s_nop 1")

o(".globl gs_bin_kernel")
o(".p2align 8")
o(".type gs_bin_kernel,@function")
o("gs_bin_kernel:")
k1n = [0]
def stamp1():
    if not STAMP: return
    i = k1n[0]; k1n[0] += 1
    o("    s_memrealtime s[%d:%d]" % (40 + 2 * i, 41 + 2 * i))
    o("    s_waitcnt lgkmcnt(0)")
def stamp1_flush():
    if not STAMP: return
    o("    s_mov_b64 exec, -1")
    o("    s_waitcnt vmcnt(0)")
    o("    s_memrealtime s[50:51]")
    o("    s_waitcnt lgkmcnt(0)")
    if "--dbgstamp" in opts:
        o("    s_load_dwordx2 s[52:53], s[0:1], 72")
        o("    s_waitcnt lgkmcnt(0)")
        o("    v_cmp_eq_u32 vcc, 0, v0")
        o("    s_and_saveexec_b64 s[24:25], vcc")
        o("    s_cbranch_execz DBG1_skip")
        o("    v_mov_b32 v3, 0")
        o("    s_not_b32 s3, s40")
        o("    v_mov_b32 v2, s3")
        o("    global_atomic_umax v3, v2, s[52:53] offset:512")
        o("    v_mov_b32 v2, s42")
        o("    global_atomic_umax v3, v2, s[52:53] offset:516")
        o("    v_mov_b32 v2, s46")
        o("    global_atomic_umax v3, v2, s[52:53] offset:520")
        o("    v_mov_b32 v2, s50")
        o("    global_atomic_umax v3, v2, s[52:53] offset:524")
        o("DBG1_skip:")
        o("    s_mov_b64 exec, -1")
    o("    v_lshrrev_b32 v1, 6, v0")
    o("    s_lshl_b32 s3, s2, 4")
    o("    v_add_u32 v1, s3, v1")
    o("    v_lshlrev_b32 v1, 6, v1")
    o("    v_add_u32 v1, 0x9000000, v1")
    for i in range(6):
        o("    v_mov_b32 v2, s%d" % (40 + 2 * i))
        o("    global_store_dword v1, v2, s[22:23] offset:%d" % (4 * i))
stamp1()
o("    s_cmp_ge_u32 s2, 256")
o("    s_cbranch_scc1 K1_done")
o("    s_load_dwordx16 s[4:19], s[0:1], 0")
o("    s_load_dwordx2 s[22:23], s[0:1], 80")
o("    s_cmp_ge_u32 s2, %d" % NCHUNK)
o("    s_cbranch_scc1 K1_wimg")
o("    s_mul_i32 s3, s2, %d" % CHUNK)
o("    v_lshl_add_u32 v1, v0, 1, s3")
o("    v_lshlrev_b32 v2, 2, v1               ; *4")
o("    v_lshlrev_b32 v3, 3, v1               ; *8")
o("    v_lshlrev_b32 v20, 2, v0              ; tid*4")
o("    v_mov_b32 v21, 0")
o("    v_mov_b32 v22, 1")
o("    s_waitcnt lgkmcnt(0)")
o("    global_load_dwordx2 v[4:5], v2, s[8:9] nt      ; dst")
def k1_rest():
    o("    global_load_dwordx2 v[6:7], v2, s[6:7] nt     ; src")
    o("    global_load_dwordx4 v[8:11], v3, s[10:11] nt  ; sh")
    o("    global_load_dwordx4 v[12:15], v3, s[12:13] nt ; ea")
if not K1D: k1_rest()
def k1_prefetch():
    n = 0
    if PF1 & 1:
        o("    s_lshr_b32 s3, s2, 3")
        o("    s_mul_i32 s3, s3, %d" % K1_THREADS)
        o("    s_and_b32 s26, s2, 7")
        o("    s_mul_i32 s26, s26, 2500")
        o("    s_add_u32 s3, s3, s26")
        o("    v_add_u32 v36, s3, v0")
        o("    v_subrev_u32 v37, 20000, v36")
        o("    v_min_u32 v36, v36, v37               ; mod 20000")
        o("    v_lshrrev_b32 v37, 1, v36")
        o("    v_and_b32 v36, 1, v36")
        o("    v_lshlrev_b32 v36, 7, v36")
        o("    v_lshl_add_u32 v36, v37, 10, v36")
        o("    global_load_dword v40, v36, s[4:5]")
        n += 1
    if PF1 & 2:
        o("    s_mul_i32 s3, s2, 240")
        o("    v_min_u32 v37, 239, v0")
        o("    v_add_u32 v36, s3, v37")
        o("    v_min_u32 v36, 59999, v36")
        o("    s_mov_b32 s26, 43691")
        o("    v_mul_lo_u32 v37, v36, s26")
        o("    v_lshrrev_b32 v37, 18, v37            ; /6")
        o("    v_mul_u32_u24 v39, 6, v37")
        o("    v_sub_u32 v39, v36, v39")
        o("    v_lshlrev_b32 v39, 7, v39")
        o("    v_lshl_add_u32 v36, v37, 10, v39")
        o("    global_load_dword v41, v36, s[4:5] offset:256")
        n += 1
    return n
NPF = 0
if TLB & 4:
    o("    s_mul_i32 s3, s2, %d" % (CHUNK * REC_BYTES))
    o("    v_mov_b32 v36, s3")
    o("    global_load_dword v40, v36, s[22:23]")
    o("    s_lshl_b32 s3, s2, 10")
    o("    s_add_u32 s3, s3, 0x%x" % WS_TAB)
    o("    v_mov_b32 v37, s3")
    o("    global_load_dword v41, v37, s[22:23]")
    NPF = 2
o("    v_cmp_gt_u32 vcc, 256, v0")
o("    s_and_saveexec_b64 s[24:25], vcc")
o("    ds_write_b32 v20, v21 offset:%d" % K1L_HIST)
o("    s_mov_b64 exec, s[24:25]")
o("    s_waitcnt lgkmcnt(0)")
o("    s_barrier")
if K1D == 1: k1_rest()
if K1D == 2:
    o("    s_waitcnt vmcnt(0)")
    k1_rest()
o("    s_waitcnt vmcnt(%d)" % (3 + NPF))
stamp1()
if PF1 & 4: NPF = k1_prefetch()
if KEYG:
    for d, r, t in (("v4", "v16", "v42"), ("v5", "v17", "v43")):
        o("    v_and_b32 %s, 7, %s" % (r, d))
        o("    v_bfe_u32 %s, %s, 3, 5" % (t, d))
        o("    v_lshlrev_b32 %s, 2, %s" % (t, t))
        o("    v_lshl_or_b32 %s, %s, 7, %s" % (r, r, t))
else:
    o("    v_and_b32 v16, 255, v4")
    o("    v_and_b32 v17, 255, v5")
    o("    v_lshlrev_b32 v16, 2, v16")
    o("    v_lshlrev_b32 v17, 2, v17")
o("    ds_add_rtn_u32 v18, v16, v22 offset:%d" % K1L_HIST)
o("    ds_add_rtn_u32 v19, v17, v22 offset:%d" % K1L_HIST)
o("    v_lshrrev_b32 v4, 8, v4")
o("    v_lshrrev_b32 v5, 8, v5")
o("    s_waitcnt lgkmcnt(0)")
o("    s_barrier")
o("    v_cmp_gt_u32 vcc, 64, v0")
o("    s_and_saveexec_b64 s[24:25], vcc")
o("    s_cbranch_execz K1_scan_done")
o("    v_lshlrev_b32 v23, 4, v0")
o("    ds_read_b128 v[24:27], v23 offset:%d" % K1L_HIST)
o("    s_waitcnt lgkmcnt(0)")
o("    v_add_u32 v28, v24, v25")
o("    v_add_u32 v29, v28, v26")
o("    v_add_u32 v30, v29, v27")
o("    v_mov_b32 v31, v30")
dpp_scan("v31")
o("    v_sub_u32 v32, v31, v30")
o("    v_add_u32 v33, v32, v24")
o("    v_add_u32 v34, v32, v28")
o("    v_add_u32 v35, v32, v29")
o("    ds_write_b128 v23, v[32:35] offset:%d" % K1L_OFFS)
o("    v_lshl_or_b32 v36, v24, 16, v32")
o("    v_lshl_or_b32 v37, v25, 16, v33")
o("    v_lshl_or_b32 v38, v26, 16, v34")
o("    v_lshl_or_b32 v39, v27, 16, v35")
o("    s_and_b32 s3, s2, 7")
o("    s_lshl_b32 s3, s3, 5")
o("    s_lshr_b32 s26, s2, 3")
o("    s_add_u32 s3, s3, s26")
o("    s_lshl_b32 s3, s3, 2")
o("    s_add_u32 s3, s3, 0x%x" % WS_TAB)
o("    v_lshl_add_u32 v23, v0, 12, s3        ; bucket 4l -> (4l)*1024")
for i in range(4):
    o("    global_store_dword v23, v%d, s[22:23] offset:%d%s" % (36 + i, 1024 * i, " sc1" if TABSC1 else ""))
o("    s_waitcnt lgkmcnt(0)")
o("K1_scan_done:")
o("    s_mov_b64 exec, s[24:25]")
o("    s_barrier")
stamp1()
o("    ds_read_b32 v24, v16 offset:%d" % K1L_OFFS)
o("    ds_read_b32 v25, v17 offset:%d" % K1L_OFFS)
o("    s_waitcnt vmcnt(%d)" % NPF)
stamp1()
if K1T:
    o("    v_cmp_gt_u32 vcc, %d, v0" % (128 * K1T))
    o("    s_and_saveexec_b64 s[26:27], vcc")
    o("    s_cbranch_execz K1_t_skip")
    o("    v_and_b32 v36, 63, v0")
    o("    v_min_u32 v36, 39, v36")
    o("    s_mul_i32 s3, s2, 40")
    o("    v_add_u32 v36, s3, v36")
    o("    v_lshrrev_b32 v37, 6, v0")
    o("    v_lshlrev_b32 v37, 7, v37")
    o("    v_lshl_add_u32 v36, v36, 10, v37")
    o("    global_load_dword v40, v36, s[4:5]")
    o("K1_t_skip:")
    o("    s_mov_b64 exec, s[26:27]")
o("    v_lshl_or_b32 v4, v4, 16, v6")
o("    v_lshl_or_b32 v5, v5, 16, v7")
o("    s_waitcnt lgkmcnt(0)")
o("    v_add_u32 v24, v24, v18")
o("    v_add_u32 v25, v25, v19")
o("    v_mul_u32_u24 v24, %d, v24" % REC_BYTES)
o("    v_mul_u32_u24 v25, %d, v25" % REC_BYTES)
o("    v_add_u32 v24, %d, v24" % K1L_STG)
o("    v_add_u32 v25, %d, v25" % K1L_STG)
o("    ds_write2_b32 v24, v8, v9 offset0:0 offset1:1")
o("    ds_write2_b32 v24, v12, v13 offset0:2 offset1:3")
o("    ds_write_b32 v24, v4 offset:16")
o("    ds_write2_b32 v25, v10, v11 offset0:0 offset1:1")
o("    ds_write2_b32 v25, v14, v15 offset0:2 offset1:3")
o("    ds_write_b32 v25, v5 offset:16")
o("    s_waitcnt lgkmcnt(0)")
o("    s_barrier")
stamp1()
o("    v_lshlrev_b32 v23, 4, v0")
o("    ds_read_b128 v[4:7], v23 offset:%d" % K1L_STG)
o("    ds_read_b128 v[8:11], v23 offset:%d" % (K1L_STG + K1_THREADS * 16))
o("    s_mul_i32 s3, s2, %d" % (CHUNK * REC_BYTES))
o("    v_add_u32 v24, s3, v23")
o("    v_add_u32 v25, %d, v24" % (K1_THREADS * 16))
o("    v_add_u32 v26, %d, v24" % (2 * K1_THREADS * 16))
o("    v_cmp_gt_u32 vcc, %d, v0" % (CHUNK * REC_BYTES // 16 - 2 * K1_THREADS))
o("    s_waitcnt lgkmcnt(1)")
o("    global_store_dwordx4 v24, v[4:7], s[22:23]" + K1ST)
o("    s_waitcnt lgkmcnt(0)")
o("    global_store_dwordx4 v25, v[8:11], s[22:23]" + K1ST)
o("    s_and_saveexec_b64 s[24:25], vcc")
o("    s_cbranch_execz K1_end2")
o("    ds_read_b128 v[12:15], v23 offset:%d" % (K1L_STG + 2 * K1_THREADS * 16))
o("    s_waitcnt lgkmcnt(0)")
o("    global_store_dwordx4 v26, v[12:15], s[22:23]" + K1ST)
o("K1_end2:")
stamp1_flush()
o("    s_endpgm")
o("K1_wimg:")
o("    s_cmp_ge_u32 s2, %d" % (NCHUNK + 4))
o("    s_cbranch_scc1 K1_done")
o("    v_cmp_gt_u32 vcc, 512, v0")
o("    s_and_saveexec_b64 s[24:25], vcc")
o("    s_cbranch_execz K1_done")
o("    s_sub_u32 s3, s2, %d                  ; dp" % NCHUNK)
o("    v_bfe_u32 v1, v0, 8, 1                ; t")
o("    v_bfe_u32 v2, v0, 6, 2                ; s")
o("    v_bfe_u32 v3, v0, 4, 2                ; q")
o("    v_bfe_u32 v5, v0, 2, 2                ; i>>2")
o("    v_and_b32 v6, 3, v0                   ; i&3")
o("    v_lshlrev_b32 v7, 3, v3               ; q*8")
o("    v_lshl_add_u32 v7, v2, 5, v7          ; c0 = 32s + 8q")
o("    v_lshlrev_b32 v8, 3, v5")
o("    v_lshl_add_u32 v8, v1, 2, v8")
o("    v_add_u32 v8, v8, v6")
o("    s_lshl_b32 s26, s3, 5")
o("    v_add_u32 v8, s26, v8                 ; d")
o("    v_lshlrev_b32 v8, 1, v8")
o("    v_lshl_add_u32 v8, v7, 8, v8")
o("    s_waitcnt lgkmcnt(0)")
for j in range(8):
    o("    global_load_ushort v%d, v8, s[18:19] offset:%d" % (16 + j, 256 * j))
o("    s_lshl_b32 s26, s3, 13")
o("    s_add_u32 s26, s26, 0x%x" % WS_WIMG)
o("    v_lshl_add_u32 v11, v0, 4, s26")
o("    s_waitcnt vmcnt(0)")
for p in range(4):
    o("    v_lshl_or_b32 v%d, v%d, 16, v%d" % (12 + p, 17 + 2 * p, 16 + 2 * p))
o("    global_store_dwordx4 v11, v[12:15], s[22:23] sc1")
o("K1_done:")
o("    s_endpgm")

KN = NAME + "_kernel"
o(".globl %s" % KN)
o(".p2align 8")
o(".type %s,@function" % KN)
o("%s:" % KN)
vLaneOff = 1; vSoffC = 2; vSC = 3; vAggC = 4; vL8 = 5; vND = 6; vQ = 7
vP = 8; vS = 16; vCG = 20; vT = 22; vOne = 23; vA = 24
vRB = [32, 64]; vD = 96; vWR = 64
vREC = 32
vMETA = 96; vRANK = 104; vCA = 112
MM = 8

TPC = 3
NSLOW = (E + 1023) // 1024
PFX = optval("pfx", 0)
PF0 = optval("pf0", 0)
TLB = optval("tlb", 0)
SPF = optval("spf", 0)
spf_u = [0]
def spf(nsl, tag):
    if nsl == 0: return
    o("    s_cmp_lt_u32 s40, 12")
    o("    s_cbranch_scc1 %s_e" % tag)
    o("    s_cmp_ge_u32 s2, 250")
    o("    s_cbranch_scc1 %s_e" % tag)
    o("    s_cmp_lg_u32 s41, 0")
    o("    s_cbranch_scc1 %s_e" % tag)
    for k in range(nsl):
        u = spf_u[0]; spf_u[0] += 1
        o("    s_mul_i32 s66, s2, %d" % (40 * 1024))
        o("    s_lshl_b32 s39, s40, 6")
        o("    s_add_u32 s66, s66, s39")
        o("    s_add_u32 s66, s66, %d" % (u * 256 - 12 * 64))
        o("    s_mov_b32 s39, 5")
        o("%s_l%d:" % (tag, k))
        for j in range(8):
            o("    s_load_dword s67, s[4:5], s66 offset:%d" % (j * 1024))
        o("    s_add_u32 s66, s66, 8192")
        o("    s_sub_u32 s39, s39, 1")
        o("    s_cmp_lg_u32 s39, 0")
        o("    s_cbranch_scc1 %s_l%d" % (tag, k))
    o("%s_e:" % tag)
PFM = optval("pfm", 0)
o("    s_cmp_ge_u32 s2, 256")
o("    s_cbranch_scc1 K2_done")
stamp()
o("    s_load_dwordx2 s[22:23], s[0:1], 80")
o("    s_load_dwordx16 s[4:19], s[0:1], 0")
o("    s_load_dwordx2 s[20:21], s[0:1], 64")
o("    v_and_b32 v8, 63, v0                  ; lane")
o("    v_lshrrev_b32 v9, 6, v0")
o("    s_mov_b32 s44, 21846")
o("    v_readfirstlane_b32 s40, v9")
o("    v_mul_lo_u32 v14, v0, s44")
o("    v_lshrrev_b32 v14, 16, v14")
o("    v_mul_u32_u24 v17, 3, v14")
o("    v_sub_u32 v17, v0, v17                ; i0 = tid%3")
if KEYG:
    o("    s_and_b32 s3, s2, 7")
    o("    s_lshl_b32 s3, s3, 5")
    o("    s_lshr_b32 s43, s2, 3")
    o("    s_or_b32 s3, s3, s43")
    o("    s_lshl_b32 s3, s3, 10")
else:
    o("    s_lshl_b32 s3, s2, 10")
o("    s_add_u32 s43, s3, 0x%x               ; TAB + b*1024" % WS_TAB)
o("    v_lshl_add_u32 v15, v14, 2, s43")
o("    v_and_b32 v16, 31, v14")
o("    v_lshrrev_b32 v14, 5, v14")
o("    v_lshl_add_u32 v14, v16, 3, v14       ; chunk")
o("    v_and_b32 v9, 15, v8                  ; col")
o("    v_lshrrev_b32 v10, 4, v8              ; g")
o("    v_lshlrev_b32 v%d, 4, v9              ; laneoff = col*16" % vLaneOff)
o("    s_cmp_ge_u32 s40, 12")
o("    s_waitcnt lgkmcnt(0)")
o("    s_cbranch_scc1 K2_hiwaves")
if TLB & 1:
    o("    s_mov_b32 s47, %d" % (CHUNK * REC_BYTES))
    o("    v_mul_lo_u32 v19, v16, s47")
    o("    s_mul_i32 s3, s2, 100")
    o("    v_add_u32 v19, s3, v19")
o("    global_load_dword v16, v15, s[22:23]")
if TLB & 1:
    o("    global_load_dword v120, v19, s[22:23]")
o("    s_branch K2_tabs_issued")
o("K2_hiwaves:")
if RPF:
    o("    v_subrev_u32 v24, 768, v0")
    o("    v_lshrrev_b32 v25, 5, v24")
    o("    s_andn2_b32 s3, s2, 7")
    o("    v_add_u32 v25, s3, v25                ; chunk")
    o("    v_min_u32 v25, %d, v25" % (NCHUNK - 1))
    o("    s_mov_b32 s47, %d" % (CHUNK * REC_BYTES))
    o("    v_mul_lo_u32 v25, v25, s47")
    o("    v_and_b32 v24, 31, v24")
    o("    v_lshl_add_u32 v24, v24, 7, v25")
    o("    s_and_b32 s3, s2, 7")
    o("    s_mul_i32 s3, s3, 3200")
    o("    v_add_u32 v24, s3, v24")
    o("    v_max_u32 v24, 448, v24")
    o("    global_load_dword v123, v24, s[22:23] offset:-448")
o("    s_mov_b32 s24, s4")
o("    s_and_b32 s25, s5, 0xffff")
o("    s_mov_b32 s26, %d" % (N * 1024))
o("    s_mov_b32 s27, 0x00020000")
o("    s_cmp_eq_u32 s40, 13")
o("    s_cbranch_scc1 K2_cg_issue")
o("    s_cmp_lg_u32 s40, 14")
o("    s_cbranch_scc1 K2_pf")
for k in range(4):
    o("    global_load_dwordx4 v[%d:%d], v%d, s[16:17] offset:%d" % (96 + 4 * k, 96 + 4 * k + 3, vLaneOff, 256 * k))
o("    s_branch K2_pf")
o("K2_cg_issue:")
o("    v_lshrrev_b32 v11, 2, v9")
o("    v_lshlrev_b32 v18, 3, v10")
o("    v_lshl_add_u32 v18, v11, 1, v18")
for u in range(4):
    o("    global_load_ushort v%d, v18, s[14:15] offset:%d" % (96 + u, 32 * u))
o("K2_pf:")
NPF2 = 0
if TLB & 2:
    o("    v_subrev_u32 v24, 768, v0")
    o("    v_lshlrev_b32 v24, 16, v24")
    o("    buffer_load_dword v121, v24, s[24:27], 0 offen")
    o("    v_min_u32 v24, 0x9c0000, v24")
    o("    global_load_dword v122, v24, s[20:21]")
    NPF2 += 2
if PFX & 1:
    o("    s_lshr_b32 s3, s2, 3")
    o("    s_mul_i32 s3, s3, 313")
    o("    s_and_b32 s44, s2, 7")
    o("    s_mul_i32 s44, s44, 1250")
    o("    s_add_u32 s3, s3, s44")
    o("    s_sub_u32 s3, s3, 768")
    o("    v_add_u32 v24, s3, v0")
    o("    v_subrev_u32 v25, 10000, v24")
    o("    v_min_u32 v24, v24, v25")
    o("    v_lshlrev_b32 v24, 10, v24")
    o("    buffer_load_dword v120, v24, s[24:27], 0 offen")
    o("    buffer_load_dword v121, v24, s[24:27], 0 offen offset:128")
    o("    v_subrev_u32 v26, 768, v0")
    o("    v_lshrrev_b32 v24, 1, v26")
    o("    v_min_u32 v24, 56, v24")
    o("    s_add_u32 s3, s3, %d" % (768 + 256))
    o("    v_add_u32 v24, s3, v24")
    o("    v_subrev_u32 v25, 10000, v24")
    o("    v_min_u32 v24, v24, v25")
    o("    v_lshlrev_b32 v24, 10, v24")
    o("    v_and_b32 v26, 1, v26")
    o("    v_lshl_add_u32 v24, v26, 7, v24")
    o("    buffer_load_dword v122, v24, s[24:27], 0 offen")
    NPF2 += 3
if PFX & 2:
    o("    s_lshl_b32 s3, s2, 8")
    o("    s_sub_u32 s3, s3, 768")
    o("    v_add_u32 v24, s3, v0")
    o("    s_mov_b32 s44, 43691")
    o("    v_mul_lo_u32 v25, v24, s44")
    o("    v_lshrrev_b32 v25, 18, v25            ; /6")
    o("    v_mul_u32_u24 v26, 6, v25")
    o("    v_sub_u32 v26, v24, v26")
    o("    v_lshlrev_b32 v26, 7, v26")
    o("    v_lshl_add_u32 v24, v25, 10, v26")
    o("    buffer_load_dword v124, v24, s[24:27], 0 offen offset:256")
    NPF2 += 1
if PFX & 4:
    o("    s_mul_i32 s3, s2, 313")
    o("    s_sub_u32 s3, s3, 768")
    o("    v_add_u32 v24, s3, v0")
    o("    v_lshlrev_b32 v24, 7, v24")
    o("    buffer_load_dword v124, v24, s[24:27], 0 offen")
    o("    v_subrev_u32 v26, 768, v0")
    o("    v_min_u32 v26, 56, v26")
    o("    s_add_u32 s3, s3, %d" % (768 + 256))
    o("    v_add_u32 v24, s3, v26")
    o("    v_lshlrev_b32 v24, 7, v24")
    o("    buffer_load_dword v125, v24, s[24:27], 0 offen")
    NPF2 += 2
o("K2_tabs_issued:")
o("    v_lshlrev_b32 v%d, 5, v10             ; g*32" % vSoffC)
o("    v_lshrrev_b32 v11, 2, v9              ; r = col>>2")
o("    v_and_b32 v12, 3, v9                  ; c = col&3")
o("    v_lshl_add_u32 v13, v11, 2, v10       ; 4r+g")
o("    v_lshlrev_b32 v13, 5, v13")
o("    v_lshl_add_u32 v%d, v12, 3, v13       ; (4r+g)*32 + c*8" % vSC)
o("    v_xor_b32 v13, v9, v10                ; col ^ w")
o("    v_lshlrev_b32 v13, 4, v13")
o("    v_lshl_add_u32 v%d, v10, 8, v13       ; w*256 + (col^w)*16" % vAggC)
o("    v_lshlrev_b32 v%d, 3, v8              ; lane*8" % vL8)
o("    v_mov_b32 v%d, 1" % vOne)
o("    s_mov_b32 s32, 0x05040100")
o("    s_mov_b32 s33, 0x07060302")
o("    s_mov_b32 s41, 0")
o("    s_mov_b32 s42, 0                      ; round")
o("    s_mov_b32 s70, 160")
o("    s_cmp_ge_u32 s40, 12")
o("    s_cselect_b32 s70, %d, s70" % (FSW if FSW else 160))
o("    s_lshr_b32 s68, s2, 3")
o("    s_mul_i32 s68, s68, 313")
o("    s_min_u32 s68, s68, %d" % (N - 320))
o("    s_lshl_b32 s68, s68, 10")
o("    s_and_b32 s69, s2, 7")
o("    s_mul_i32 s69, s69, 5")
o("    s_mov_b32 s24, s4")
o("    s_and_b32 s25, s5, 0xffff")
o("    s_mov_b32 s26, %d" % (N * 1024))
o("    s_mov_b32 s27, 0x00020000")
o("    s_mov_b32 s28, s20")
o("    s_and_b32 s29, s21, 0xffff")
o("    s_mov_b32 s30, %d" % (N * 1024))
o("    s_mov_b32 s31, 0x00020000")
def round_init():
    o("    v_lshlrev_b32 v18, 4, v0")
    for i in range(4):
        o("    v_mov_b32 v%d, 0x%x" % (24 + i, OOB))
    o("    v_mov_b32 v28, 0")
    o("    v_mov_b32 v29, %d" % (16 - DPW))
    o("    v_cmp_gt_u32 vcc, 64, v0")
    o("    s_and_saveexec_b64 s[44:45], vcc")
    o("    v_lshlrev_b32 v19, 2, v0")
    o("    ds_write_b32 v19, v28 offset:%d" % L_CNT)
    o("    ds_write_b32 v19, v28 offset:%d" % L_LOCK)
    o("    ds_write_b32 v19, v28 offset:%d" % L_FLAG)
    o("    v_mov_b32 v19, 0")
    o("    ds_write_b64 v19, v[28:29] offset:%d" % L_FLAG)
    o("    s_mov_b64 exec, s[44:45]")
    o("    v_cmp_gt_u32 vcc, %d, v0" % ((NKMAX + 1) * 128 // 16))
    o("    s_and_saveexec_b64 s[44:45], vcc")
    o("    ds_write_b128 v18, v[24:27] offset:%d" % L_SOFF)
    o("    s_mov_b64 exec, s[44:45]")
    for m in range(MM):
        o("    s_mov_b64 s[%d:%d], 0" % (48 + 2 * m, 49 + 2 * m))
    o("    s_mov_b64 s[64:65], 0")
round_init()
def barrier1():
    o("    s_waitcnt lgkmcnt(0)")
    o("    s_barrier")
if not LB1:
    barrier1()
stamp()
def zero_big():
    o("    v_lshlrev_b32 v18, 4, v0              ; tid*16")
    for i in range(4):
        o("    v_mov_b32 v%d, 0" % (28 + i))
    nz = (L_END - L_S) // 16
    full = nz // 1024
    rem = nz - full * 1024
    o("    v_add_u32 v25, %d, v18" % L_S)
    o("    v_add_u32 v26, %d, v18" % (L_S + 65536))
    o("    v_add_u32 v27, %d, v18" % (L_S + 131072))
    for i in range(full):
        off = i * 16384
        o("    ds_write_b128 v%d, v[28:31] offset:%d" % (25 + off // 65536, off % 65536))
    if rem:
        off = full * 16384
        o("    v_cmp_gt_u32 vcc, %d, v0" % rem)
        o("    s_and_saveexec_b64 s[44:45], vcc")
        o("    ds_write_b128 v%d, v[28:31] offset:%d" % (25 + off // 65536, off % 65536))
        o("    s_mov_b64 exec, s[44:45]")
o("    s_cmp_lt_u32 s40, 12")
o("    s_cbranch_scc1 K2_lowaves")
if LB1: barrier1()
zero_big()
o("    s_cmp_eq_u32 s40, 13")
o("    s_cbranch_scc1 K2_cg_build")
o("    s_cmp_lg_u32 s40, 14")
o("    s_cbranch_scc1 K2_S_done")
o("    s_waitcnt vmcnt(%d)" % NPF2)
for i in range(4):
    for k in range(4):
        o("    v_lshlrev_b32 v%d, 16, v%d" % (112 + k, 96 + 4 * k + i))
        o("    v_and_b32 v%d, 0xffff0000, v%d" % (116 + k, 96 + 4 * k + i))
    o("    ds_write_b128 v%d, v[112:115] offset:%d" % (vLaneOff, L_WR + 256 * (2 * i)))
    o("    ds_write_b128 v%d, v[116:119] offset:%d" % (vLaneOff, L_WR + 256 * (2 * i + 1)))
o("    s_branch K2_S_done")
o("K2_cg_build:")
o("    v_and_b32 v19, 1, v12")
o("    v_lshlrev_b32 v19, 4, v19             ; shift 0/16")
o("    v_cmp_gt_u32 vcc, 2, v12")
o("    s_waitcnt vmcnt(%d)" % NPF2)
for u in range(4):
    o("    v_lshlrev_b32 v20, v19, v%d" % (96 + u))
    o("    v_cndmask_b32 v%d, 0, v20, vcc" % (112 + 2 * u))
    o("    v_xor_b32 v%d, v20, v%d" % (113 + 2 * u, 112 + 2 * u))
    o("    ds_write_b64 v%d, v[%d:%d] offset:%d" % (vL8, 112 + 2 * u, 113 + 2 * u, L_CG + 512 * u))
o("    s_branch K2_S_done")
o("K2_lowaves:")
o("    v_cmp_gt_u32 vcc, %d, v14" % NCHUNK)
o("    s_mov_b32 s47, %d" % (CHUNK * REC_BYTES))
o("    s_waitcnt vmcnt(%d)" % (1 if TLB & 1 else 0))
if STAMP:
    o("    s_memrealtime s[72:73]")
    o("    s_waitcnt lgkmcnt(0)")
o("    v_lshrrev_b32 v18, 16, v16            ; cnt")
o("    v_cndmask_b32 v18, 0, v18, vcc")
o("    v_and_b32 v19, 0xffff, v16            ; start")
o("    v_add_u32 v19, v19, v17")
o("    v_mul_u32_u24 v19, %d, v19" % REC_BYTES)
o("    v_mad_u32_u24 v19, v14, s47, v19")
for m in range(MM):
    o("    v_cmp_lt_u32 vcc, v17, v18")
    o("    s_and_b64 exec, exec, vcc")
    o("    s_cbranch_execz K2_loads_done0")
    o("    s_mov_b64 s[%d:%d], exec" % (48 + 2 * m, 49 + 2 * m))
    o("    global_load_dwordx4 v[%d:%d], v19, s[22:23] offset:%d%s" % (vREC + 8 * m, vREC + 8 * m + 3, m * TPC * REC_BYTES, NT2))
    o("    global_load_dword v%d, v19, s[22:23] offset:%d%s" % (vMETA + m, m * TPC * REC_BYTES + 16, NT2))
    o("    v_add_u32 v17, %d, v17" % TPC)
o("    v_cmp_lt_u32 vcc, v17, v18")
o("    s_mov_b64 s[64:65], vcc")
o("K2_loads_done0:")
o("    s_mov_b64 exec, -1")
if LB1: barrier1()
if PF0 == 1:
    o("    s_lshr_b32 s3, s2, 3")
    o("    s_mul_i32 s3, s3, 625")
    o("    s_and_b32 s44, s2, 7")
    o("    s_mul_i32 s44, s44, 2500")
    o("    s_add_u32 s3, s3, s44")
    o("    v_min_u32 v24, 624, v0")
    o("    v_add_u32 v24, s3, v24")
    o("    v_subrev_u32 v25, 20000, v24")
    o("    v_min_u32 v24, v24, v25")
if PF0 == 2:
    o("    s_mul_i32 s3, s2, 79")
    o("    v_min_u32 v24, 78, v0")
    o("    v_add_u32 v24, s3, v24")
if PF0:
    o("    v_lshrrev_b32 v25, 1, v24")
    o("    v_and_b32 v24, 1, v24")
    o("    v_lshlrev_b32 v24, 7, v24")
    o("    v_lshl_add_u32 v24, v25, 10, v24")
    o("    buffer_load_dword v120, v24, s[24:27], 0 offen")
zero_big()
if PF0:
    o("    s_cmp_eq_u64 s[64:65], 0")
    o("    s_cbranch_scc1 K2_noflag0")
    o("    v_mov_b32 v19, 0")
    o("    ds_write_b32 v19, v%d offset:%d" % (vOne, L_FLAG))
    o("K2_noflag0:")
    o("    s_waitcnt vmcnt(1)")
    o("    s_branch K2_recs_ready")
else:
    o("    s_branch K2_loads_done")

o("K2_round:")
round_init()
o("    s_lshl_b32 s3, s42, 10")
o("    v_add_u32 v14, s3, v0                 ; edge")
o("    v_cmp_gt_u32 vcc, %d, v14" % E)
o("    v_min_u32 v14, %d, v14" % (E - 1))
o("    v_lshlrev_b32 v15, 2, v14")
o("    v_lshlrev_b32 v16, 3, v14")
o("    global_load_dword v17, v15, s[8:9]")
o("    global_load_dword v18, v15, s[6:7]")
o("    global_load_dwordx2 v[%d:%d], v16, s[10:11]" % (vREC, vREC + 1))
o("    global_load_dwordx2 v[%d:%d], v16, s[12:13]" % (vREC + 2, vREC + 3))
o("    s_waitcnt vmcnt(0) lgkmcnt(0)")
o("    s_barrier")
o("    v_and_b32 v19, 255, v17")
o("    v_cmp_eq_u32 s[46:47], s2, v19")
o("    v_lshrrev_b32 v17, 8, v17")
o("    v_lshl_or_b32 v%d, v17, 16, v18" % vMETA)
o("    s_and_b64 s[48:49], vcc, s[46:47]")

o("K2_loads_done:")
o("    s_cmp_eq_u64 s[64:65], 0")
o("    s_cbranch_scc1 K2_noflag")
o("    v_mov_b32 v19, 0")
o("    ds_write_b32 v19, v%d offset:%d" % (vOne, L_FLAG))
o("K2_noflag:")
o("    s_waitcnt vmcnt(0)")
o("K2_recs_ready:")
if STAMP:
    o("    s_memrealtime s[74:75]")
    o("    s_waitcnt lgkmcnt(0)")
for m in range(MM):
    o("    s_mov_b64 exec, s[%d:%d]" % (48 + 2 * m, 49 + 2 * m))
    o("    s_cbranch_execz K2_rank_done")
    o("    v_lshrrev_b32 v%d, 16, v%d" % (vCA + m, vMETA + m))
    o("    v_lshlrev_b32 v%d, 2, v%d" % (vCA + m, vCA + m))
    o("    ds_add_rtn_u32 v%d, v%d, v%d offset:%d" % (vRANK + m, vCA + m, vOne, L_CNT))
o("K2_rank_done:")
for m in range(MM):
    o("    s_mov_b64 exec, s[%d:%d]" % (48 + 2 * m, 49 + 2 * m))
    o("    s_cbranch_execz K2_S_done")
    r = vREC + 8 * m
    o("    v_lshlrev_b32 v8, 16, v%d" % r)
    o("    v_and_b32 v9, 0xffff0000, v%d" % r)
    o("    v_lshlrev_b32 v10, 16, v%d" % (r + 1))
    o("    v_and_b32 v11, 0xffff0000, v%d" % (r + 1))
    o("    v_lshlrev_b32 v12, 16, v%d" % (r + 2))
    o("    v_and_b32 v13, 0xffff0000, v%d" % (r + 2))
    o("    v_lshlrev_b32 v14, 16, v%d" % (r + 3))
    o("    v_and_b32 v15, 0xffff0000, v%d" % (r + 3))
    for v in range(4):
        o("    v_pk_mul_f32 v[28:29], v[12:13], v[%d:%d] op_sel:[0,%d] op_sel_hi:[1,%d]" % (8 + (v & 2), 9 + (v & 2), v & 1, v & 1))
        o("    v_pk_mul_f32 v[30:31], v[14:15], v[%d:%d] op_sel:[0,%d] op_sel_hi:[1,%d]" % (8 + (v & 2), 9 + (v & 2), v & 1, v & 1))
        o("    v_cvt_pk_bf16_f32 v%d, v28, v29" % (r + 2 * v))
        o("    v_cvt_pk_bf16_f32 v%d, v30, v31" % (r + 2 * v + 1))
    o("    v_and_b32 v%d, 0xffff, v%d" % (vMETA + m, vMETA + m))
    o("    v_lshlrev_b32 v%d, 10, v%d" % (vMETA + m, vMETA + m))
o("K2_S_done:")
o("    s_mov_b64 exec, -1")
spf(SPF // 100, "SP1")
def sp0(n0, n, tag):
    if n == 0: return
    o("    s_cmp_lt_u32 s40, 12")
    o("    s_cbranch_scc1 %s_e" % tag)
    o("    s_cmp_lg_u32 s41, 0")
    o("    s_cbranch_scc1 %s_e" % tag)
    o("    s_sub_u32 s66, s40, 12")
    o("    s_mul_i32 s66, s66, %d" % (80 * 1024))
    o("    s_add_u32 s66, s66, s68")
    o("    s_lshl_b32 s38, s69, 1")
    o("    s_add_u32 s38, s38, %d" % n0)
    o("    s_mov_b32 s39, %d" % n)
    o("%s_l:" % tag)
    o("    s_sub_u32 s36, s38, 80")
    o("    s_min_u32 s38, s38, s36")
    o("    s_lshl_b32 s36, s38, 10")
    o("    s_add_u32 s36, s36, s66")
    for sec in range(4):
        o("    s_load_dword s67, s[4:5], s36 offset:%d" % (sec * 64))
    o("    s_add_u32 s38, s38, 1")
    o("    s_sub_u32 s39, s39, 1")
    o("    s_cmp_lg_u32 s39, 0")
    o("    s_cbranch_scc1 %s_l" % tag)
    o("%s_e:" % tag)
sp0(0, SP0A, "SQ1")
o("    s_waitcnt lgkmcnt(0)")
o("    s_barrier")
stamp()
if B2T:
    o("    s_cmp_lt_u32 s40, 12")
    o("    s_cbranch_scc1 K2_b2t_e")
    o("    s_cmp_lg_u32 s41, 0")
    o("    s_cbranch_scc1 K2_b2t_e")
    if B2T & 1:
        o("    s_lshr_b32 s3, s2, 3")
        o("    s_mul_i32 s3, s3, 625")
        o("    s_sub_u32 s3, s3, 768")
        o("    v_add_u32 v24, s3, v0")
        o("    v_lshrrev_b32 v25, 1, v24")
        o("    v_and_b32 v24, 1, v24")
        o("    v_lshlrev_b32 v24, 7, v24")
        o("    v_lshl_add_u32 v24, v25, 10, v24")
        o("    buffer_load_dword v120, v24, s[24:27], 0 offen")
        if B2T & 4:
            o("    v_add_u32 v24, 0x20000, v24")
            o("    buffer_load_dword v121, v24, s[24:27], 0 offen")
    if B2T & 2:
        o("    s_lshl_b32 s3, s2, 8")
        o("    s_sub_u32 s3, s3, 768")
        o("    v_add_u32 v24, s3, v0")
        o("    s_mov_b32 s44, 43691")
        o("    v_mul_lo_u32 v25, v24, s44")
        o("    v_lshrrev_b32 v25, 18, v25            ; /6")
        o("    v_mul_u32_u24 v26, 6, v25")
        o("    v_sub_u32 v26, v24, v26")
        o("    v_lshlrev_b32 v26, 7, v26")
        o("    v_lshl_add_u32 v24, v25, 10, v26")
        o("    buffer_load_dword v124, v24, s[24:27], 0 offen offset:256")
    o("K2_b2t_e:")
o("    v_lshrrev_b32 v19, 1, v%d             ; lane*4" % vL8)
o("    ds_read_b32 v24, v19 offset:%d" % L_CNT)
o("    v_mov_b32 v20, 0")
o("    ds_read_b32 v21, v20 offset:%d" % L_FLAG)
o("    s_waitcnt lgkmcnt(0)")
o("    v_add_u32 v25, 31, v24")
o("    v_lshrrev_b32 v25, 5, v25             ; nks")
o("    v_lshl_or_b32 v26, v25, 16, v24       ; packed")
o("    v_mov_b32 v27, v26")
dpp_scan("v27")
o("    v_readlane_b32 s34, v27, 63")
o("    v_readfirstlane_b32 s35, v21")
o("    v_sub_u32 v27, v27, v26")
o("    ds_write_b32 v19, v27 offset:%d" % L_TABS)
o("    s_and_b32 s36, s34, 0xffff            ; total")
o("    s_lshr_b32 s34, s34, 16               ; nK")
o("    s_cmp_gt_u32 s36, %d" % CAP)
o("    s_cselect_b32 s36, 1, 0")
o("    s_or_b32 s35, s35, s36")
o("    s_cmp_eq_u32 s35, 0")
o("    s_cbranch_scc1 K2_ok")
o("    s_mov_b32 s41, 1")
o("    s_waitcnt lgkmcnt(0)")
o("    s_barrier")
o("    s_branch K2_round")
o("K2_ok:")
o("    v_and_b32 v20, 0xffff, v27")
o("    v_lshrrev_b32 v21, 16, v27")
o("    v_lshl_or_b32 v20, v21, 11, v20")
o("    v_lshl_or_b32 v%d, v24, 18, v20       ; node desc: Sstart | kstart<<11 | cnt<<18" % vND)
for m in range(MM):
    o("    s_mov_b64 exec, s[%d:%d]" % (48 + 2 * m, 49 + 2 * m))
    o("    s_cbranch_execz K2_tabs_done")
    o("    ds_read_b32 v%d, v%d offset:%d" % (vCA + m, vCA + m, L_TABS))
o("K2_tabs_done:")
o("    s_waitcnt lgkmcnt(0)")
for m in range(MM):
    o("    s_mov_b64 exec, s[%d:%d]" % (48 + 2 * m, 49 + 2 * m))
    o("    s_cbranch_execz K2_scatter_done")
    r = vREC + 8 * m
    rank = vRANK + m
    tb = vCA + m
    o("    v_and_b32 v25, 0xffff, v%d" % tb)
    o("    v_add_lshl_u32 v25, v25, v%d, 5" % rank)
    o("    ds_write_b128 v25, v[%d:%d] offset:%d" % (r, r + 3, L_S))
    o("    ds_write_b128 v25, v[%d:%d] offset:%d" % (r + 4, r + 7, L_S + 16))
    o("    v_lshrrev_b32 v26, 16, v%d" % tb)
    o("    v_lshrrev_b32 v27, 5, v%d" % rank)
    o("    v_add_lshl_u32 v26, v26, v27, 7")
    o("    v_and_b32 v27, 3, v%d" % rank)
    o("    v_lshl_add_u32 v26, v27, 5, v26")
    o("    v_and_or_b32 v26, v%d, 28, v26" % rank)
    o("    ds_write_b32 v26, v%d offset:%d" % (vMETA + m, L_SOFF))
o("K2_scatter_done:")
o("    s_mov_b64 exec, -1")
spf((SPF // 10) % 10, "SP2")
sp0(SP0A, SP0B, "SQ2")
o("    s_waitcnt lgkmcnt(0)")
o("    s_barrier")
stamp()
if STAMP:
    o("    s_memtime s[76:77]")
    o("    s_waitcnt lgkmcnt(0)")

NITEM = 160
uid = [0]
def dequeue():
    o("    s_mov_b64 exec, 1")
    o("    ds_add_rtn_u32 v%d, v%d, v%d offset:%d" % (vQ, vLaneOff, vOne, L_Q))
    o("    s_mov_b64 exec, -1")

def gen_next(first_id_in_s38=False):
    t = "G%d" % uid[0]; uid[0] += 1
    if first_id_in_s38:
        o("    s_branch %s_dec" % t)
    else:
        o("    s_cmp_eq_u32 s62, 0")
        o("    s_cbranch_scc1 %s_retry" % t)
        o("    s_add_u32 s63, s63, 1")
        o("    s_add_u32 s64, s64, 1024")
        o("    s_mov_b32 s65, 0")
        o("    s_branch %s_cnt" % t)
    o("%s_retry:" % t)
    if SYNCQ:
        if FSW:
            o("    s_cmp_ge_u32 s71, s70")
            o("    s_mov_b32 s38, 1000")
            o("    s_cbranch_scc1 %s_dec" % t)
        dequeue()
        o("    s_waitcnt lgkmcnt(0)")
        o("    v_readfirstlane_b32 s38, v%d" % vQ)
        if FSW:
            o("    s_mov_b32 s71, s38")
    else:
        o("    s_waitcnt lgkmcnt(0)")
        o("    v_readfirstlane_b32 s38, v%d" % vQ)
        if FSW:
            o("    s_cmp_ge_u32 s38, s70")
            o("    s_cbranch_scc0 %s_dq" % t)
            o("    v_mov_b32 v%d, 1000" % vQ)
            o("    s_branch %s_dec" % t)
            o("%s_dq:" % t)
        dequeue()
    o("%s_dec:" % t)
    o("    s_cmp_lt_u32 s38, %d" % NITEM)
    o("    s_cbranch_scc1 %s_valid" % t)
    o("    s_mov_b32 s65, 0")
    o("    s_mov_b32 s62, 0")
    o("    s_branch %s_end" % t)
    o("%s_valid:" % t)
    if SKEW:
        o("    s_lshr_b32 s39, s38, 2")
        o("    v_readlane_b32 s39, v%d, s39" % vT)
        o("    s_lshl_b32 s60, s38, 3")
        o("    s_lshr_b32 s39, s39, s60")
        o("    s_bfe_u32 s60, s39, 0x20006           ; u")
        o("    s_and_b32 s61, s39, 63                ; node")
    else:
        o("    s_mul_i32 s60, s38, 1639")
        o("    s_lshr_b32 s60, s60, 16               ; u = id / 40")
        o("    s_mul_i32 s61, s60, 40")
        o("    s_sub_u32 s61, s38, s61               ; node")
        if ROT:
            o("    s_lshr_b32 s39, s2, %d" % (ROT - 1))
            o("    s_add_u32 s60, s60, s39")
            o("    s_and_b32 s60, s60, 3")
    if PFM:
        o("    s_andn2_b32 s39, s61, 1")
        o("    s_cmp_lg_u32 s39, %d" % (PFM & ~1))
        o("    s_cbranch_scc1 %s_nopf" % t)
        o("    s_and_b32 s39, s61, 1")
        o("    s_mul_i32 s39, s39, 40")
        o("    s_mul_i32 s36, s2, 80")
        o("    s_add_u32 s39, s39, s36")
        o("    v_lshrrev_b32 v0, 3, v%d" % vL8)
        o("    v_min_u32 v0, 39, v0")
        o("    v_add_u32 v0, s39, v0")
        o("    v_lshrrev_b32 v%d, 1, v0" % vCG)
        o("    v_and_b32 v0, 1, v0")
        o("    v_lshlrev_b32 v0, 7, v0")
        o("    v_lshl_add_u32 v0, v%d, 10, v0" % vCG)
        o("    s_lshl_b32 s36, s60, 8")
        o("    s_cmp_eq_u32 s60, 3")
        o("    s_cbranch_scc1 %s_nopf" % t)
        o("    buffer_load_dword v%d, v0, s[24:27], s36 offen offset:256" % vT)
        o("%s_nopf:" % t)
    o("    v_readlane_b32 s39, v%d, s61" % vND)
    o("    s_lshr_b32 s62, s39, 18               ; cnt")
    if DF:
        o("    s_cbranch_scc1 %s_ne" % t)
        o("    s_andn2_b32 s39, s61, 3")
        o("    v_mov_b32 v0, s39")
        o("    s_mov_b64 exec, 1")
        o("    ds_add_u32 v0, v%d offset:%d" % (vOne, L_TC))
        o("    s_mov_b64 exec, -1")
        o("    s_branch %s_retry" % t)
        o("%s_ne:" % t)
    else:
        o("    s_cbranch_scc0 %s_retry" % t)
    o("    s_bfe_u32 s63, s39, 0x7000b           ; kstart")
    o("    s_and_b32 s64, s39, 0x7ff")
    o("    s_lshl_b32 s64, s64, 5")
    o("    s_mov_b32 s65, 16")
    o("%s_cnt:" % t)
    o("    s_min_u32 s39, s62, 32")
    o("    s_sub_u32 s62, s62, s39")
    o("    s_add_u32 s39, s39, 3")
    o("    s_lshr_b32 s39, s39, 2")
    o("    s_or_b32 s65, s65, s39")
    o("    s_cmp_eq_u32 s62, 0")
    o("    s_cselect_b32 s39, 32, 0")
    o("    s_or_b32 s65, s65, s39")
    o("    s_lshl_b32 s39, s63, 7")
    o("    v_add_u32 v0, s39, v%d" % vSoffC)
    o("    ds_read_b128 v[%d:%d], v0 offset:%d" % (vA, vA + 3, L_SOFF))
    o("    ds_read_b128 v[%d:%d], v0 offset:%d" % (vA + 4, vA + 7, L_SOFF + 16))
    o("%s_end:" % t)

def issue_loads(b):
    t = "L%d" % uid[0]; uid[0] += 1
    o("    s_lshl_b32 s37, s60, 8")
    if "--u0" in opts: o("    s_mov_b32 s37, 0")
    o("    s_and_b32 s39, s65, 15")
    o("    s_cbranch_scc0 %s_e" % t)
    for j in range(8):
        o("    v_add_u32 v%d, v%d, v%d" % (vA + j, vA + j, vLaneOff))
        if j < 7:
            o("    s_cmp_eq_u32 s39, %d" % (j + 1))
        o("    buffer_load_dwordx4 v[%d:%d], v%d, s[24:27], s37 offen" % (vRB[b] + 4 * j, vRB[b] + 4 * j + 3, vA + j))
        if j < 7:
            o("    s_cbranch_scc1 %s_e" % t)
    o("%s_e:" % t)

def gen_to_slot(b):
    sb = 48 + 4 * b
    o("    s_mov_b64 s[%d:%d], s[60:61]" % (sb, sb + 1))
    o("    s_mov_b64 s[%d:%d], s[64:65]" % (sb + 2, sb + 3))

def perms(b, j, pbase, npair):
    i = j >> 1
    sel = "s32" if (j & 1) == 0 else "s33"
    for jj in range(npair):
        a = vRB[b] + 4 * (2 * jj) + i
        c = vRB[b] + 4 * (2 * jj + 1) + i
        o("    v_perm_b32 v%d, v%d, v%d, %s" % (pbase + jj, c, a, sel))
def mm(b, acc, npair):
    if "--nomm" in opts: return
    sb = 48 + 4 * b
    t = "Z%d" % uid[0]; uid[0] += 1
    o("    s_bitcmp0_b32 s%d, 0" % (sb + 3))
    o("    s_cbranch_scc1 %s" % t)
    for i in range(4):
        o("    v_mov_b32 v%d, 0" % (vRB[b] + 4 * (2 * npair - 1) + i))
    o("%s:" % t)
    k16 = npair <= 2
    if npair in (1, 3):
        o("    v_mov_b32 v%d, 0" % (vP + npair))
        o("    v_mov_b32 v%d, 0" % (vP + 4 + npair))
    perms(b, 0, vP, npair)
    for j in range(8):
        if j + 1 < 8:
            perms(b, j + 1, vP + 4 * ((j + 1) & 1), npair)
        if npair == 1 or j == 7:
            o("    s_nop 0")
        pb = vP + 4 * (j & 1)
        c = "v[%d:%d]" % (vD + 4 * j, vD + 4 * j + 3) if acc else "0"
        if k16:
            o("    v_mfma_f32_16x16x16_bf16 v[%d:%d], v[%d:%d], v[%d:%d], %s" % (vD + 4 * j, vD + 4 * j + 3, vS, vS + 1, pb, pb + 1, c))
        else:
            o("    v_mfma_f32_16x16x32_bf16 v[%d:%d], v[%d:%d], v[%d:%d], %s" % (vD + 4 * j, vD + 4 * j + 3, vS, vS + 3, pb, pb + 3, c))

def mm_all(b):
    sb = 48 + 4 * b
    o("    s_and_b32 s39, s%d, 15" % (sb + 3))
    o("    s_bitcmp0_b32 s%d, 4" % (sb + 3))
    o("    s_cbranch_scc1 M%d_acc" % b)
    for acc in (False, True):
        a = "a" if acc else "f"
        if acc: o("M%d_acc:" % b)
        o("    s_cmp_gt_u32 s39, 6")
        o("    s_cbranch_scc1 M%d%s4" % (b, a))
        o("    s_cmp_gt_u32 s39, 4")
        o("    s_cbranch_scc1 M%d%s3" % (b, a))
        o("    s_cmp_gt_u32 s39, 2")
        o("    s_cbranch_scc1 M%d%s2" % (b, a))
        for npair in (1, 2, 3, 4):
            o("M%d%s%d:" % (b, a, npair))
            mm(b, acc, npair)
            if not (acc and npair == 4):
                o("    s_branch M%d_done" % b)
    o("M%d_done:" % b)

def vm_wait(other):
    if NBUF == 1:
        o("    s_waitcnt vmcnt(0) lgkmcnt(0)")
        return
    t = "W%d" % uid[0]; uid[0] += 1
    sb = 48 + 4 * other
    o("    s_and_b32 s39, s%d, 15" % (sb + 3))
    o("    s_cmp_eq_u32 s39, 8")
    o("    s_cbranch_scc1 %s_8" % t)
    o("    s_cmp_ge_u32 s39, 4")
    o("    s_cbranch_scc1 %s_hi" % t)
    o("    s_cmp_ge_u32 s39, 2")
    o("    s_cbranch_scc1 %s_2" % t)
    o("    s_waitcnt vmcnt(0)")
    o("%s_2:" % t)
    o("    s_waitcnt vmcnt(2)")
    o("%s_hi:" % t)
    o("    s_cmp_ge_u32 s39, 6")
    o("    s_cbranch_scc1 %s_6" % t)
    o("    s_waitcnt vmcnt(4)")
    o("%s_6:" % t)
    o("    s_waitcnt vmcnt(6)")
    o("%s_8:" % t)
    o("    s_waitcnt vmcnt(8) lgkmcnt(0)")

def tile_fma(j, w):
    d = vD + 4 * j
    o("    v_mul_f32 v%d, v%d, v%d" % (d, d, w))
    for k in range(1, 4):
        o("    v_fmac_f32 v%d, v%d, v%d" % (d, d + k, w + k))
def wr_read(j, w):
    o("    ds_read_b128 v[%d:%d], v%d offset:%d" % (w, w + 3, vLaneOff, L_WR + 256 * j))
def lock_try():
    o("    s_mov_b64 exec, 1")
    o("    ds_wrxchg_rtn_b32 v%d, v%d, v%d offset:%d" % (vS + 2, vS, vOne, L_LOCK))
    o("    s_mov_b64 exec, -1")
    o("    ds_read_b128 v[%d:%d], v%d" % (vP, vP + 3, vS + 1))
    o("    ds_read_b128 v[%d:%d], v%d offset:1024" % (vP + 4, vP + 7, vS + 1))

def post(b):
    if "--nopost" in opts: return
    sb = 48 + 4 * b
    t = "P%d" % b
    if NBUF == 2:
        wr_read(0, vP); wr_read(1, vP + 4); wr_read(2, vA); wr_read(3, vA + 4)
    o("    s_lshl_b32 s38, s%d, 9" % sb)
    o("    v_add_u32 v0, s38, v%d" % vL8)
    o("    ds_read_b64 v[%d:%d], v0 offset:%d" % (vCG, vCG + 1, L_CG))
    o("    s_lshl_b32 s38, s%d, 2" % (sb + 1))
    o("    v_mov_b32 v%d, s38                    ; lock addr" % vS)
    o("    s_and_b32 s38, s%d, 3" % (sb + 1))
    o("    s_lshl_b32 s38, s38, 6")
    o("    s_lshl_b32 s39, s%d, 11" % (sb + 1))
    o("    s_add_u32 s39, s39, %d" % L_AGG)
    o("    s_or_b32 s38, s38, s39")
    o("    v_xor_b32 v%d, s38, v%d               ; agg addr" % (vS + 1, vAggC))
    o("    v_mov_b32 v%d, 0" % (vS + 3))
    if NBUF == 2:
        o("    s_waitcnt lgkmcnt(4)")
        tile_fma(0, vP)
        o("    s_waitcnt lgkmcnt(3)")
        tile_fma(1, vP + 4)
        wr_read(4, vP); wr_read(5, vP + 4)
        o("    s_waitcnt lgkmcnt(4)")
        tile_fma(2, vA)
        o("    s_waitcnt lgkmcnt(3)")
        tile_fma(3, vA + 4)
        wr_read(6, vA); wr_read(7, vA + 4)
        o("    v_cvt_pk_bf16_f32 v%d, v%d, v%d" % (vD + 2, vD, vD + 4))
        o("    v_cvt_pk_bf16_f32 v%d, v%d, v%d" % (vD + 3, vD + 8, vD + 12))
        o("    s_waitcnt lgkmcnt(3)")
        tile_fma(4, vP)
        o("    s_waitcnt lgkmcnt(2)")
        tile_fma(5, vP + 4)
        lock_try()
        o("    s_waitcnt lgkmcnt(4)")
        tile_fma(6, vA)
        o("    s_waitcnt lgkmcnt(3)")
        tile_fma(7, vA + 4)
    else:
        for j in range(4):
            tile_fma(j, vWR + 4 * j)
        o("    v_cvt_pk_bf16_f32 v%d, v%d, v%d" % (vD + 2, vD, vD + 4))
        o("    v_cvt_pk_bf16_f32 v%d, v%d, v%d" % (vD + 3, vD + 8, vD + 12))
        lock_try()
        for j in range(4, 8):
            tile_fma(j, vWR + 4 * j)
    o("    v_cvt_pk_bf16_f32 v%d, v%d, v%d" % (vD + 6, vD + 16, vD + 20))
    o("    v_cvt_pk_bf16_f32 v%d, v%d, v%d" % (vD + 7, vD + 24, vD + 28))
    o("%s_chk:" % t)
    o("    s_waitcnt lgkmcnt(0)")
    o("    v_readfirstlane_b32 s38, v%d" % (vS + 2))
    o("    s_cmp_eq_u32 s38, 0")
    o("    s_cbranch_scc1 %s_got" % t)
    lock_try()
    o("    s_branch %s_chk" % t)
    o("%s_got:" % t)
    o("    v_mfma_f32_16x16x16_bf16 v[%d:%d], v[%d:%d], v[%d:%d], v[%d:%d]" % (vP, vP + 3, vCG, vCG + 1, vD + 2, vD + 3, vP, vP + 3))
    o("    v_mfma_f32_16x16x16_bf16 v[%d:%d], v[%d:%d], v[%d:%d], v[%d:%d]" % (vP + 4, vP + 7, vCG, vCG + 1, vD + 6, vD + 7, vP + 4, vP + 7))
    o("    s_nop 7")
    o("    ds_write_b128 v%d, v[%d:%d]" % (vS + 1, vP, vP + 3))
    o("    ds_write_b128 v%d, v[%d:%d] offset:1024" % (vS + 1, vP + 4, vP + 7))
    o("    s_mov_b64 exec, 1")
    o("    ds_write_b32 v%d, v%d offset:%d" % (vS, vS + 3, L_LOCK))
    if DF:
        o("    s_andn2_b32 s38, s%d, 3" % (sb + 1))
        o("    v_mov_b32 v%d, s38" % (vS + 2))
        o("    ds_add_u32 v%d, v%d offset:%d" % (vS + 2, vOne, L_TC))
    o("    s_mov_b64 exec, -1")

spf(SPF % 10, "SP3")
if DPW:
    per = 320 // DPW
    assert DPN <= per
    o("    s_cmp_lt_u32 s40, %d" % (16 - DPW))
    o("    s_cbranch_scc1 DP_e")
    o("    s_cmp_lg_u32 s41, 0")
    o("    s_cbranch_scc1 DP_e")
    o("    s_sub_u32 s66, s40, %d" % (16 - DPW))
    o("    s_mul_i32 s66, s66, %d" % (per * 1024))
    o("    s_add_u32 s66, s66, s68")
    o("    v_mov_b32 v0, 0")
    for u in range(1, 4):
        if u > 1:
            o("DP_g%d:" % u)
            o("    ds_read_b32 v%d, v0 offset:%d" % (vQ, L_Q))
            o("    s_waitcnt lgkmcnt(0)")
            o("    v_readfirstlane_b32 s38, v%d" % vQ)
            o("    s_cmp_ge_u32 s38, %d" % (40 * (u - 1) + DPG + 16))
            o("    s_cbranch_scc1 DP_go%d" % u)
            o("    s_sleep 4")
            o("    s_branch DP_g%d" % u)
            o("DP_go%d:" % u)
        o("    s_and_b32 s38, s2, 7")
        o("    s_mul_i32 s38, s38, %d" % (DPN // 8))
        o("    s_mov_b32 s39, %d" % DPN)
        o("DP_l%d:" % u)
        o("    s_sub_u32 s36, s38, %d" % DPN)
        o("    s_min_u32 s38, s38, s36")
        o("    s_lshl_b32 s36, s38, 10")
        o("    s_add_u32 s36, s36, s66")
        for sec in range(4):
            o("    s_load_dword s67, s[4:5], s36 offset:%d" % (u * 256 + sec * 64))
        o("    s_add_u32 s38, s38, 1")
        o("    s_sub_u32 s39, s39, 1")
        o("    s_cmp_lg_u32 s39, 0")
        o("    s_cbranch_scc1 DP_l%d" % u)
    o("    s_mov_b64 exec, 1")
    o("    ds_add_rtn_u32 v%d, v%d, v%d offset:%d" % (vQ, vLaneOff, vOne, L_Q))
    o("    s_mov_b64 exec, -1")
    o("    s_waitcnt lgkmcnt(0)")
    o("    v_readfirstlane_b32 s38, v%d" % vQ)
    o("    s_branch DP_join")
    o("DP_e:")
o("    s_mov_b32 s38, s40")
o("    s_mov_b32 s71, 0")
if DPW:
    o("    s_cmp_lt_u32 s40, %d" % (16 - DPW))
    o("    s_cbranch_scc1 DP_join")
    o("    s_mov_b64 exec, 1")
    o("    ds_add_rtn_u32 v%d, v%d, v%d offset:%d" % (vQ, vLaneOff, vOne, L_Q))
    o("    s_mov_b64 exec, -1")
    o("    s_waitcnt lgkmcnt(0)")
    o("    v_readfirstlane_b32 s38, v%d" % vQ)
    o("DP_join:")
if not SYNCQ: dequeue()
o("    s_mov_b32 s60, 0")
gen_next(True)
o("    s_waitcnt lgkmcnt(0)")
issue_loads(0)
gen_to_slot(0)
if NBUF == 2:
    gen_next()
    o("    s_waitcnt lgkmcnt(0)")
    issue_loads(1)
    gen_to_slot(1)
else:
    for j in range(8):
        wr_read(j, vWR + 4 * j)
o("K2_loop:")
for b in range(NBUF):
    sb = 48 + 4 * b
    o("    s_and_b32 s39, s%d, 15" % (sb + 3))
    o("    s_cbranch_scc0 K2_main_done")
    o("    v_add_u32 v0, s%d, v%d" % (sb + 2, vSC))
    o("    ds_read_b64_tr_b16 v[%d:%d], v0 offset:%d" % (vS, vS + 1, L_S))
    o("    ds_read_b64_tr_b16 v[%d:%d], v0 offset:%d" % (vS + 2, vS + 3, L_S + 512))
    if LATE:
        vm_wait(1 - b)
        mm_all(b)
        gen_next()
        o("    s_waitcnt lgkmcnt(0)")
    else:
        gen_next()
        if SPM:
            o("    s_cmp_ge_u32 s%d, 3" % sb)
            o("    s_cbranch_scc1 SPM_e")
            o("    s_add_u32 s66, s%d, s69" % (sb + 1))
            o("    s_sub_u32 s39, s66, 40")
            o("    s_min_u32 s66, s66, s39")
            o("    s_lshl_b32 s39, s%d, 8" % sb)
            o("    s_add_u32 s39, s39, s68")
            o("    s_bitcmp0_b32 s%d, 4" % (sb + 3))
            o("    s_cbranch_scc1 SPM_2")
            o("    s_mul_i32 s66, s66, %d" % (SPM * 1024))
            o("    s_add_u32 s66, s66, s39")
            for n in range(SPM):
                for sec in range(4):
                    o("    s_load_dword s67, s[4:5], s66 offset:%d" % (n * 1024 + 256 + sec * 64))
            o("    s_branch SPM_e")
            o("SPM_2:")
            if SPM2:
                assert 40 * (SPM + SPM2) <= 320
                o("    s_mul_i32 s66, s66, %d" % (SPM2 * 1024))
                o("    s_add_u32 s66, s66, s39")
                for n in range(SPM2):
                    for sec in range(4):
                        o("    s_load_dword s67, s[4:5], s66 offset:%d" % ((40 * SPM + n) * 1024 + 256 + sec * 64))
            o("SPM_e:")
        vm_wait(1 - b)
        mm_all(b)
    issue_loads(b)
    o("    s_bitcmp0_b32 s%d, 5" % (sb + 3))
    o("    s_cbranch_scc1 K2_cont%d" % b)
    post(b)
    o("K2_cont%d:" % b)
    gen_to_slot(b)
o("    s_branch K2_loop")
o("K2_main_done:")
o("    s_cmp_eq_u32 s41, 0")
o("    s_cbranch_scc1 K2_final")
o("    s_add_u32 s42, s42, 1")
o("    s_cmp_ge_u32 s42, %d" % NSLOW)
o("    s_cbranch_scc1 K2_final")
o("    s_waitcnt vmcnt(0) lgkmcnt(0)")
o("    s_barrier")
o("    s_lshl_b32 s39, s40, 6")
o("    v_lshrrev_b32 v0, 3, v%d" % vL8)
o("    v_add_u32 v0, s39, v0")
o("    s_branch K2_round")

o("K2_final:")
stamp()
if STAMP:
    o("    s_memtime s[78:79]")
    o("    s_waitcnt lgkmcnt(0)")
    o("    s_sub_u32 s78, s78, s76")
vW = 32
vB = 64
vC = 96
if FSW:
    o("    s_cmp_lt_u32 s40, 12")
    o("    s_cbranch_scc1 K2_fin_end")
o("    s_and_b32 s44, s40, 3                 ; dp")
o("    s_lshr_b32 s45, s40, 2                ; rg")
if LAZYW:
    o("    s_lshl_b32 s39, s44, 2")
    o("    v_mov_b32 v8, s39")
    o("    ds_read_b32 v9, v8 offset:%d" % L_FQ)
    o("    s_waitcnt lgkmcnt(0)")
    o("    v_readfirstlane_b32 s39, v9")
    o("    s_cmp_ge_u32 s39, %d" % LAZYW)
    o("    s_cbranch_scc1 K2_fin_end")
o("    s_lshl_b32 s39, s44, 13")
o("    s_add_u32 s39, s39, 0x%x" % WS_WIMG)
o("    v_lshlrev_b32 v8, 1, v%d              ; lane*16" % vL8)
o("    v_add_u32 v8, s39, v8")
o("    v_add_u32 v9, 0x1000, v8")
o("    s_waitcnt vmcnt(0)")
for ts in range(8):
    base = "v8" if ts < 4 else "v9"
    o("    global_load_dwordx4 v[%d:%d], %s, s[22:23] offset:%d" % (vW + 4 * ts, vW + 4 * ts + 3, base, (ts & 3) * 1024))
o("    v_lshrrev_b32 v10, 3, v%d             ; lane" % vL8)
o("    v_bfe_u32 v11, v10, 2, 2              ; nl")
o("    v_and_b32 v12, 3, v10                 ; w")
o("    v_lshrrev_b32 v17, 4, v10             ; q")
o("    v_and_b32 v13, 15, v10")
o("    v_xor_b32 v13, v13, v17               ; q ^ col")
o("    v_lshlrev_b32 v15, 11, v11")
o("    v_lshl_add_u32 v15, v12, 8, v15")
o("    v_lshl_add_u32 v15, v13, 4, v15")
o("    v_lshlrev_b32 v16, 18, v11")
o("    v_lshl_add_u32 v16, v12, 8, v16")
o("    v_lshl_add_u32 v16, v17, 4, v16")
o("    s_lshl_b32 s39, s2, 10")
o("    s_lshl_b32 s46, s44, 6")
o("    s_add_u32 s39, s39, s46")
o("    v_add_u32 v16, s39, v16")
if DF:
    o("    s_lshl_b32 s39, s44, 2")
    o("    v_mov_b32 v8, s39")
    o("    v_mov_b32 v14, 1")
    o("    s_mov_b64 exec, 1")
    o("    ds_add_rtn_u32 v9, v8, v14 offset:%d" % L_FQ)
    o("    s_mov_b64 exec, -1")
    stamp()
    o("    s_waitcnt vmcnt(0)")
    o("K2_fin_loop:")
    o("    s_waitcnt lgkmcnt(0)")
    o("    v_readfirstlane_b32 s45, v9")
    o("    s_cmp_ge_u32 s45, 10")
    o("    s_cbranch_scc1 K2_fin_end")
    o("    s_lshl_b32 s39, s45, 2")
    o("    v_mov_b32 v10, s39")
    o("K2_fin_wait:")
    o("    ds_read_b32 v11, v10 offset:%d" % L_TC)
    o("    s_waitcnt lgkmcnt(0)")
    o("    v_readfirstlane_b32 s39, v11")
    o("    s_cmp_ge_u32 s39, 16")
    o("    s_cbranch_scc1 K2_fin_go")
    o("    s_sleep 2")
    o("    s_branch K2_fin_wait")
    o("K2_fin_go:")
else:
    o("    s_waitcnt lgkmcnt(0)")
    o("    s_barrier")
    stamp()
    o("    s_waitcnt vmcnt(0)")
    o("K2_fin_loop:")
o("    s_lshl_b32 s39, s45, 13               ; rt*8192")
o("    s_add_u32 s39, s39, %d" % L_AGG)
o("    v_add_u32 v18, s39, v15")
for s in range(4):
    if s:
        o("    v_xor_b32 v19, %d, v18" % (64 * s))
    a = "v19" if s else "v18"
    o("    ds_read_b128 v[%d:%d], %s" % (vB + 8 * s, vB + 8 * s + 3, a))
    o("    ds_read_b128 v[%d:%d], %s offset:1024" % (vB + 8 * s + 4, vB + 8 * s + 7, a))
if DF:
    o("    s_mov_b64 exec, 1")
    o("    ds_add_rtn_u32 v9, v8, v14 offset:%d" % L_FQ)
    o("    s_mov_b64 exec, -1")
for s in range(4):
    o("    s_waitcnt lgkmcnt(%d)" % (6 - 2 * s + (1 if DF else 0)))
    for p in range(4):
        o("    v_cvt_pk_bf16_f32 v%d, v%d, v%d" % (vC + 4 * s + p, vB + 8 * s + 2 * p, vB + 8 * s + 2 * p + 1))
o("    s_nop 1")
for s in range(4):
    for t in range(2):
        a = vW + 4 * (t * 4 + s)
        acc = 20 + 4 * t
        c = "0" if s == 0 else "v[%d:%d]" % (acc, acc + 3)
        o("    v_mfma_f32_16x16x32_bf16 v[%d:%d], v[%d:%d], v[%d:%d], %s" % (acc, acc + 3, a, a + 3, vC + 4 * s, vC + 4 * s + 3, c))
o("    s_lshl_b32 s39, s45, 20               ; rt*4*256*1024")
o("    s_nop 7")
for p in range(4):
    o("    v_cvt_pk_bf16_f32 v%d, v%d, v%d" % (28 + p, 20 + 2 * p, 21 + 2 * p))
o("    buffer_store_dwordx4 v[28:31], v16, s[28:31], s39 offen" + OST)
if DF:
    o("    s_branch K2_fin_loop")
    o("K2_fin_end:")
else:
    o("    s_add_u32 s45, s45, 4")
    o("    s_cmp_lt_u32 s45, 10")
    o("    s_cbranch_scc1 K2_fin_loop")
if STAMP:
    stamp()
    o("    s_waitcnt vmcnt(0)")
    stamp()
    o("    s_lshl_b32 s39, s2, 4")
    o("    s_add_u32 s39, s39, s40")
    o("    s_lshl_b32 s39, s39, 6")
    o("    s_add_u32 s39, s39, 0x8000000")
    o("    v_mov_b32 v1, s39")
    for i in range(nstamp[0]):
        o("    v_mov_b32 v2, s%d" % (84 + 2 * i))
        o("    global_store_dword v1, v2, s[22:23] offset:%d" % (4 * i))
    if "--dbgstamp" in opts:
        o("    s_load_dwordx2 s[66:67], s[0:1], 72")
        o("    s_waitcnt lgkmcnt(0)")
        o("    s_cmp_lg_u32 s40, 0")
        o("    s_cbranch_scc1 DBG_skip")
        o("    v_mov_b32 v3, 0")
        o("    s_mov_b64 exec, 1")
        for i in range(nstamp[0]):
            o("    v_mov_b32 v2, s%d" % (84 + 2 * i))
            o("    global_atomic_umax v3, v2, s[66:67] offset:%d" % (20 + 4 * i))
        o("    s_not_b32 s39, s84")
        o("    v_mov_b32 v2, s39")
        o("    global_atomic_umax v3, v2, s[66:67] offset:%d" % (16))
        o("    s_mov_b64 exec, -1")
        o("DBG_skip:")
    o("    v_mov_b32 v2, s72")
    o("    global_store_dword v1, v2, s[22:23] offset:%d" % (4 * 11))
    o("    v_mov_b32 v2, s74")
    o("    global_store_dword v1, v2, s[22:23] offset:%d" % (4 * 12))
    o("    v_mov_b32 v2, s78")
    o("    global_store_dword v1, v2, s[22:23] offset:%d" % (4 * 13))
    o("    v_mov_b32 v2, s41")
    o("    global_store_dword v1, v2, s[22:23] offset:%d" % (4 * 14))
    o("    v_mov_b32 v2, s34")
    o("    global_store_dword v1, v2, s[22:23] offset:%d" % (4 * 15))
o("K2_done:")
o("    s_endpgm")

o('.section .rodata,"a"')
for kn, vg, sg in (("gs_bin_kernel", 48, 64 if STAMP else 32), (KN, 128, 102 if STAMP else 72)):
    o(".p2align 6")
    o(".amdhsa_kernel %s" % kn)
    o("  .amdhsa_next_free_vgpr %d" % vg)
    o("  .amdhsa_next_free_sgpr %d" % sg)
    o("  .amdhsa_accum_offset %d" % vg)
    o("  .amdhsa_group_segment_fixed_size 0")
    o("  .amdhsa_kernarg_size 88")
    o("  .amdhsa_user_sgpr_count 2")
    o("  .amdhsa_user_sgpr_kernarg_segment_ptr 1")
    o("  .amdhsa_system_sgpr_workgroup_id_x 1")
    o("  .amdhsa_float_denorm_mode_32 3")
    o(".end_amdhsa_kernel")

path = args[0] if args else "cdna_kernels/%s.s" % NAME
open(path, "w").write("\n".join(out) + "\n")
print("wrote", path, "K2_LDS", K2_LDS, "K1_LDS", K1_LDS, "L_S", L_S, "L_AGG", L_AGG)
```

```python
import sys
NAME = "gather_scatter__tensor_product_equiv_mace__graph"
N = 10000
E = 320000
CHUNK = 1280
NCHUNK = E // CHUNK
REC_BYTES = 20
WS_TAB = 0x700000
WS_WIMG = 0x780000

opts = [a for a in sys.argv[1:] if a.startswith("--")]
args = [a for a in sys.argv[1:] if not a.startswith("--")]
STAMP = "--stamp" in opts
def optval(name, default):
    for a in opts:
        if a.startswith("--" + name + "="):
            return int(a.split("=")[1])
    return default
NBUF = optval("nbuf", 1)
TABSC1 = optval("tabsc1", 0)
K1T = optval("k1t", 0)
NT1 = " nt" if optval("nt1", 0) else ""
PRIO = optval("prio", 0)
ST = optval("st", 0)
K1S = optval("k1s", 0)
LB1 = optval("lb1", 0)
RPF = optval("rpf", 0)
KEYG = optval("keyg", 0)
NT2 = " nt" if optval("nt2", 0) else ""
K1ST = {0: "", 1: " sc1", 2: " nt"}[optval("k1st", 1)]
OST = {0: "", 1: " sc1", 2: " nt", 3: " sc1 nt"}[optval("ost", 1)]
K1D = optval("k1d", 0)
LAZYW = optval("lazyw", 0)
DF = optval("df", 1)
FSW = optval("fsw", 0)
ROT = optval("rot", 0)
DPW = optval("dpw", 0)
DPN = optval("dpn", 40)
DPG = optval("dpg", 8)
SPM = optval("spm", 0)
SPM2 = optval("spm2", 0)
SP0A = optval("sp0a", 0)
SP0B = optval("sp0b", 0)
B2T = optval("b2t", 0)
TLB = optval("tlb", 0)
SYNCQ = optval("syncq", 0)
LATE = optval("late", 0)
SKEW = optval("skew", 0)
PF1 = optval("pf1", 0)
PF2 = optval("pf2", 0)

out = []
def o(s=""):
    out.append(s)
nstamp = [0]
def stamp():
    if not STAMP: return
    i = nstamp[0]; nstamp[0] += 1
    o("    s_memrealtime s[%d:%d]" % (84 + 2 * i, 85 + 2 * i))
    o("    s_waitcnt lgkmcnt(0)")

HEADER = open("cdna_kernels/%s.s.ref" % NAME).read().split("\n")
hdr = [l for l in HEADER if l.startswith(";") and "@launch" not in l and "Override" not in l and "grid=ceil" not in l]

CAP = 1536
NKMAX = 40 + CAP // 32
L_WR = 0
L_CG = L_WR + 2048
L_CNT = L_CG + 2048
L_TABS = L_CNT + 256
L_LOCK = L_TABS + 256
L_FLAG = L_LOCK + 256
L_Q = L_FLAG + 4
L_FQ = L_FLAG + 16
L_TC = L_FLAG + 64
L_SOFF = L_FLAG + 256
L_S = L_SOFF + (NKMAX + 1) * 128
L_S = (L_S + 255) // 256 * 256
L_AGG = L_S + (CAP + 32) * 32
L_AGG = (L_AGG + 2047) // 2048 * 2048
L_END = L_AGG + 40 * 2048
K2_LDS = L_END
assert K2_LDS <= 160 * 1024
OOB = 0x7f000000

K1_THREADS = 640
K1L_HIST = 0
K1L_OFFS = 1024
K1L_STG = 2048
K1_LDS = K1L_STG + CHUNK * REC_BYTES

for l in hdr:
    o(l)
o("; @launch kernel=gs_bin_kernel grid=(256,1,1) block=(%d,1,1) lds=%d" % (K1_THREADS, K1_LDS))
o("; @launch kernel=%s_kernel grid=(256,1,1) block=(1024,1,1) lds=%d" % (NAME, K2_LDS))
o('.amdgcn_target "amdgcn-amd-amdhsa--gfx950"')
o(".text")

def dpp_scan(v):
    for sh in (1, 2, 4, 8):
        o("    s_nop 1")
        o("    v_add_u32_dpp %s, %s, %s row_shr:%d row_mask:0xf bank_mask:0xf bound_ctrl:0" % (v, v, v, sh))
    o("    s_nop 1")
    o("    v_add_u32_dpp %s, %s, %s row_bcast:15 row_mask:0xa bank_mask:0xf" % (v, v, v))
    o("    s_nop 1")
    o("    v_add_u32_dpp %s, %s, %s row_bcast:31 row_mask:0xc bank_mask:0xf" % (v, v, v))
    o("    s_nop 1")

o(".globl gs_bin_kernel")
o(".p2align 8")
o(".type gs_bin_kernel,@function")
o("gs_bin_kernel:")
k1n = [0]
def stamp1():
    if not STAMP: return
    i = k1n[0]; k1n[0] += 1
    o("    s_memrealtime s[%d:%d]" % (40 + 2 * i, 41 + 2 * i))
    o("    s_waitcnt lgkmcnt(0)")
def stamp1_flush():
    if not STAMP: return
    o("    s_mov_b64 exec, -1")
    o("    s_waitcnt vmcnt(0)")
    o("    s_memrealtime s[50:51]")
    o("    s_waitcnt lgkmcnt(0)")
    if "--dbgstamp" in opts:
        o("    s_load_dwordx2 s[52:53], s[0:1], 72")
        o("    s_waitcnt lgkmcnt(0)")
        o("    v_cmp_eq_u32 vcc, 0, v0")
        o("    s_and_saveexec_b64 s[24:25], vcc")
        o("    s_cbranch_execz DBG1_skip")
        o("    v_mov_b32 v3, 0")
        o("    s_not_b32 s3, s40")
        o("    v_mov_b32 v2, s3")
        o("    global_atomic_umax v3, v2, s[52:53] offset:512")
        o("    v_mov_b32 v2, s42")
        o("    global_atomic_umax v3, v2, s[52:53] offset:516")
        o("    v_mov_b32 v2, s46")
        o("    global_atomic_umax v3, v2, s[52:53] offset:520")
        o("    v_mov_b32 v2, s50")
        o("    global_atomic_umax v3, v2, s[52:53] offset:524")
        o("DBG1_skip:")
        o("    s_mov_b64 exec, -1")
    o("    v_lshrrev_b32 v1, 6, v0")
    o("    s_lshl_b32 s3, s2, 4")
    o("    v_add_u32 v1, s3, v1")
    o("    v_lshlrev_b32 v1, 6, v1")
    o("    v_add_u32 v1, 0x9000000, v1")
    for i in range(6):
        o("    v_mov_b32 v2, s%d" % (40 + 2 * i))
        o("    global_store_dword v1, v2, s[22:23] offset:%d" % (4 * i))
stamp1()
o("    s_cmp_ge_u32 s2, 256")
o("    s_cbranch_scc1 K1_done")
o("    s_load_dwordx16 s[4:19], s[0:1], 0")
o("    s_load_dwordx2 s[22:23], s[0:1], 80")
o("    s_cmp_ge_u32 s2, %d" % NCHUNK)
o("    s_cbranch_scc1 K1_wimg")
o("    s_mul_i32 s3, s2, %d" % CHUNK)
o("    v_lshl_add_u32 v1, v0, 1, s3")
o("    v_lshlrev_b32 v2, 2, v1               ; *4")
o("    v_lshlrev_b32 v3, 3, v1               ; *8")
o("    v_lshlrev_b32 v20, 2, v0              ; tid*4")
o("    v_mov_b32 v21, 0")
o("    v_mov_b32 v22, 1")
o("    s_waitcnt lgkmcnt(0)")
o("    global_load_dwordx2 v[4:5], v2, s[8:9]" + NT1 + "      ; dst")
def k1_rest():
    o("    global_load_dwordx2 v[6:7], v2, s[6:7]" + NT1 + "     ; src")
    o("    global_load_dwordx4 v[8:11], v3, s[10:11]" + NT1 + "  ; sh")
    o("    global_load_dwordx4 v[12:15], v3, s[12:13]" + NT1 + " ; ea")
if not K1D: k1_rest()
def k1_prefetch():
    n = 0
    if PF1 & 1:
        o("    s_lshr_b32 s3, s2, 3")
        o("    s_mul_i32 s3, s3, %d" % K1_THREADS)
        o("    s_and_b32 s26, s2, 7")
        o("    s_mul_i32 s26, s26, 2500")
        o("    s_add_u32 s3, s3, s26")
        o("    v_add_u32 v36, s3, v0")
        o("    v_subrev_u32 v37, 20000, v36")
        o("    v_min_u32 v36, v36, v37               ; mod 20000")
        o("    v_lshrrev_b32 v37, 1, v36")
        o("    v_and_b32 v36, 1, v36")
        o("    v_lshlrev_b32 v36, 7, v36")
        o("    v_lshl_add_u32 v36, v37, 10, v36")
        o("    global_load_dword v40, v36, s[4:5]")
        n += 1
    if PF1 & 2:
        o("    s_mul_i32 s3, s2, 240")
        o("    v_min_u32 v37, 239, v0")
        o("    v_add_u32 v36, s3, v37")
        o("    v_min_u32 v36, 59999, v36")
        o("    s_mov_b32 s26, 43691")
        o("    v_mul_lo_u32 v37, v36, s26")
        o("    v_lshrrev_b32 v37, 18, v37            ; /6")
        o("    v_mul_u32_u24 v39, 6, v37")
        o("    v_sub_u32 v39, v36, v39")
        o("    v_lshlrev_b32 v39, 7, v39")
        o("    v_lshl_add_u32 v36, v37, 10, v39")
        o("    global_load_dword v41, v36, s[4:5] offset:256")
        n += 1
    return n
NPF = 0
if PF1 and not (PF1 & 4): NPF = k1_prefetch()
if TLB & 4:
    o("    s_mul_i32 s3, s2, %d" % (CHUNK * REC_BYTES))
    o("    v_mov_b32 v36, s3")
    o("    global_load_dword v40, v36, s[22:23]")
    o("    s_lshl_b32 s3, s2, 10")
    o("    s_add_u32 s3, s3, 0x%x" % WS_TAB)
    o("    v_mov_b32 v37, s3")
    o("    global_load_dword v41, v37, s[22:23]")
    NPF = 2
o("    v_cmp_gt_u32 vcc, 256, v0")
o("    s_and_saveexec_b64 s[24:25], vcc")
o("    ds_write_b32 v20, v21 offset:%d" % K1L_HIST)
o("    s_mov_b64 exec, s[24:25]")
o("    s_waitcnt lgkmcnt(0)")
o("    s_barrier")
if K1D == 1: k1_rest()
if K1D == 2:
    o("    s_waitcnt vmcnt(0)")
    k1_rest()
o("    s_waitcnt vmcnt(%d)" % (3 + NPF))
stamp1()
if PF1 & 4: NPF = k1_prefetch()
if KEYG:
    for d, r, t in (("v4", "v16", "v42"), ("v5", "v17", "v43")):
        o("    v_and_b32 %s, 7, %s" % (r, d))
        o("    v_bfe_u32 %s, %s, 3, 5" % (t, d))
        o("    v_lshlrev_b32 %s, 2, %s" % (t, t))
        o("    v_lshl_or_b32 %s, %s, 7, %s" % (r, r, t))
else:
    o("    v_and_b32 v16, 255, v4")
    o("    v_and_b32 v17, 255, v5")
    o("    v_lshlrev_b32 v16, 2, v16")
    o("    v_lshlrev_b32 v17, 2, v17")
o("    ds_add_rtn_u32 v18, v16, v22 offset:%d" % K1L_HIST)
o("    ds_add_rtn_u32 v19, v17, v22 offset:%d" % K1L_HIST)
o("    v_lshrrev_b32 v4, 8, v4")
o("    v_lshrrev_b32 v5, 8, v5")
o("    s_waitcnt lgkmcnt(0)")
o("    s_barrier")
if K1S:
    o("    v_and_b32 v23, 63, v0")
    o("    v_lshlrev_b32 v23, 4, v23")
else:
    o("    v_cmp_gt_u32 vcc, 64, v0")
    o("    s_and_saveexec_b64 s[24:25], vcc")
    o("    s_cbranch_execz K1_scan_done")
    o("    v_lshlrev_b32 v23, 4, v0")
o("    ds_read_b128 v[24:27], v23 offset:%d" % K1L_HIST)
o("    s_waitcnt lgkmcnt(0)")
o("    v_add_u32 v28, v24, v25")
o("    v_add_u32 v29, v28, v26")
o("    v_add_u32 v30, v29, v27")
o("    v_mov_b32 v31, v30")
dpp_scan("v31")
o("    v_sub_u32 v32, v31, v30")
o("    v_add_u32 v33, v32, v24")
o("    v_add_u32 v34, v32, v28")
o("    v_add_u32 v35, v32, v29")
o("    ds_write_b128 v23, v[32:35] offset:%d" % K1L_OFFS)
o("    v_lshl_or_b32 v36, v24, 16, v32")
o("    v_lshl_or_b32 v37, v25, 16, v33")
o("    v_lshl_or_b32 v38, v26, 16, v34")
o("    v_lshl_or_b32 v39, v27, 16, v35")
o("    s_and_b32 s3, s2, 7")
o("    s_lshl_b32 s3, s3, 5")
o("    s_lshr_b32 s26, s2, 3")
o("    s_add_u32 s3, s3, s26")
o("    s_lshl_b32 s3, s3, 2")
o("    s_add_u32 s3, s3, 0x%x" % WS_TAB)
o("    v_lshl_add_u32 v44, v23, 8, s3        ; bucket 4l -> (4l)*1024")
def tab_store():
    for i in range(4):
        o("    global_store_dword v44, v%d, s[22:23] offset:%d%s" % (36 + i, 1024 * i, " sc1" if TABSC1 else ""))
if not K1S: tab_store()
if not K1S: o("    s_waitcnt lgkmcnt(0)")
o("K1_scan_done:")
if not K1S: o("    s_mov_b64 exec, s[24:25]")
if not K1S: o("    s_barrier")
stamp1()
o("    ds_read_b32 v24, v16 offset:%d" % K1L_OFFS)
o("    ds_read_b32 v25, v17 offset:%d" % K1L_OFFS)
o("    s_waitcnt vmcnt(%d)" % NPF)
stamp1()
if K1T:
    o("    v_cmp_gt_u32 vcc, %d, v0" % (128 * K1T))
    o("    s_and_saveexec_b64 s[26:27], vcc")
    o("    s_cbranch_execz K1_t_skip")
    o("    v_and_b32 v36, 63, v0")
    o("    v_min_u32 v36, 39, v36")
    o("    s_mul_i32 s3, s2, 40")
    o("    v_add_u32 v36, s3, v36")
    o("    v_lshrrev_b32 v37, 6, v0")
    o("    v_lshlrev_b32 v37, 7, v37")
    o("    v_lshl_add_u32 v36, v36, 10, v37")
    o("    global_load_dword v40, v36, s[4:5]")
    o("K1_t_skip:")
    o("    s_mov_b64 exec, s[26:27]")
o("    v_lshl_or_b32 v4, v4, 16, v6")
o("    v_lshl_or_b32 v5, v5, 16, v7")
o("    s_waitcnt lgkmcnt(0)")
o("    v_add_u32 v24, v24, v18")
o("    v_add_u32 v25, v25, v19")
o("    v_mul_u32_u24 v24, %d, v24" % REC_BYTES)
o("    v_mul_u32_u24 v25, %d, v25" % REC_BYTES)
o("    v_add_u32 v24, %d, v24" % K1L_STG)
o("    v_add_u32 v25, %d, v25" % K1L_STG)
o("    ds_write2_b32 v24, v8, v9 offset0:0 offset1:1")
o("    ds_write2_b32 v24, v12, v13 offset0:2 offset1:3")
o("    ds_write_b32 v24, v4 offset:16")
o("    ds_write2_b32 v25, v10, v11 offset0:0 offset1:1")
o("    ds_write2_b32 v25, v14, v15 offset0:2 offset1:3")
o("    ds_write_b32 v25, v5 offset:16")
if K1S:
    o("    v_cmp_le_u32 vcc, %d, v0" % (K1_THREADS - 64))
    o("    s_and_saveexec_b64 s[24:25], vcc")
    o("    s_cbranch_execz K1_tab_done")
    tab_store()
    o("K1_tab_done:")
    o("    s_mov_b64 exec, s[24:25]")
o("    s_waitcnt lgkmcnt(0)")
o("    s_barrier")
stamp1()
o("    v_lshlrev_b32 v23, 4, v0")
o("    ds_read_b128 v[4:7], v23 offset:%d" % K1L_STG)
o("    ds_read_b128 v[8:11], v23 offset:%d" % (K1L_STG + K1_THREADS * 16))
o("    s_mul_i32 s3, s2, %d" % (CHUNK * REC_BYTES))
o("    v_add_u32 v24, s3, v23")
o("    v_add_u32 v25, %d, v24" % (K1_THREADS * 16))
o("    v_add_u32 v26, %d, v24" % (2 * K1_THREADS * 16))
o("    v_cmp_gt_u32 vcc, %d, v0" % (CHUNK * REC_BYTES // 16 - 2 * K1_THREADS))
o("    s_waitcnt lgkmcnt(1)")
o("    global_store_dwordx4 v24, v[4:7], s[22:23]" + K1ST)
o("    s_waitcnt lgkmcnt(0)")
o("    global_store_dwordx4 v25, v[8:11], s[22:23]" + K1ST)
o("    s_and_saveexec_b64 s[24:25], vcc")
o("    s_cbranch_execz K1_end2")
o("    ds_read_b128 v[12:15], v23 offset:%d" % (K1L_STG + 2 * K1_THREADS * 16))
o("    s_waitcnt lgkmcnt(0)")
o("    global_store_dwordx4 v26, v[12:15], s[22:23]" + K1ST)
o("K1_end2:")
stamp1_flush()
o("    s_endpgm")
o("K1_wimg:")
o("    s_cmp_ge_u32 s2, %d" % (NCHUNK + 4))
o("    s_cbranch_scc1 K1_done")
o("    v_cmp_gt_u32 vcc, 512, v0")
o("    s_and_saveexec_b64 s[24:25], vcc")
o("    s_cbranch_execz K1_done")
o("    s_sub_u32 s3, s2, %d                  ; dp" % NCHUNK)
o("    v_bfe_u32 v1, v0, 8, 1                ; t")
o("    v_bfe_u32 v2, v0, 6, 2                ; s")
o("    v_bfe_u32 v3, v0, 4, 2                ; q")
o("    v_bfe_u32 v5, v0, 2, 2                ; i>>2")
o("    v_and_b32 v6, 3, v0                   ; i&3")
o("    v_lshlrev_b32 v7, 3, v3               ; q*8")
o("    v_lshl_add_u32 v7, v2, 5, v7          ; c0 = 32s + 8q")
o("    v_lshlrev_b32 v8, 3, v5")
o("    v_lshl_add_u32 v8, v1, 2, v8")
o("    v_add_u32 v8, v8, v6")
o("    s_lshl_b32 s26, s3, 5")
o("    v_add_u32 v8, s26, v8                 ; d")
o("    v_lshlrev_b32 v8, 1, v8")
o("    v_lshl_add_u32 v8, v7, 8, v8")
o("    s_waitcnt lgkmcnt(0)")
for j in range(8):
    o("    global_load_ushort v%d, v8, s[18:19] offset:%d" % (16 + j, 256 * j))
o("    s_lshl_b32 s26, s3, 13")
o("    s_add_u32 s26, s26, 0x%x" % WS_WIMG)
o("    v_lshl_add_u32 v11, v0, 4, s26")
o("    s_waitcnt vmcnt(0)")
for p in range(4):
    o("    v_lshl_or_b32 v%d, v%d, 16, v%d" % (12 + p, 17 + 2 * p, 16 + 2 * p))
o("    global_store_dwordx4 v11, v[12:15], s[22:23] sc1")
o("K1_done:")
o("    s_endpgm")

KN = NAME + "_kernel"
o(".globl %s" % KN)
o(".p2align 8")
o(".type %s,@function" % KN)
o("%s:" % KN)
vLaneOff = 1; vSoffC = 2; vSC = 3; vAggC = 4; vL8 = 5; vND = 6; vQ = 7
vP = 8; vS = 16; vCG = 20; vT = 22; vOne = 23; vA = 24
vRB = [32, 64]; vD = 96; vWR = 64
vREC = 32
vMETA = 96; vRANK = 104; vCA = 112
MM = 8

TPC = 3
NSLOW = (E + 1023) // 1024
PFX = optval("pfx", 0)
PF0 = optval("pf0", 0)
TLB = optval("tlb", 0)
SPF = optval("spf", 0)
spf_u = [0]
def spf(nsl, tag):
    if nsl == 0: return
    o("    s_cmp_lt_u32 s40, 12")
    o("    s_cbranch_scc1 %s_e" % tag)
    o("    s_cmp_ge_u32 s2, 250")
    o("    s_cbranch_scc1 %s_e" % tag)
    o("    s_cmp_lg_u32 s41, 0")
    o("    s_cbranch_scc1 %s_e" % tag)
    for k in range(nsl):
        u = spf_u[0]; spf_u[0] += 1
        o("    s_mul_i32 s66, s2, %d" % (40 * 1024))
        o("    s_lshl_b32 s39, s40, 6")
        o("    s_add_u32 s66, s66, s39")
        o("    s_add_u32 s66, s66, %d" % (u * 256 - 12 * 64))
        o("    s_mov_b32 s39, 5")
        o("%s_l%d:" % (tag, k))
        for j in range(8):
            o("    s_load_dword s67, s[4:5], s66 offset:%d" % (j * 1024))
        o("    s_add_u32 s66, s66, 8192")
        o("    s_sub_u32 s39, s39, 1")
        o("    s_cmp_lg_u32 s39, 0")
        o("    s_cbranch_scc1 %s_l%d" % (tag, k))
    o("%s_e:" % tag)
PFM = optval("pfm", 0)
o("    s_cmp_ge_u32 s2, 256")
o("    s_cbranch_scc1 K2_done")
stamp()
o("    s_load_dwordx2 s[22:23], s[0:1], 80")
o("    s_load_dwordx16 s[4:19], s[0:1], 0")
o("    s_load_dwordx2 s[20:21], s[0:1], 64")
o("    v_and_b32 v8, 63, v0                  ; lane")
o("    v_lshrrev_b32 v9, 6, v0")
o("    s_mov_b32 s44, 21846")
o("    v_readfirstlane_b32 s40, v9")
o("    v_mul_lo_u32 v14, v0, s44")
o("    v_lshrrev_b32 v14, 16, v14")
o("    v_mul_u32_u24 v17, 3, v14")
o("    v_sub_u32 v17, v0, v17                ; i0 = tid%3")
if KEYG:
    o("    s_and_b32 s3, s2, 7")
    o("    s_lshl_b32 s3, s3, 5")
    o("    s_lshr_b32 s43, s2, 3")
    o("    s_or_b32 s3, s3, s43")
    o("    s_lshl_b32 s3, s3, 10")
else:
    o("    s_lshl_b32 s3, s2, 10")
o("    s_add_u32 s43, s3, 0x%x               ; TAB + b*1024" % WS_TAB)
o("    v_lshl_add_u32 v15, v14, 2, s43")
o("    v_and_b32 v16, 31, v14")
o("    v_lshrrev_b32 v14, 5, v14")
o("    v_lshl_add_u32 v14, v16, 3, v14       ; chunk")
o("    v_and_b32 v9, 15, v8                  ; col")
o("    v_lshrrev_b32 v10, 4, v8              ; g")
o("    v_lshlrev_b32 v%d, 4, v9              ; laneoff = col*16" % vLaneOff)
o("    s_cmp_ge_u32 s40, 12")
o("    s_waitcnt lgkmcnt(0)")
o("    s_cbranch_scc1 K2_hiwaves")
if TLB & 1:
    o("    s_mov_b32 s47, %d" % (CHUNK * REC_BYTES))
    o("    v_mul_lo_u32 v19, v16, s47")
    o("    s_mul_i32 s3, s2, 100")
    o("    v_add_u32 v19, s3, v19")
o("    global_load_dword v16, v15, s[22:23]")
if TLB & 1:
    o("    global_load_dword v120, v19, s[22:23]")
o("    s_branch K2_tabs_issued")
o("K2_hiwaves:")
if RPF:
    o("    v_subrev_u32 v24, 768, v0")
    o("    v_lshrrev_b32 v25, 5, v24")
    o("    s_andn2_b32 s3, s2, 7")
    o("    v_add_u32 v25, s3, v25                ; chunk")
    o("    v_min_u32 v25, %d, v25" % (NCHUNK - 1))
    o("    s_mov_b32 s47, %d" % (CHUNK * REC_BYTES))
    o("    v_mul_lo_u32 v25, v25, s47")
    o("    v_and_b32 v24, 31, v24")
    o("    v_lshl_add_u32 v24, v24, 7, v25")
    o("    s_and_b32 s3, s2, 7")
    o("    s_mul_i32 s3, s3, 3200")
    o("    v_add_u32 v24, s3, v24")
    o("    v_max_u32 v24, 448, v24")
    o("    global_load_dword v123, v24, s[22:23] offset:-448")
o("    s_mov_b32 s24, s4")
o("    s_and_b32 s25, s5, 0xffff")
o("    s_mov_b32 s26, %d" % (N * 1024))
o("    s_mov_b32 s27, 0x00020000")
o("    s_cmp_eq_u32 s40, 13")
o("    s_cbranch_scc1 K2_cg_issue")
o("    s_cmp_lg_u32 s40, 14")
o("    s_cbranch_scc1 K2_pf")
for k in range(4):
    o("    global_load_dwordx4 v[%d:%d], v%d, s[16:17] offset:%d" % (96 + 4 * k, 96 + 4 * k + 3, vLaneOff, 256 * k))
o("    s_branch K2_pf")
o("K2_cg_issue:")
o("    v_lshrrev_b32 v11, 2, v9")
o("    v_lshlrev_b32 v18, 3, v10")
o("    v_lshl_add_u32 v18, v11, 1, v18")
for u in range(4):
    o("    global_load_ushort v%d, v18, s[14:15] offset:%d" % (96 + u, 32 * u))
o("K2_pf:")
NPF2 = 0
if ST:
    o("    s_cmp_eq_u32 s40, 13")
    o("    s_cbranch_scc1 K2_st_e")
    o("    s_cmp_eq_u32 s40, 14")
    o("    s_cbranch_scc1 K2_st_e")
    if ST == 1:
        o("    s_cmp_eq_u32 s40, 12")
        o("    s_cbranch_scc1 K2_st_e")
    o("    s_lshr_b32 s3, s2, 3")
    o("    s_mul_i32 s3, s3, 625")
    o("    s_add_u32 s3, s3, %d" % (256 - 768))
    o("    v_add_u32 v24, s3, v0")
    o("    v_lshrrev_b32 v25, 1, v24")
    o("    v_and_b32 v24, 1, v24")
    o("    v_lshlrev_b32 v24, 7, v24")
    o("    v_lshl_add_u32 v24, v25, 10, v24")
    o("    buffer_load_dword v125, v24, s[24:27], 0 offen")
    o("K2_st_e:")
if TLB & 2:
    o("    v_subrev_u32 v24, 768, v0")
    o("    v_lshlrev_b32 v24, 16, v24")
    o("    buffer_load_dword v121, v24, s[24:27], 0 offen")
    o("    v_min_u32 v24, 0x9c0000, v24")
    o("    global_load_dword v122, v24, s[20:21]")
    NPF2 += 2
if PFX & 1:
    o("    s_lshr_b32 s3, s2, 3")
    o("    s_mul_i32 s3, s3, 313")
    o("    s_and_b32 s44, s2, 7")
    o("    s_mul_i32 s44, s44, 1250")
    o("    s_add_u32 s3, s3, s44")
    o("    s_sub_u32 s3, s3, 768")
    o("    v_add_u32 v24, s3, v0")
    o("    v_subrev_u32 v25, 10000, v24")
    o("    v_min_u32 v24, v24, v25")
    o("    v_lshlrev_b32 v24, 10, v24")
    o("    buffer_load_dword v120, v24, s[24:27], 0 offen")
    o("    buffer_load_dword v121, v24, s[24:27], 0 offen offset:128")
    o("    v_subrev_u32 v26, 768, v0")
    o("    v_lshrrev_b32 v24, 1, v26")
    o("    v_min_u32 v24, 56, v24")
    o("    s_add_u32 s3, s3, %d" % (768 + 256))
    o("    v_add_u32 v24, s3, v24")
    o("    v_subrev_u32 v25, 10000, v24")
    o("    v_min_u32 v24, v24, v25")
    o("    v_lshlrev_b32 v24, 10, v24")
    o("    v_and_b32 v26, 1, v26")
    o("    v_lshl_add_u32 v24, v26, 7, v24")
    o("    buffer_load_dword v122, v24, s[24:27], 0 offen")
    NPF2 += 3
if PFX & 2:
    o("    s_lshl_b32 s3, s2, 8")
    o("    s_sub_u32 s3, s3, 768")
    o("    v_add_u32 v24, s3, v0")
    o("    s_mov_b32 s44, 43691")
    o("    v_mul_lo_u32 v25, v24, s44")
    o("    v_lshrrev_b32 v25, 18, v25            ; /6")
    o("    v_mul_u32_u24 v26, 6, v25")
    o("    v_sub_u32 v26, v24, v26")
    o("    v_lshlrev_b32 v26, 7, v26")
    o("    v_lshl_add_u32 v24, v25, 10, v26")
    o("    buffer_load_dword v124, v24, s[24:27], 0 offen offset:256")
    NPF2 += 1
if PFX & 4:
    o("    s_mul_i32 s3, s2, 313")
    o("    s_sub_u32 s3, s3, 768")
    o("    v_add_u32 v24, s3, v0")
    o("    v_lshlrev_b32 v24, 7, v24")
    o("    buffer_load_dword v124, v24, s[24:27], 0 offen")
    o("    v_subrev_u32 v26, 768, v0")
    o("    v_min_u32 v26, 56, v26")
    o("    s_add_u32 s3, s3, %d" % (768 + 256))
    o("    v_add_u32 v24, s3, v26")
    o("    v_lshlrev_b32 v24, 7, v24")
    o("    buffer_load_dword v125, v24, s[24:27], 0 offen")
    NPF2 += 2
o("K2_tabs_issued:")
o("    v_lshlrev_b32 v%d, 5, v10             ; g*32" % vSoffC)
o("    v_lshrrev_b32 v11, 2, v9              ; r = col>>2")
o("    v_and_b32 v12, 3, v9                  ; c = col&3")
o("    v_lshl_add_u32 v13, v11, 2, v10       ; 4r+g")
o("    v_lshlrev_b32 v13, 5, v13")
o("    v_lshl_add_u32 v%d, v12, 3, v13       ; (4r+g)*32 + c*8" % vSC)
o("    v_xor_b32 v13, v9, v10                ; col ^ w")
o("    v_lshlrev_b32 v13, 4, v13")
o("    v_lshl_add_u32 v%d, v10, 8, v13       ; w*256 + (col^w)*16" % vAggC)
o("    v_lshlrev_b32 v%d, 3, v8              ; lane*8" % vL8)
o("    v_mov_b32 v%d, 1" % vOne)
o("    s_mov_b32 s32, 0x05040100")
o("    s_mov_b32 s33, 0x07060302")
o("    s_mov_b32 s41, 0")
o("    s_mov_b32 s42, 0                      ; round")
o("    s_mov_b32 s70, 160")
o("    s_cmp_ge_u32 s40, 12")
o("    s_cselect_b32 s70, %d, s70" % (FSW if FSW else 160))
o("    s_lshr_b32 s68, s2, 3")
o("    s_mul_i32 s68, s68, 313")
o("    s_min_u32 s68, s68, %d" % (N - 320))
o("    s_lshl_b32 s68, s68, 10")
o("    s_and_b32 s69, s2, 7")
o("    s_mul_i32 s69, s69, 5")
o("    s_mov_b32 s24, s4")
o("    s_and_b32 s25, s5, 0xffff")
o("    s_mov_b32 s26, %d" % (N * 1024))
o("    s_mov_b32 s27, 0x00020000")
o("    s_mov_b32 s28, s20")
o("    s_and_b32 s29, s21, 0xffff")
o("    s_mov_b32 s30, %d" % (N * 1024))
o("    s_mov_b32 s31, 0x00020000")
def round_init():
    o("    v_lshlrev_b32 v18, 4, v0")
    for i in range(4):
        o("    v_mov_b32 v%d, 0x%x" % (24 + i, OOB))
    o("    v_mov_b32 v28, 0")
    o("    v_mov_b32 v29, %d" % (16 - DPW))
    o("    v_cmp_gt_u32 vcc, 64, v0")
    o("    s_and_saveexec_b64 s[44:45], vcc")
    o("    v_lshlrev_b32 v19, 2, v0")
    o("    ds_write_b32 v19, v28 offset:%d" % L_CNT)
    o("    ds_write_b32 v19, v28 offset:%d" % L_LOCK)
    o("    ds_write_b32 v19, v28 offset:%d" % L_FLAG)
    o("    v_mov_b32 v19, 0")
    o("    ds_write_b64 v19, v[28:29] offset:%d" % L_FLAG)
    o("    s_mov_b64 exec, s[44:45]")
    o("    v_cmp_gt_u32 vcc, %d, v0" % ((NKMAX + 1) * 128 // 16))
    o("    s_and_saveexec_b64 s[44:45], vcc")
    o("    ds_write_b128 v18, v[24:27] offset:%d" % L_SOFF)
    o("    s_mov_b64 exec, s[44:45]")
    for m in range(MM):
        o("    s_mov_b64 s[%d:%d], 0" % (48 + 2 * m, 49 + 2 * m))
    o("    s_mov_b64 s[64:65], 0")
round_init()
def barrier1():
    o("    s_waitcnt lgkmcnt(0)")
    o("    s_barrier")
if not LB1:
    barrier1()
stamp()
def zero_big():
    o("    v_lshlrev_b32 v18, 4, v0              ; tid*16")
    for i in range(4):
        o("    v_mov_b32 v%d, 0" % (28 + i))
    nz = (L_END - L_S) // 16
    full = nz // 1024
    rem = nz - full * 1024
    o("    v_add_u32 v25, %d, v18" % L_S)
    o("    v_add_u32 v26, %d, v18" % (L_S + 65536))
    o("    v_add_u32 v27, %d, v18" % (L_S + 131072))
    for i in range(full):
        off = i * 16384
        o("    ds_write_b128 v%d, v[28:31] offset:%d" % (25 + off // 65536, off % 65536))
    if rem:
        off = full * 16384
        o("    v_cmp_gt_u32 vcc, %d, v0" % rem)
        o("    s_and_saveexec_b64 s[44:45], vcc")
        o("    ds_write_b128 v%d, v[28:31] offset:%d" % (25 + off // 65536, off % 65536))
        o("    s_mov_b64 exec, s[44:45]")
o("    s_cmp_lt_u32 s40, 12")
o("    s_cbranch_scc1 K2_lowaves")
if LB1: barrier1()
zero_big()
o("    s_cmp_eq_u32 s40, 13")
o("    s_cbranch_scc1 K2_cg_build")
o("    s_cmp_lg_u32 s40, 14")
o("    s_cbranch_scc1 K2_S_done")
o("    s_waitcnt vmcnt(%d)" % NPF2)
for i in range(4):
    for k in range(4):
        o("    v_lshlrev_b32 v%d, 16, v%d" % (112 + k, 96 + 4 * k + i))
        o("    v_and_b32 v%d, 0xffff0000, v%d" % (116 + k, 96 + 4 * k + i))
    o("    ds_write_b128 v%d, v[112:115] offset:%d" % (vLaneOff, L_WR + 256 * (2 * i)))
    o("    ds_write_b128 v%d, v[116:119] offset:%d" % (vLaneOff, L_WR + 256 * (2 * i + 1)))
o("    s_branch K2_S_done")
o("K2_cg_build:")
o("    v_and_b32 v19, 1, v12")
o("    v_lshlrev_b32 v19, 4, v19             ; shift 0/16")
o("    v_cmp_gt_u32 vcc, 2, v12")
o("    s_waitcnt vmcnt(%d)" % NPF2)
for u in range(4):
    o("    v_lshlrev_b32 v20, v19, v%d" % (96 + u))
    o("    v_cndmask_b32 v%d, 0, v20, vcc" % (112 + 2 * u))
    o("    v_xor_b32 v%d, v20, v%d" % (113 + 2 * u, 112 + 2 * u))
    o("    ds_write_b64 v%d, v[%d:%d] offset:%d" % (vL8, 112 + 2 * u, 113 + 2 * u, L_CG + 512 * u))
o("    s_branch K2_S_done")
o("K2_lowaves:")
o("    v_cmp_gt_u32 vcc, %d, v14" % NCHUNK)
o("    s_mov_b32 s47, %d" % (CHUNK * REC_BYTES))
o("    s_waitcnt vmcnt(%d)" % (1 if TLB & 1 else 0))
if STAMP:
    o("    s_memrealtime s[72:73]")
    o("    s_waitcnt lgkmcnt(0)")
o("    v_lshrrev_b32 v18, 16, v16            ; cnt")
o("    v_cndmask_b32 v18, 0, v18, vcc")
o("    v_and_b32 v19, 0xffff, v16            ; start")
o("    v_add_u32 v19, v19, v17")
o("    v_mul_u32_u24 v19, %d, v19" % REC_BYTES)
o("    v_mad_u32_u24 v19, v14, s47, v19")
for m in range(MM):
    o("    v_cmp_lt_u32 vcc, v17, v18")
    o("    s_and_b64 exec, exec, vcc")
    o("    s_cbranch_execz K2_loads_done0")
    o("    s_mov_b64 s[%d:%d], exec" % (48 + 2 * m, 49 + 2 * m))
    o("    global_load_dwordx4 v[%d:%d], v19, s[22:23] offset:%d%s" % (vREC + 8 * m, vREC + 8 * m + 3, m * TPC * REC_BYTES, NT2))
    o("    global_load_dword v%d, v19, s[22:23] offset:%d%s" % (vMETA + m, m * TPC * REC_BYTES + 16, NT2))
    o("    v_add_u32 v17, %d, v17" % TPC)
o("    v_cmp_lt_u32 vcc, v17, v18")
o("    s_mov_b64 s[64:65], vcc")
o("K2_loads_done0:")
o("    s_mov_b64 exec, -1")
if LB1: barrier1()
if PF0 == 1:
    o("    s_lshr_b32 s3, s2, 3")
    o("    s_mul_i32 s3, s3, 625")
    o("    s_and_b32 s44, s2, 7")
    o("    s_mul_i32 s44, s44, 2500")
    o("    s_add_u32 s3, s3, s44")
    o("    v_min_u32 v24, 624, v0")
    o("    v_add_u32 v24, s3, v24")
    o("    v_subrev_u32 v25, 20000, v24")
    o("    v_min_u32 v24, v24, v25")
if PF0 == 2:
    o("    s_mul_i32 s3, s2, 79")
    o("    v_min_u32 v24, 78, v0")
    o("    v_add_u32 v24, s3, v24")
if PF0:
    o("    v_lshrrev_b32 v25, 1, v24")
    o("    v_and_b32 v24, 1, v24")
    o("    v_lshlrev_b32 v24, 7, v24")
    o("    v_lshl_add_u32 v24, v25, 10, v24")
    o("    buffer_load_dword v120, v24, s[24:27], 0 offen")
zero_big()
if PF0:
    o("    s_cmp_eq_u64 s[64:65], 0")
    o("    s_cbranch_scc1 K2_noflag0")
    o("    v_mov_b32 v19, 0")
    o("    ds_write_b32 v19, v%d offset:%d" % (vOne, L_FLAG))
    o("K2_noflag0:")
    o("    s_waitcnt vmcnt(1)")
    o("    s_branch K2_recs_ready")
else:
    o("    s_branch K2_loads_done")

o("K2_round:")
round_init()
o("    s_lshl_b32 s3, s42, 10")
o("    v_add_u32 v14, s3, v0                 ; edge")
o("    v_cmp_gt_u32 vcc, %d, v14" % E)
o("    v_min_u32 v14, %d, v14" % (E - 1))
o("    v_lshlrev_b32 v15, 2, v14")
o("    v_lshlrev_b32 v16, 3, v14")
o("    global_load_dword v17, v15, s[8:9]")
o("    global_load_dword v18, v15, s[6:7]")
o("    global_load_dwordx2 v[%d:%d], v16, s[10:11]" % (vREC, vREC + 1))
o("    global_load_dwordx2 v[%d:%d], v16, s[12:13]" % (vREC + 2, vREC + 3))
o("    s_waitcnt vmcnt(0) lgkmcnt(0)")
o("    s_barrier")
o("    v_and_b32 v19, 255, v17")
o("    v_cmp_eq_u32 s[46:47], s2, v19")
o("    v_lshrrev_b32 v17, 8, v17")
o("    v_lshl_or_b32 v%d, v17, 16, v18" % vMETA)
o("    s_and_b64 s[48:49], vcc, s[46:47]")

o("K2_loads_done:")
o("    s_cmp_eq_u64 s[64:65], 0")
o("    s_cbranch_scc1 K2_noflag")
o("    v_mov_b32 v19, 0")
o("    ds_write_b32 v19, v%d offset:%d" % (vOne, L_FLAG))
o("K2_noflag:")
o("    s_waitcnt vmcnt(0)")
o("K2_recs_ready:")
if STAMP:
    o("    s_memrealtime s[74:75]")
    o("    s_waitcnt lgkmcnt(0)")
for m in range(MM):
    o("    s_mov_b64 exec, s[%d:%d]" % (48 + 2 * m, 49 + 2 * m))
    o("    s_cbranch_execz K2_rank_done")
    o("    v_lshrrev_b32 v%d, 16, v%d" % (vCA + m, vMETA + m))
    o("    v_lshlrev_b32 v%d, 2, v%d" % (vCA + m, vCA + m))
    o("    ds_add_rtn_u32 v%d, v%d, v%d offset:%d" % (vRANK + m, vCA + m, vOne, L_CNT))
o("K2_rank_done:")
for m in range(MM):
    o("    s_mov_b64 exec, s[%d:%d]" % (48 + 2 * m, 49 + 2 * m))
    o("    s_cbranch_execz K2_S_done")
    r = vREC + 8 * m
    o("    v_lshlrev_b32 v8, 16, v%d" % r)
    o("    v_and_b32 v9, 0xffff0000, v%d" % r)
    o("    v_lshlrev_b32 v10, 16, v%d" % (r + 1))
    o("    v_and_b32 v11, 0xffff0000, v%d" % (r + 1))
    o("    v_lshlrev_b32 v12, 16, v%d" % (r + 2))
    o("    v_and_b32 v13, 0xffff0000, v%d" % (r + 2))
    o("    v_lshlrev_b32 v14, 16, v%d" % (r + 3))
    o("    v_and_b32 v15, 0xffff0000, v%d" % (r + 3))
    for v in range(4):
        o("    v_pk_mul_f32 v[28:29], v[12:13], v[%d:%d] op_sel:[0,%d] op_sel_hi:[1,%d]" % (8 + (v & 2), 9 + (v & 2), v & 1, v & 1))
        o("    v_pk_mul_f32 v[30:31], v[14:15], v[%d:%d] op_sel:[0,%d] op_sel_hi:[1,%d]" % (8 + (v & 2), 9 + (v & 2), v & 1, v & 1))
        o("    v_cvt_pk_bf16_f32 v%d, v28, v29" % (r + 2 * v))
        o("    v_cvt_pk_bf16_f32 v%d, v30, v31" % (r + 2 * v + 1))
    o("    v_and_b32 v%d, 0xffff, v%d" % (vMETA + m, vMETA + m))
    o("    v_lshlrev_b32 v%d, 10, v%d" % (vMETA + m, vMETA + m))
o("K2_S_done:")
o("    s_mov_b64 exec, -1")
spf(SPF // 100, "SP1")
def sp0(n0, n, tag):
    if n == 0: return
    o("    s_cmp_lt_u32 s40, 12")
    o("    s_cbranch_scc1 %s_e" % tag)
    o("    s_cmp_lg_u32 s41, 0")
    o("    s_cbranch_scc1 %s_e" % tag)
    o("    s_sub_u32 s66, s40, 12")
    o("    s_mul_i32 s66, s66, %d" % (80 * 1024))
    o("    s_add_u32 s66, s66, s68")
    o("    s_lshl_b32 s38, s69, 1")
    o("    s_add_u32 s38, s38, %d" % n0)
    o("    s_mov_b32 s39, %d" % n)
    o("%s_l:" % tag)
    o("    s_sub_u32 s36, s38, 80")
    o("    s_min_u32 s38, s38, s36")
    o("    s_lshl_b32 s36, s38, 10")
    o("    s_add_u32 s36, s36, s66")
    for sec in range(4):
        o("    s_load_dword s67, s[4:5], s36 offset:%d" % (sec * 64))
    o("    s_add_u32 s38, s38, 1")
    o("    s_sub_u32 s39, s39, 1")
    o("    s_cmp_lg_u32 s39, 0")
    o("    s_cbranch_scc1 %s_l" % tag)
    o("%s_e:" % tag)
sp0(0, SP0A, "SQ1")
o("    s_waitcnt lgkmcnt(0)")
o("    s_barrier")
stamp()
if B2T:
    o("    s_cmp_lt_u32 s40, 12")
    o("    s_cbranch_scc1 K2_b2t_e")
    o("    s_cmp_lg_u32 s41, 0")
    o("    s_cbranch_scc1 K2_b2t_e")
    if B2T & 1:
        o("    s_lshr_b32 s3, s2, 3")
        o("    s_mul_i32 s3, s3, 625")
        o("    s_sub_u32 s3, s3, 768")
        o("    v_add_u32 v24, s3, v0")
        o("    v_lshrrev_b32 v25, 1, v24")
        o("    v_and_b32 v24, 1, v24")
        o("    v_lshlrev_b32 v24, 7, v24")
        o("    v_lshl_add_u32 v24, v25, 10, v24")
        o("    buffer_load_dword v120, v24, s[24:27], 0 offen")
        if B2T & 4:
            o("    v_add_u32 v24, 0x20000, v24")
            o("    buffer_load_dword v121, v24, s[24:27], 0 offen")
    if B2T & 2:
        o("    s_lshl_b32 s3, s2, 8")
        o("    s_sub_u32 s3, s3, 768")
        o("    v_add_u32 v24, s3, v0")
        o("    s_mov_b32 s44, 43691")
        o("    v_mul_lo_u32 v25, v24, s44")
        o("    v_lshrrev_b32 v25, 18, v25            ; /6")
        o("    v_mul_u32_u24 v26, 6, v25")
        o("    v_sub_u32 v26, v24, v26")
        o("    v_lshlrev_b32 v26, 7, v26")
        o("    v_lshl_add_u32 v24, v25, 10, v26")
        o("    buffer_load_dword v124, v24, s[24:27], 0 offen offset:256")
    o("K2_b2t_e:")
o("    v_lshrrev_b32 v19, 1, v%d             ; lane*4" % vL8)
o("    ds_read_b32 v24, v19 offset:%d" % L_CNT)
o("    v_mov_b32 v20, 0")
o("    ds_read_b32 v21, v20 offset:%d" % L_FLAG)
o("    s_waitcnt lgkmcnt(0)")
o("    v_add_u32 v25, 31, v24")
o("    v_lshrrev_b32 v25, 5, v25             ; nks")
o("    v_lshl_or_b32 v26, v25, 16, v24       ; packed")
o("    v_mov_b32 v27, v26")
dpp_scan("v27")
o("    v_readlane_b32 s34, v27, 63")
o("    v_readfirstlane_b32 s35, v21")
o("    v_sub_u32 v27, v27, v26")
o("    ds_write_b32 v19, v27 offset:%d" % L_TABS)
o("    s_and_b32 s36, s34, 0xffff            ; total")
o("    s_lshr_b32 s34, s34, 16               ; nK")
o("    s_cmp_gt_u32 s36, %d" % CAP)
o("    s_cselect_b32 s36, 1, 0")
o("    s_or_b32 s35, s35, s36")
o("    s_cmp_eq_u32 s35, 0")
o("    s_cbranch_scc1 K2_ok")
o("    s_mov_b32 s41, 1")
o("    s_waitcnt lgkmcnt(0)")
o("    s_barrier")
o("    s_branch K2_round")
o("K2_ok:")
o("    v_and_b32 v20, 0xffff, v27")
o("    v_lshrrev_b32 v21, 16, v27")
o("    v_lshl_or_b32 v20, v21, 11, v20")
o("    v_lshl_or_b32 v%d, v24, 18, v20       ; node desc: Sstart | kstart<<11 | cnt<<18" % vND)
for m in range(MM):
    o("    s_mov_b64 exec, s[%d:%d]" % (48 + 2 * m, 49 + 2 * m))
    o("    s_cbranch_execz K2_tabs_done")
    o("    ds_read_b32 v%d, v%d offset:%d" % (vCA + m, vCA + m, L_TABS))
o("K2_tabs_done:")
o("    s_waitcnt lgkmcnt(0)")
for m in range(MM):
    o("    s_mov_b64 exec, s[%d:%d]" % (48 + 2 * m, 49 + 2 * m))
    o("    s_cbranch_execz K2_scatter_done")
    r = vREC + 8 * m
    rank = vRANK + m
    tb = vCA + m
    o("    v_and_b32 v25, 0xffff, v%d" % tb)
    o("    v_add_lshl_u32 v25, v25, v%d, 5" % rank)
    o("    ds_write_b128 v25, v[%d:%d] offset:%d" % (r, r + 3, L_S))
    o("    ds_write_b128 v25, v[%d:%d] offset:%d" % (r + 4, r + 7, L_S + 16))
    o("    v_lshrrev_b32 v26, 16, v%d" % tb)
    o("    v_lshrrev_b32 v27, 5, v%d" % rank)
    o("    v_add_lshl_u32 v26, v26, v27, 7")
    o("    v_and_b32 v27, 3, v%d" % rank)
    o("    v_lshl_add_u32 v26, v27, 5, v26")
    o("    v_and_or_b32 v26, v%d, 28, v26" % rank)
    o("    ds_write_b32 v26, v%d offset:%d" % (vMETA + m, L_SOFF))
o("K2_scatter_done:")
o("    s_mov_b64 exec, -1")
spf((SPF // 10) % 10, "SP2")
sp0(SP0A, SP0B, "SQ2")
o("    s_waitcnt lgkmcnt(0)")
o("    s_barrier")
stamp()
if STAMP:
    o("    s_memtime s[76:77]")
    o("    s_waitcnt lgkmcnt(0)")

NITEM = 160
uid = [0]
def dequeue():
    o("    s_mov_b64 exec, 1")
    o("    ds_add_rtn_u32 v%d, v%d, v%d offset:%d" % (vQ, vLaneOff, vOne, L_Q))
    o("    s_mov_b64 exec, -1")

def gen_next(first_id_in_s38=False):
    t = "G%d" % uid[0]; uid[0] += 1
    if first_id_in_s38:
        o("    s_branch %s_dec" % t)
    else:
        o("    s_cmp_eq_u32 s62, 0")
        o("    s_cbranch_scc1 %s_retry" % t)
        o("    s_add_u32 s63, s63, 1")
        o("    s_add_u32 s64, s64, 1024")
        o("    s_mov_b32 s65, 0")
        o("    s_branch %s_cnt" % t)
    o("%s_retry:" % t)
    if SYNCQ:
        if FSW:
            o("    s_cmp_ge_u32 s71, s70")
            o("    s_mov_b32 s38, 1000")
            o("    s_cbranch_scc1 %s_dec" % t)
        dequeue()
        o("    s_waitcnt lgkmcnt(0)")
        o("    v_readfirstlane_b32 s38, v%d" % vQ)
        if FSW:
            o("    s_mov_b32 s71, s38")
    else:
        o("    s_waitcnt lgkmcnt(0)")
        o("    v_readfirstlane_b32 s38, v%d" % vQ)
        if FSW:
            o("    s_cmp_ge_u32 s38, s70")
            o("    s_cbranch_scc0 %s_dq" % t)
            o("    v_mov_b32 v%d, 1000" % vQ)
            o("    s_branch %s_dec" % t)
            o("%s_dq:" % t)
        dequeue()
    o("%s_dec:" % t)
    o("    s_cmp_lt_u32 s38, %d" % NITEM)
    o("    s_cbranch_scc1 %s_valid" % t)
    o("    s_mov_b32 s65, 0")
    o("    s_mov_b32 s62, 0")
    o("    s_branch %s_end" % t)
    o("%s_valid:" % t)
    if SKEW:
        o("    s_lshr_b32 s39, s38, 2")
        o("    v_readlane_b32 s39, v%d, s39" % vT)
        o("    s_lshl_b32 s60, s38, 3")
        o("    s_lshr_b32 s39, s39, s60")
        o("    s_bfe_u32 s60, s39, 0x20006           ; u")
        o("    s_and_b32 s61, s39, 63                ; node")
    else:
        o("    s_mul_i32 s60, s38, 1639")
        o("    s_lshr_b32 s60, s60, 16               ; u = id / 40")
        o("    s_mul_i32 s61, s60, 40")
        o("    s_sub_u32 s61, s38, s61               ; node")
        if ROT:
            o("    s_lshr_b32 s39, s2, %d" % (ROT - 1))
            o("    s_add_u32 s60, s60, s39")
            o("    s_and_b32 s60, s60, 3")
    if PFM:
        o("    s_andn2_b32 s39, s61, 1")
        o("    s_cmp_lg_u32 s39, %d" % (PFM & ~1))
        o("    s_cbranch_scc1 %s_nopf" % t)
        o("    s_and_b32 s39, s61, 1")
        o("    s_mul_i32 s39, s39, 40")
        o("    s_mul_i32 s36, s2, 80")
        o("    s_add_u32 s39, s39, s36")
        o("    v_lshrrev_b32 v0, 3, v%d" % vL8)
        o("    v_min_u32 v0, 39, v0")
        o("    v_add_u32 v0, s39, v0")
        o("    v_lshrrev_b32 v%d, 1, v0" % vCG)
        o("    v_and_b32 v0, 1, v0")
        o("    v_lshlrev_b32 v0, 7, v0")
        o("    v_lshl_add_u32 v0, v%d, 10, v0" % vCG)
        o("    s_lshl_b32 s36, s60, 8")
        o("    s_cmp_eq_u32 s60, 3")
        o("    s_cbranch_scc1 %s_nopf" % t)
        o("    buffer_load_dword v%d, v0, s[24:27], s36 offen offset:256" % vT)
        o("%s_nopf:" % t)
    o("    v_readlane_b32 s39, v%d, s61" % vND)
    o("    s_lshr_b32 s62, s39, 18               ; cnt")
    if DF:
        o("    s_cbranch_scc1 %s_ne" % t)
        o("    s_andn2_b32 s39, s61, 3")
        o("    v_mov_b32 v0, s39")
        o("    s_mov_b64 exec, 1")
        o("    ds_add_u32 v0, v%d offset:%d" % (vOne, L_TC))
        o("    s_mov_b64 exec, -1")
        o("    s_branch %s_retry" % t)
        o("%s_ne:" % t)
    else:
        o("    s_cbranch_scc0 %s_retry" % t)
    o("    s_bfe_u32 s63, s39, 0x7000b           ; kstart")
    o("    s_and_b32 s64, s39, 0x7ff")
    o("    s_lshl_b32 s64, s64, 5")
    o("    s_mov_b32 s65, 16")
    o("%s_cnt:" % t)
    o("    s_min_u32 s39, s62, 32")
    o("    s_sub_u32 s62, s62, s39")
    o("    s_add_u32 s39, s39, 3")
    o("    s_lshr_b32 s39, s39, 2")
    o("    s_or_b32 s65, s65, s39")
    o("    s_cmp_eq_u32 s62, 0")
    o("    s_cselect_b32 s39, 32, 0")
    o("    s_or_b32 s65, s65, s39")
    o("    s_lshl_b32 s39, s63, 7")
    o("    v_add_u32 v0, s39, v%d" % vSoffC)
    o("    ds_read_b128 v[%d:%d], v0 offset:%d" % (vA, vA + 3, L_SOFF))
    o("    ds_read_b128 v[%d:%d], v0 offset:%d" % (vA + 4, vA + 7, L_SOFF + 16))
    o("%s_end:" % t)

def issue_loads(b):
    t = "L%d" % uid[0]; uid[0] += 1
    o("    s_lshl_b32 s37, s60, 8")
    if "--u0" in opts: o("    s_mov_b32 s37, 0")
    o("    s_and_b32 s39, s65, 15")
    o("    s_cbranch_scc0 %s_e" % t)
    for j in range(8):
        o("    v_add_u32 v%d, v%d, v%d" % (vA + j, vA + j, vLaneOff))
        if j < 7:
            o("    s_cmp_eq_u32 s39, %d" % (j + 1))
        o("    buffer_load_dwordx4 v[%d:%d], v%d, s[24:27], s37 offen" % (vRB[b] + 4 * j, vRB[b] + 4 * j + 3, vA + j))
        if j < 7:
            o("    s_cbranch_scc1 %s_e" % t)
    o("%s_e:" % t)

def gen_to_slot(b):
    sb = 48 + 4 * b
    o("    s_mov_b64 s[%d:%d], s[60:61]" % (sb, sb + 1))
    o("    s_mov_b64 s[%d:%d], s[64:65]" % (sb + 2, sb + 3))

def perms(b, j, pbase, npair):
    i = j >> 1
    sel = "s32" if (j & 1) == 0 else "s33"
    for jj in range(npair):
        a = vRB[b] + 4 * (2 * jj) + i
        c = vRB[b] + 4 * (2 * jj + 1) + i
        o("    v_perm_b32 v%d, v%d, v%d, %s" % (pbase + jj, c, a, sel))
def mm(b, acc, npair):
    if "--nomm" in opts: return
    sb = 48 + 4 * b
    t = "Z%d" % uid[0]; uid[0] += 1
    o("    s_bitcmp0_b32 s%d, 0" % (sb + 3))
    o("    s_cbranch_scc1 %s" % t)
    for i in range(4):
        o("    v_mov_b32 v%d, 0" % (vRB[b] + 4 * (2 * npair - 1) + i))
    o("%s:" % t)
    k16 = npair <= 2
    if npair in (1, 3):
        o("    v_mov_b32 v%d, 0" % (vP + npair))
        o("    v_mov_b32 v%d, 0" % (vP + 4 + npair))
    perms(b, 0, vP, npair)
    for j in range(8):
        if j + 1 < 8:
            perms(b, j + 1, vP + 4 * ((j + 1) & 1), npair)
        if npair == 1 or j == 7:
            o("    s_nop 0")
        pb = vP + 4 * (j & 1)
        c = "v[%d:%d]" % (vD + 4 * j, vD + 4 * j + 3) if acc else "0"
        if k16:
            o("    v_mfma_f32_16x16x16_bf16 v[%d:%d], v[%d:%d], v[%d:%d], %s" % (vD + 4 * j, vD + 4 * j + 3, vS, vS + 1, pb, pb + 1, c))
        else:
            o("    v_mfma_f32_16x16x32_bf16 v[%d:%d], v[%d:%d], v[%d:%d], %s" % (vD + 4 * j, vD + 4 * j + 3, vS, vS + 3, pb, pb + 3, c))

def mm_all(b):
    sb = 48 + 4 * b
    o("    s_and_b32 s39, s%d, 15" % (sb + 3))
    o("    s_bitcmp0_b32 s%d, 4" % (sb + 3))
    o("    s_cbranch_scc1 M%d_acc" % b)
    for acc in (False, True):
        a = "a" if acc else "f"
        if acc: o("M%d_acc:" % b)
        o("    s_cmp_gt_u32 s39, 6")
        o("    s_cbranch_scc1 M%d%s4" % (b, a))
        o("    s_cmp_gt_u32 s39, 4")
        o("    s_cbranch_scc1 M%d%s3" % (b, a))
        o("    s_cmp_gt_u32 s39, 2")
        o("    s_cbranch_scc1 M%d%s2" % (b, a))
        for npair in (1, 2, 3, 4):
            o("M%d%s%d:" % (b, a, npair))
            mm(b, acc, npair)
            if not (acc and npair == 4):
                o("    s_branch M%d_done" % b)
    o("M%d_done:" % b)

def vm_wait(other):
    if NBUF == 1:
        o("    s_waitcnt vmcnt(0) lgkmcnt(0)")
        return
    t = "W%d" % uid[0]; uid[0] += 1
    sb = 48 + 4 * other
    o("    s_and_b32 s39, s%d, 15" % (sb + 3))
    o("    s_cmp_eq_u32 s39, 8")
    o("    s_cbranch_scc1 %s_8" % t)
    o("    s_cmp_ge_u32 s39, 4")
    o("    s_cbranch_scc1 %s_hi" % t)
    o("    s_cmp_ge_u32 s39, 2")
    o("    s_cbranch_scc1 %s_2" % t)
    o("    s_waitcnt vmcnt(0)")
    o("%s_2:" % t)
    o("    s_waitcnt vmcnt(2)")
    o("%s_hi:" % t)
    o("    s_cmp_ge_u32 s39, 6")
    o("    s_cbranch_scc1 %s_6" % t)
    o("    s_waitcnt vmcnt(4)")
    o("%s_6:" % t)
    o("    s_waitcnt vmcnt(6)")
    o("%s_8:" % t)
    o("    s_waitcnt vmcnt(8) lgkmcnt(0)")

def tile_fma(j, w):
    d = vD + 4 * j
    o("    v_mul_f32 v%d, v%d, v%d" % (d, d, w))
    for k in range(1, 4):
        o("    v_fmac_f32 v%d, v%d, v%d" % (d, d + k, w + k))
def wr_read(j, w):
    o("    ds_read_b128 v[%d:%d], v%d offset:%d" % (w, w + 3, vLaneOff, L_WR + 256 * j))
def lock_try():
    o("    s_mov_b64 exec, 1")
    o("    ds_wrxchg_rtn_b32 v%d, v%d, v%d offset:%d" % (vS + 2, vS, vOne, L_LOCK))
    o("    s_mov_b64 exec, -1")
    o("    ds_read_b128 v[%d:%d], v%d" % (vP, vP + 3, vS + 1))
    o("    ds_read_b128 v[%d:%d], v%d offset:1024" % (vP + 4, vP + 7, vS + 1))

def post(b):
    if "--nopost" in opts: return
    sb = 48 + 4 * b
    t = "P%d" % b
    if NBUF == 2:
        wr_read(0, vP); wr_read(1, vP + 4); wr_read(2, vA); wr_read(3, vA + 4)
    o("    s_lshl_b32 s38, s%d, 9" % sb)
    o("    v_add_u32 v0, s38, v%d" % vL8)
    o("    ds_read_b64 v[%d:%d], v0 offset:%d" % (vCG, vCG + 1, L_CG))
    o("    s_lshl_b32 s38, s%d, 2" % (sb + 1))
    o("    v_mov_b32 v%d, s38                    ; lock addr" % vS)
    o("    s_and_b32 s38, s%d, 3" % (sb + 1))
    o("    s_lshl_b32 s38, s38, 6")
    o("    s_lshl_b32 s39, s%d, 11" % (sb + 1))
    o("    s_add_u32 s39, s39, %d" % L_AGG)
    o("    s_or_b32 s38, s38, s39")
    o("    v_xor_b32 v%d, s38, v%d               ; agg addr" % (vS + 1, vAggC))
    o("    v_mov_b32 v%d, 0" % (vS + 3))
    if NBUF == 2:
        o("    s_waitcnt lgkmcnt(4)")
        tile_fma(0, vP)
        o("    s_waitcnt lgkmcnt(3)")
        tile_fma(1, vP + 4)
        wr_read(4, vP); wr_read(5, vP + 4)
        o("    s_waitcnt lgkmcnt(4)")
        tile_fma(2, vA)
        o("    s_waitcnt lgkmcnt(3)")
        tile_fma(3, vA + 4)
        wr_read(6, vA); wr_read(7, vA + 4)
        o("    v_cvt_pk_bf16_f32 v%d, v%d, v%d" % (vD + 2, vD, vD + 4))
        o("    v_cvt_pk_bf16_f32 v%d, v%d, v%d" % (vD + 3, vD + 8, vD + 12))
        o("    s_waitcnt lgkmcnt(3)")
        tile_fma(4, vP)
        o("    s_waitcnt lgkmcnt(2)")
        tile_fma(5, vP + 4)
        lock_try()
        o("    s_waitcnt lgkmcnt(4)")
        tile_fma(6, vA)
        o("    s_waitcnt lgkmcnt(3)")
        tile_fma(7, vA + 4)
    else:
        for j in range(4):
            tile_fma(j, vWR + 4 * j)
        o("    v_cvt_pk_bf16_f32 v%d, v%d, v%d" % (vD + 2, vD, vD + 4))
        o("    v_cvt_pk_bf16_f32 v%d, v%d, v%d" % (vD + 3, vD + 8, vD + 12))
        lock_try()
        for j in range(4, 8):
            tile_fma(j, vWR + 4 * j)
    o("    v_cvt_pk_bf16_f32 v%d, v%d, v%d" % (vD + 6, vD + 16, vD + 20))
    o("    v_cvt_pk_bf16_f32 v%d, v%d, v%d" % (vD + 7, vD + 24, vD + 28))
    o("%s_chk:" % t)
    o("    s_waitcnt lgkmcnt(0)")
    o("    v_readfirstlane_b32 s38, v%d" % (vS + 2))
    o("    s_cmp_eq_u32 s38, 0")
    o("    s_cbranch_scc1 %s_got" % t)
    lock_try()
    o("    s_branch %s_chk" % t)
    o("%s_got:" % t)
    o("    v_mfma_f32_16x16x16_bf16 v[%d:%d], v[%d:%d], v[%d:%d], v[%d:%d]" % (vP, vP + 3, vCG, vCG + 1, vD + 2, vD + 3, vP, vP + 3))
    o("    v_mfma_f32_16x16x16_bf16 v[%d:%d], v[%d:%d], v[%d:%d], v[%d:%d]" % (vP + 4, vP + 7, vCG, vCG + 1, vD + 6, vD + 7, vP + 4, vP + 7))
    o("    s_nop 7")
    o("    ds_write_b128 v%d, v[%d:%d]" % (vS + 1, vP, vP + 3))
    o("    ds_write_b128 v%d, v[%d:%d] offset:1024" % (vS + 1, vP + 4, vP + 7))
    o("    s_mov_b64 exec, 1")
    o("    ds_write_b32 v%d, v%d offset:%d" % (vS, vS + 3, L_LOCK))
    if DF:
        o("    s_andn2_b32 s38, s%d, 3" % (sb + 1))
        o("    v_mov_b32 v%d, s38" % (vS + 2))
        o("    ds_add_u32 v%d, v%d offset:%d" % (vS + 2, vOne, L_TC))
    o("    s_mov_b64 exec, -1")

spf(SPF % 10, "SP3")
if DPW:
    per = 320 // DPW
    assert DPN <= per
    o("    s_cmp_lt_u32 s40, %d" % (16 - DPW))
    o("    s_cbranch_scc1 DP_e")
    o("    s_cmp_lg_u32 s41, 0")
    o("    s_cbranch_scc1 DP_e")
    o("    s_sub_u32 s66, s40, %d" % (16 - DPW))
    o("    s_mul_i32 s66, s66, %d" % (per * 1024))
    o("    s_add_u32 s66, s66, s68")
    o("    v_mov_b32 v0, 0")
    for u in range(1, 4):
        if u > 1:
            o("DP_g%d:" % u)
            o("    ds_read_b32 v%d, v0 offset:%d" % (vQ, L_Q))
            o("    s_waitcnt lgkmcnt(0)")
            o("    v_readfirstlane_b32 s38, v%d" % vQ)
            o("    s_cmp_ge_u32 s38, %d" % (40 * (u - 1) + DPG + 16))
            o("    s_cbranch_scc1 DP_go%d" % u)
            o("    s_sleep 4")
            o("    s_branch DP_g%d" % u)
            o("DP_go%d:" % u)
        o("    s_and_b32 s38, s2, 7")
        o("    s_mul_i32 s38, s38, %d" % (DPN // 8))
        o("    s_mov_b32 s39, %d" % DPN)
        o("DP_l%d:" % u)
        o("    s_sub_u32 s36, s38, %d" % DPN)
        o("    s_min_u32 s38, s38, s36")
        o("    s_lshl_b32 s36, s38, 10")
        o("    s_add_u32 s36, s36, s66")
        for sec in range(4):
            o("    s_load_dword s67, s[4:5], s36 offset:%d" % (u * 256 + sec * 64))
        o("    s_add_u32 s38, s38, 1")
        o("    s_sub_u32 s39, s39, 1")
        o("    s_cmp_lg_u32 s39, 0")
        o("    s_cbranch_scc1 DP_l%d" % u)
    o("    s_mov_b64 exec, 1")
    o("    ds_add_rtn_u32 v%d, v%d, v%d offset:%d" % (vQ, vLaneOff, vOne, L_Q))
    o("    s_mov_b64 exec, -1")
    o("    s_waitcnt lgkmcnt(0)")
    o("    v_readfirstlane_b32 s38, v%d" % vQ)
    o("    s_branch DP_join")
    o("DP_e:")
o("    s_mov_b32 s38, s40")
o("    s_mov_b32 s71, 0")
if DPW:
    o("    s_cmp_lt_u32 s40, %d" % (16 - DPW))
    o("    s_cbranch_scc1 DP_join")
    o("    s_mov_b64 exec, 1")
    o("    ds_add_rtn_u32 v%d, v%d, v%d offset:%d" % (vQ, vLaneOff, vOne, L_Q))
    o("    s_mov_b64 exec, -1")
    o("    s_waitcnt lgkmcnt(0)")
    o("    v_readfirstlane_b32 s38, v%d" % vQ)
    o("DP_join:")
if not SYNCQ: dequeue()
o("    s_mov_b32 s60, 0")
gen_next(True)
o("    s_waitcnt lgkmcnt(0)")
issue_loads(0)
gen_to_slot(0)
if NBUF == 2:
    gen_next()
    o("    s_waitcnt lgkmcnt(0)")
    issue_loads(1)
    gen_to_slot(1)
else:
    for j in range(8):
        wr_read(j, vWR + 4 * j)
o("K2_loop:")
for b in range(NBUF):
    sb = 48 + 4 * b
    o("    s_and_b32 s39, s%d, 15" % (sb + 3))
    o("    s_cbranch_scc0 K2_main_done")
    o("    v_add_u32 v0, s%d, v%d" % (sb + 2, vSC))
    o("    ds_read_b64_tr_b16 v[%d:%d], v0 offset:%d" % (vS, vS + 1, L_S))
    o("    ds_read_b64_tr_b16 v[%d:%d], v0 offset:%d" % (vS + 2, vS + 3, L_S + 512))
    if LATE:
        vm_wait(1 - b)
        mm_all(b)
        gen_next()
        o("    s_waitcnt lgkmcnt(0)")
    else:
        gen_next()
        if SPM:
            o("    s_cmp_ge_u32 s%d, 3" % sb)
            o("    s_cbranch_scc1 SPM_e")
            o("    s_add_u32 s66, s%d, s69" % (sb + 1))
            o("    s_sub_u32 s39, s66, 40")
            o("    s_min_u32 s66, s66, s39")
            o("    s_lshl_b32 s39, s%d, 8" % sb)
            o("    s_add_u32 s39, s39, s68")
            o("    s_bitcmp0_b32 s%d, 4" % (sb + 3))
            o("    s_cbranch_scc1 SPM_2")
            o("    s_mul_i32 s66, s66, %d" % (SPM * 1024))
            o("    s_add_u32 s66, s66, s39")
            for n in range(SPM):
                for sec in range(4):
                    o("    s_load_dword s67, s[4:5], s66 offset:%d" % (n * 1024 + 256 + sec * 64))
            o("    s_branch SPM_e")
            o("SPM_2:")
            if SPM2:
                assert 40 * (SPM + SPM2) <= 320
                o("    s_mul_i32 s66, s66, %d" % (SPM2 * 1024))
                o("    s_add_u32 s66, s66, s39")
                for n in range(SPM2):
                    for sec in range(4):
                        o("    s_load_dword s67, s[4:5], s66 offset:%d" % ((40 * SPM + n) * 1024 + 256 + sec * 64))
            o("SPM_e:")
        vm_wait(1 - b)
        if PRIO: o("    s_setprio %d" % PRIO)
        mm_all(b)
    issue_loads(b)
    if PRIO: o("    s_setprio 0")
    o("    s_bitcmp0_b32 s%d, 5" % (sb + 3))
    o("    s_cbranch_scc1 K2_cont%d" % b)
    post(b)
    o("K2_cont%d:" % b)
    gen_to_slot(b)
o("    s_branch K2_loop")
o("K2_main_done:")
o("    s_cmp_eq_u32 s41, 0")
o("    s_cbranch_scc1 K2_final")
o("    s_add_u32 s42, s42, 1")
o("    s_cmp_ge_u32 s42, %d" % NSLOW)
o("    s_cbranch_scc1 K2_final")
o("    s_waitcnt vmcnt(0) lgkmcnt(0)")
o("    s_barrier")
o("    s_lshl_b32 s39, s40, 6")
o("    v_lshrrev_b32 v0, 3, v%d" % vL8)
o("    v_add_u32 v0, s39, v0")
o("    s_branch K2_round")

o("K2_final:")
stamp()
if STAMP:
    o("    s_memtime s[78:79]")
    o("    s_waitcnt lgkmcnt(0)")
    o("    s_sub_u32 s78, s78, s76")
vW = 32
vB = 64
vC = 96
if FSW:
    o("    s_cmp_lt_u32 s40, 12")
    o("    s_cbranch_scc1 K2_fin_end")
o("    s_and_b32 s44, s40, 3                 ; dp")
o("    s_lshr_b32 s45, s40, 2                ; rg")
if LAZYW:
    o("    s_lshl_b32 s39, s44, 2")
    o("    v_mov_b32 v8, s39")
    o("    ds_read_b32 v9, v8 offset:%d" % L_FQ)
    o("    s_waitcnt lgkmcnt(0)")
    o("    v_readfirstlane_b32 s39, v9")
    o("    s_cmp_ge_u32 s39, %d" % LAZYW)
    o("    s_cbranch_scc1 K2_fin_end")
o("    s_lshl_b32 s39, s44, 13")
o("    s_add_u32 s39, s39, 0x%x" % WS_WIMG)
o("    v_lshlrev_b32 v8, 1, v%d              ; lane*16" % vL8)
o("    v_add_u32 v8, s39, v8")
o("    v_add_u32 v9, 0x1000, v8")
o("    s_waitcnt vmcnt(0)")
for ts in range(8):
    base = "v8" if ts < 4 else "v9"
    o("    global_load_dwordx4 v[%d:%d], %s, s[22:23] offset:%d" % (vW + 4 * ts, vW + 4 * ts + 3, base, (ts & 3) * 1024))
o("    v_lshrrev_b32 v10, 3, v%d             ; lane" % vL8)
o("    v_bfe_u32 v11, v10, 2, 2              ; nl")
o("    v_and_b32 v12, 3, v10                 ; w")
o("    v_lshrrev_b32 v17, 4, v10             ; q")
o("    v_and_b32 v13, 15, v10")
o("    v_xor_b32 v13, v13, v17               ; q ^ col")
o("    v_lshlrev_b32 v15, 11, v11")
o("    v_lshl_add_u32 v15, v12, 8, v15")
o("    v_lshl_add_u32 v15, v13, 4, v15")
o("    v_lshlrev_b32 v16, 18, v11")
o("    v_lshl_add_u32 v16, v12, 8, v16")
o("    v_lshl_add_u32 v16, v17, 4, v16")
o("    s_lshl_b32 s39, s2, 10")
o("    s_lshl_b32 s46, s44, 6")
o("    s_add_u32 s39, s39, s46")
o("    v_add_u32 v16, s39, v16")
if DF:
    o("    s_lshl_b32 s39, s44, 2")
    o("    v_mov_b32 v8, s39")
    o("    v_mov_b32 v14, 1")
    o("    s_mov_b64 exec, 1")
    o("    ds_add_rtn_u32 v9, v8, v14 offset:%d" % L_FQ)
    o("    s_mov_b64 exec, -1")
    stamp()
    o("    s_waitcnt vmcnt(0)")
    o("K2_fin_loop:")
    o("    s_waitcnt lgkmcnt(0)")
    o("    v_readfirstlane_b32 s45, v9")
    o("    s_cmp_ge_u32 s45, 10")
    o("    s_cbranch_scc1 K2_fin_end")
    o("    s_lshl_b32 s39, s45, 2")
    o("    v_mov_b32 v10, s39")
    o("K2_fin_wait:")
    o("    ds_read_b32 v11, v10 offset:%d" % L_TC)
    o("    s_waitcnt lgkmcnt(0)")
    o("    v_readfirstlane_b32 s39, v11")
    o("    s_cmp_ge_u32 s39, 16")
    o("    s_cbranch_scc1 K2_fin_go")
    o("    s_sleep 2")
    o("    s_branch K2_fin_wait")
    o("K2_fin_go:")
else:
    o("    s_waitcnt lgkmcnt(0)")
    o("    s_barrier")
    stamp()
    o("    s_waitcnt vmcnt(0)")
    o("K2_fin_loop:")
o("    s_lshl_b32 s39, s45, 13               ; rt*8192")
o("    s_add_u32 s39, s39, %d" % L_AGG)
o("    v_add_u32 v18, s39, v15")
for s in range(4):
    if s:
        o("    v_xor_b32 v19, %d, v18" % (64 * s))
    a = "v19" if s else "v18"
    o("    ds_read_b128 v[%d:%d], %s" % (vB + 8 * s, vB + 8 * s + 3, a))
    o("    ds_read_b128 v[%d:%d], %s offset:1024" % (vB + 8 * s + 4, vB + 8 * s + 7, a))
if DF:
    o("    s_mov_b64 exec, 1")
    o("    ds_add_rtn_u32 v9, v8, v14 offset:%d" % L_FQ)
    o("    s_mov_b64 exec, -1")
for s in range(4):
    o("    s_waitcnt lgkmcnt(%d)" % (6 - 2 * s + (1 if DF else 0)))
    for p in range(4):
        o("    v_cvt_pk_bf16_f32 v%d, v%d, v%d" % (vC + 4 * s + p, vB + 8 * s + 2 * p, vB + 8 * s + 2 * p + 1))
o("    s_nop 1")
for s in range(4):
    for t in range(2):
        a = vW + 4 * (t * 4 + s)
        acc = 20 + 4 * t
        c = "0" if s == 0 else "v[%d:%d]" % (acc, acc + 3)
        o("    v_mfma_f32_16x16x32_bf16 v[%d:%d], v[%d:%d], v[%d:%d], %s" % (acc, acc + 3, a, a + 3, vC + 4 * s, vC + 4 * s + 3, c))
o("    s_lshl_b32 s39, s45, 20               ; rt*4*256*1024")
o("    s_nop 7")
for p in range(4):
    o("    v_cvt_pk_bf16_f32 v%d, v%d, v%d" % (28 + p, 20 + 2 * p, 21 + 2 * p))
o("    buffer_store_dwordx4 v[28:31], v16, s[28:31], s39 offen" + OST)
if DF:
    o("    s_branch K2_fin_loop")
    o("K2_fin_end:")
else:
    o("    s_add_u32 s45, s45, 4")
    o("    s_cmp_lt_u32 s45, 10")
    o("    s_cbranch_scc1 K2_fin_loop")
if STAMP:
    stamp()
    o("    s_waitcnt vmcnt(0)")
    stamp()
    o("    s_lshl_b32 s39, s2, 4")
    o("    s_add_u32 s39, s39, s40")
    o("    s_lshl_b32 s39, s39, 6")
    o("    s_add_u32 s39, s39, 0x8000000")
    o("    v_mov_b32 v1, s39")
    for i in range(nstamp[0]):
        o("    v_mov_b32 v2, s%d" % (84 + 2 * i))
        o("    global_store_dword v1, v2, s[22:23] offset:%d" % (4 * i))
    if "--dbgstamp" in opts:
        o("    s_load_dwordx2 s[66:67], s[0:1], 72")
        o("    s_waitcnt lgkmcnt(0)")
        o("    s_cmp_lg_u32 s40, 0")
        o("    s_cbranch_scc1 DBG_skip")
        o("    v_mov_b32 v3, 0")
        o("    s_mov_b64 exec, 1")
        for i in range(nstamp[0]):
            o("    v_mov_b32 v2, s%d" % (84 + 2 * i))
            o("    global_atomic_umax v3, v2, s[66:67] offset:%d" % (20 + 4 * i))
        o("    s_not_b32 s39, s84")
        o("    v_mov_b32 v2, s39")
        o("    global_atomic_umax v3, v2, s[66:67] offset:%d" % (16))
        o("    s_mov_b64 exec, -1")
        o("DBG_skip:")
    o("    v_mov_b32 v2, s72")
    o("    global_store_dword v1, v2, s[22:23] offset:%d" % (4 * 11))
    o("    v_mov_b32 v2, s74")
    o("    global_store_dword v1, v2, s[22:23] offset:%d" % (4 * 12))
    o("    v_mov_b32 v2, s78")
    o("    global_store_dword v1, v2, s[22:23] offset:%d" % (4 * 13))
    o("    v_mov_b32 v2, s41")
    o("    global_store_dword v1, v2, s[22:23] offset:%d" % (4 * 14))
    o("    v_mov_b32 v2, s34")
    o("    global_store_dword v1, v2, s[22:23] offset:%d" % (4 * 15))
o("K2_done:")
o("    s_endpgm")

o('.section .rodata,"a"')
for kn, vg, sg in (("gs_bin_kernel", 48, 64 if STAMP else 32), (KN, 128, 102 if STAMP else 72)):
    o(".p2align 6")
    o(".amdhsa_kernel %s" % kn)
    o("  .amdhsa_next_free_vgpr %d" % vg)
    o("  .amdhsa_next_free_sgpr %d" % sg)
    o("  .amdhsa_accum_offset %d" % vg)
    o("  .amdhsa_group_segment_fixed_size 0")
    o("  .amdhsa_kernarg_size 88")
    o("  .amdhsa_user_sgpr_count 2")
    o("  .amdhsa_user_sgpr_kernarg_segment_ptr 1")
    o("  .amdhsa_system_sgpr_workgroup_id_x 1")
    o("  .amdhsa_float_denorm_mode_32 3")
    o(".end_amdhsa_kernel")

path = args[0] if args else "cdna_kernels/%s.s" % NAME
open(path, "w").write("\n".join(out) + "\n")
print("wrote", path, "K2_LDS", K2_LDS, "K1_LDS", K1_LDS, "L_S", L_S, "L_AGG", L_AGG)
```

```python
import sys
NAME = "gather_scatter__tensor_product_equiv_mace__graph"
N = 10000
E = 320000
CHUNK = 1280
NCHUNK = E // CHUNK
REC_BYTES = 20
WS_TAB = 0x700000
WS_WIMG = 0x780000

opts = [a for a in sys.argv[1:] if a.startswith("--")]
args = [a for a in sys.argv[1:] if not a.startswith("--")]
STAMP = "--stamp" in opts
def optval(name, default):
    for a in opts:
        if a.startswith("--" + name + "="):
            return int(a.split("=")[1])
    return default
NBUF = optval("nbuf", 1)
TABSC1 = optval("tabsc1", 0)
K1T = optval("k1t", 0)
ARRN = optval("arrn", 12)
ARRM = optval("arrm", 0)
B2N = optval("b2n", 1)
NT1 = " nt" if optval("nt1", 0) else ""
PRIO = optval("prio", 0)
ST = optval("st", 0)
K1S = optval("k1s", 0)
LB1 = optval("lb1", 0)
RPF = optval("rpf", 0)
KEYG = optval("keyg", 0)
NT2 = " nt" if optval("nt2", 0) else ""
K1ST = {0: "", 1: " sc1", 2: " nt"}[optval("k1st", 1)]
OST = {0: "", 1: " sc1", 2: " nt", 3: " sc1 nt"}[optval("ost", 1)]
K1D = optval("k1d", 0)
LAZYW = optval("lazyw", 0)
DF = optval("df", 1)
FSW = optval("fsw", 0)
ROT = optval("rot", 0)
DPW = optval("dpw", 0)
DPN = optval("dpn", 40)
DPG = optval("dpg", 8)
SPM = optval("spm", 0)
SPM2 = optval("spm2", 0)
SP0A = optval("sp0a", 0)
SP0B = optval("sp0b", 0)
B2T = optval("b2t", 0)
TLB = optval("tlb", 0)
SYNCQ = optval("syncq", 0)
LATE = optval("late", 0)
SKEW = optval("skew", 0)
PF1 = optval("pf1", 0)
PF2 = optval("pf2", 0)

out = []
def o(s=""):
    out.append(s)
nstamp = [0]
def stamp():
    if not STAMP: return
    i = nstamp[0]; nstamp[0] += 1
    o("    s_memrealtime s[%d:%d]" % (84 + 2 * i, 85 + 2 * i))
    o("    s_waitcnt lgkmcnt(0)")

HEADER = open("cdna_kernels/%s.s.ref" % NAME).read().split("\n")
hdr = [l for l in HEADER if l.startswith(";") and "@launch" not in l and "Override" not in l and "grid=ceil" not in l]

CAP = 1536
NKMAX = 40 + CAP // 32
L_WR = 0
L_CG = L_WR + 2048
L_CNT = L_CG + 2048
L_TABS = L_CNT + 256
L_LOCK = L_TABS + 256
L_FLAG = L_LOCK + 256
L_Q = L_FLAG + 4
L_SP = L_FLAG + 8
L_ARR = L_FLAG + 12
L_FQ = L_FLAG + 16
L_TC = L_FLAG + 64
L_SOFF = L_FLAG + 256
NKS = 120
L_SIDX = L_SOFF + NKS * 128
L_MARK = L_SIDX + NKS * 64
L_S = L_MARK + 12 * 192
L_S = (L_S + 255) // 256 * 256
L_AGG = L_S + (CAP + 1) * 32
L_AGG = (L_AGG + 2047) // 2048 * 2048
L_END = L_AGG + 40 * 2048
K2_LDS = L_END
assert K2_LDS <= 160 * 1024
OOB = 0x7f000000

K1_THREADS = 640
K1L_HIST = 0
K1L_OFFS = 1024
K1L_STG = 2048
K1_LDS = K1L_STG + CHUNK * REC_BYTES

for l in hdr:
    o(l)
o("; @launch kernel=gs_bin_kernel grid=(256,1,1) block=(%d,1,1) lds=%d" % (K1_THREADS, K1_LDS))
o("; @launch kernel=%s_kernel grid=(256,1,1) block=(1024,1,1) lds=%d" % (NAME, K2_LDS))
o('.amdgcn_target "amdgcn-amd-amdhsa--gfx950"')
o(".text")

def dpp_scan(v):
    for sh in (1, 2, 4, 8):
        o("    s_nop 1")
        o("    v_add_u32_dpp %s, %s, %s row_shr:%d row_mask:0xf bank_mask:0xf bound_ctrl:0" % (v, v, v, sh))
    o("    s_nop 1")
    o("    v_add_u32_dpp %s, %s, %s row_bcast:15 row_mask:0xa bank_mask:0xf" % (v, v, v))
    o("    s_nop 1")
    o("    v_add_u32_dpp %s, %s, %s row_bcast:31 row_mask:0xc bank_mask:0xf" % (v, v, v))
    o("    s_nop 1")

o(".globl gs_bin_kernel")
o(".p2align 8")
o(".type gs_bin_kernel,@function")
o("gs_bin_kernel:")
k1n = [0]
def stamp1():
    if not STAMP: return
    i = k1n[0]; k1n[0] += 1
    o("    s_memrealtime s[%d:%d]" % (40 + 2 * i, 41 + 2 * i))
    o("    s_waitcnt lgkmcnt(0)")
def stamp1_flush():
    if not STAMP: return
    o("    s_mov_b64 exec, -1")
    o("    s_waitcnt vmcnt(0)")
    o("    s_memrealtime s[50:51]")
    o("    s_waitcnt lgkmcnt(0)")
    if "--dbgstamp" in opts:
        o("    s_load_dwordx2 s[52:53], s[0:1], 72")
        o("    s_waitcnt lgkmcnt(0)")
        o("    v_cmp_eq_u32 vcc, 0, v0")
        o("    s_and_saveexec_b64 s[24:25], vcc")
        o("    s_cbranch_execz DBG1_skip")
        o("    v_mov_b32 v3, 0")
        o("    s_not_b32 s3, s40")
        o("    v_mov_b32 v2, s3")
        o("    global_atomic_umax v3, v2, s[52:53] offset:512")
        o("    v_mov_b32 v2, s42")
        o("    global_atomic_umax v3, v2, s[52:53] offset:516")
        o("    v_mov_b32 v2, s46")
        o("    global_atomic_umax v3, v2, s[52:53] offset:520")
        o("    v_mov_b32 v2, s50")
        o("    global_atomic_umax v3, v2, s[52:53] offset:524")
        o("DBG1_skip:")
        o("    s_mov_b64 exec, -1")
    o("    v_lshrrev_b32 v1, 6, v0")
    o("    s_lshl_b32 s3, s2, 4")
    o("    v_add_u32 v1, s3, v1")
    o("    v_lshlrev_b32 v1, 6, v1")
    o("    v_add_u32 v1, 0x9000000, v1")
    for i in range(6):
        o("    v_mov_b32 v2, s%d" % (40 + 2 * i))
        o("    global_store_dword v1, v2, s[22:23] offset:%d" % (4 * i))
stamp1()
o("    s_cmp_ge_u32 s2, 256")
o("    s_cbranch_scc1 K1_done")
o("    s_load_dwordx16 s[4:19], s[0:1], 0")
o("    s_load_dwordx2 s[22:23], s[0:1], 80")
o("    s_cmp_ge_u32 s2, %d" % NCHUNK)
o("    s_cbranch_scc1 K1_wimg")
o("    s_mul_i32 s3, s2, %d" % CHUNK)
o("    v_lshl_add_u32 v1, v0, 1, s3")
o("    v_lshlrev_b32 v2, 2, v1               ; *4")
o("    v_lshlrev_b32 v3, 3, v1               ; *8")
o("    v_lshlrev_b32 v20, 2, v0              ; tid*4")
o("    v_mov_b32 v21, 0")
o("    v_mov_b32 v22, 1")
o("    s_waitcnt lgkmcnt(0)")
o("    global_load_dwordx2 v[4:5], v2, s[8:9]" + NT1 + "      ; dst")
def k1_rest():
    o("    global_load_dwordx2 v[6:7], v2, s[6:7]" + NT1 + "     ; src")
    o("    global_load_dwordx4 v[8:11], v3, s[10:11]" + NT1 + "  ; sh")
    o("    global_load_dwordx4 v[12:15], v3, s[12:13]" + NT1 + " ; ea")
if not K1D: k1_rest()
def k1_prefetch():
    n = 0
    if PF1 & 1:
        o("    s_lshr_b32 s3, s2, 3")
        o("    s_mul_i32 s3, s3, %d" % K1_THREADS)
        o("    s_and_b32 s26, s2, 7")
        o("    s_mul_i32 s26, s26, 2500")
        o("    s_add_u32 s3, s3, s26")
        o("    v_add_u32 v36, s3, v0")
        o("    v_subrev_u32 v37, 20000, v36")
        o("    v_min_u32 v36, v36, v37               ; mod 20000")
        o("    v_lshrrev_b32 v37, 1, v36")
        o("    v_and_b32 v36, 1, v36")
        o("    v_lshlrev_b32 v36, 7, v36")
        o("    v_lshl_add_u32 v36, v37, 10, v36")
        o("    global_load_dword v40, v36, s[4:5]")
        n += 1
    if PF1 & 2:
        o("    s_mul_i32 s3, s2, 240")
        o("    v_min_u32 v37, 239, v0")
        o("    v_add_u32 v36, s3, v37")
        o("    v_min_u32 v36, 59999, v36")
        o("    s_mov_b32 s26, 43691")
        o("    v_mul_lo_u32 v37, v36, s26")
        o("    v_lshrrev_b32 v37, 18, v37            ; /6")
        o("    v_mul_u32_u24 v39, 6, v37")
        o("    v_sub_u32 v39, v36, v39")
        o("    v_lshlrev_b32 v39, 7, v39")
        o("    v_lshl_add_u32 v36, v37, 10, v39")
        o("    global_load_dword v41, v36, s[4:5] offset:256")
        n += 1
    return n
NPF = 0
if PF1 and not (PF1 & 4): NPF = k1_prefetch()
if TLB & 4:
    o("    s_mul_i32 s3, s2, %d" % (CHUNK * REC_BYTES))
    o("    v_mov_b32 v36, s3")
    o("    global_load_dword v40, v36, s[22:23]")
    o("    s_lshl_b32 s3, s2, 10")
    o("    s_add_u32 s3, s3, 0x%x" % WS_TAB)
    o("    v_mov_b32 v37, s3")
    o("    global_load_dword v41, v37, s[22:23]")
    NPF = 2
o("    v_cmp_gt_u32 vcc, 256, v0")
o("    s_and_saveexec_b64 s[24:25], vcc")
o("    ds_write_b32 v20, v21 offset:%d" % K1L_HIST)
o("    s_mov_b64 exec, s[24:25]")
o("    s_waitcnt lgkmcnt(0)")
o("    s_barrier")
if K1D == 1: k1_rest()
if K1D == 2:
    o("    s_waitcnt vmcnt(0)")
    k1_rest()
o("    s_waitcnt vmcnt(%d)" % (3 + NPF))
stamp1()
if PF1 & 4: NPF = k1_prefetch()
if KEYG:
    for d, r, t in (("v4", "v16", "v42"), ("v5", "v17", "v43")):
        o("    v_and_b32 %s, 7, %s" % (r, d))
        o("    v_bfe_u32 %s, %s, 3, 5" % (t, d))
        o("    v_lshlrev_b32 %s, 2, %s" % (t, t))
        o("    v_lshl_or_b32 %s, %s, 7, %s" % (r, r, t))
else:
    o("    v_and_b32 v16, 255, v4")
    o("    v_and_b32 v17, 255, v5")
    o("    v_lshlrev_b32 v16, 2, v16")
    o("    v_lshlrev_b32 v17, 2, v17")
o("    ds_add_rtn_u32 v18, v16, v22 offset:%d" % K1L_HIST)
o("    ds_add_rtn_u32 v19, v17, v22 offset:%d" % K1L_HIST)
o("    v_lshrrev_b32 v4, 8, v4")
o("    v_lshrrev_b32 v5, 8, v5")
o("    s_waitcnt lgkmcnt(0)")
o("    s_barrier")
if K1S:
    o("    v_and_b32 v23, 63, v0")
    o("    v_lshlrev_b32 v23, 4, v23")
else:
    o("    v_cmp_gt_u32 vcc, 64, v0")
    o("    s_and_saveexec_b64 s[24:25], vcc")
    o("    s_cbranch_execz K1_scan_done")
    o("    v_lshlrev_b32 v23, 4, v0")
o("    ds_read_b128 v[24:27], v23 offset:%d" % K1L_HIST)
o("    s_waitcnt lgkmcnt(0)")
o("    v_add_u32 v28, v24, v25")
o("    v_add_u32 v29, v28, v26")
o("    v_add_u32 v30, v29, v27")
o("    v_mov_b32 v31, v30")
dpp_scan("v31")
o("    v_sub_u32 v32, v31, v30")
o("    v_add_u32 v33, v32, v24")
o("    v_add_u32 v34, v32, v28")
o("    v_add_u32 v35, v32, v29")
o("    ds_write_b128 v23, v[32:35] offset:%d" % K1L_OFFS)
o("    v_lshl_or_b32 v36, v24, 16, v32")
o("    v_lshl_or_b32 v37, v25, 16, v33")
o("    v_lshl_or_b32 v38, v26, 16, v34")
o("    v_lshl_or_b32 v39, v27, 16, v35")
o("    s_and_b32 s3, s2, 7")
o("    s_lshl_b32 s3, s3, 5")
o("    s_lshr_b32 s26, s2, 3")
o("    s_add_u32 s3, s3, s26")
o("    s_lshl_b32 s3, s3, 2")
o("    s_add_u32 s3, s3, 0x%x" % WS_TAB)
o("    v_lshl_add_u32 v44, v23, 8, s3        ; bucket 4l -> (4l)*1024")
def tab_store():
    for i in range(4):
        o("    global_store_dword v44, v%d, s[22:23] offset:%d%s" % (36 + i, 1024 * i, " sc1" if TABSC1 else ""))
if not K1S: tab_store()
if not K1S: o("    s_waitcnt lgkmcnt(0)")
o("K1_scan_done:")
if not K1S: o("    s_mov_b64 exec, s[24:25]")
if not K1S: o("    s_barrier")
stamp1()
o("    ds_read_b32 v24, v16 offset:%d" % K1L_OFFS)
o("    ds_read_b32 v25, v17 offset:%d" % K1L_OFFS)
o("    s_waitcnt vmcnt(%d)" % NPF)
stamp1()
if K1T:
    o("    v_cmp_gt_u32 vcc, %d, v0" % (128 * K1T))
    o("    s_and_saveexec_b64 s[26:27], vcc")
    o("    s_cbranch_execz K1_t_skip")
    o("    v_and_b32 v36, 63, v0")
    o("    v_min_u32 v36, 39, v36")
    o("    s_mul_i32 s3, s2, 40")
    o("    v_add_u32 v36, s3, v36")
    o("    v_lshrrev_b32 v37, 6, v0")
    o("    v_lshlrev_b32 v37, 7, v37")
    o("    v_lshl_add_u32 v36, v36, 10, v37")
    o("    global_load_dword v40, v36, s[4:5]")
    o("K1_t_skip:")
    o("    s_mov_b64 exec, s[26:27]")
o("    v_lshl_or_b32 v4, v4, 16, v6")
o("    v_lshl_or_b32 v5, v5, 16, v7")
o("    s_waitcnt lgkmcnt(0)")
o("    v_add_u32 v24, v24, v18")
o("    v_add_u32 v25, v25, v19")
o("    v_mul_u32_u24 v24, %d, v24" % REC_BYTES)
o("    v_mul_u32_u24 v25, %d, v25" % REC_BYTES)
o("    v_add_u32 v24, %d, v24" % K1L_STG)
o("    v_add_u32 v25, %d, v25" % K1L_STG)
o("    ds_write2_b32 v24, v8, v9 offset0:0 offset1:1")
o("    ds_write2_b32 v24, v12, v13 offset0:2 offset1:3")
o("    ds_write_b32 v24, v4 offset:16")
o("    ds_write2_b32 v25, v10, v11 offset0:0 offset1:1")
o("    ds_write2_b32 v25, v14, v15 offset0:2 offset1:3")
o("    ds_write_b32 v25, v5 offset:16")
if K1S:
    o("    v_cmp_le_u32 vcc, %d, v0" % (K1_THREADS - 64))
    o("    s_and_saveexec_b64 s[24:25], vcc")
    o("    s_cbranch_execz K1_tab_done")
    tab_store()
    o("K1_tab_done:")
    o("    s_mov_b64 exec, s[24:25]")
o("    s_waitcnt lgkmcnt(0)")
o("    s_barrier")
stamp1()
o("    v_lshlrev_b32 v23, 4, v0")
o("    ds_read_b128 v[4:7], v23 offset:%d" % K1L_STG)
o("    ds_read_b128 v[8:11], v23 offset:%d" % (K1L_STG + K1_THREADS * 16))
o("    s_mul_i32 s3, s2, %d" % (CHUNK * REC_BYTES))
o("    v_add_u32 v24, s3, v23")
o("    v_add_u32 v25, %d, v24" % (K1_THREADS * 16))
o("    v_add_u32 v26, %d, v24" % (2 * K1_THREADS * 16))
o("    v_cmp_gt_u32 vcc, %d, v0" % (CHUNK * REC_BYTES // 16 - 2 * K1_THREADS))
o("    s_waitcnt lgkmcnt(1)")
o("    global_store_dwordx4 v24, v[4:7], s[22:23]" + K1ST)
o("    s_waitcnt lgkmcnt(0)")
o("    global_store_dwordx4 v25, v[8:11], s[22:23]" + K1ST)
o("    s_and_saveexec_b64 s[24:25], vcc")
o("    s_cbranch_execz K1_end2")
o("    ds_read_b128 v[12:15], v23 offset:%d" % (K1L_STG + 2 * K1_THREADS * 16))
o("    s_waitcnt lgkmcnt(0)")
o("    global_store_dwordx4 v26, v[12:15], s[22:23]" + K1ST)
o("K1_end2:")
stamp1_flush()
o("    s_endpgm")
o("K1_wimg:")
o("    s_cmp_ge_u32 s2, %d" % (NCHUNK + 4))
o("    s_cbranch_scc1 K1_done")
o("    v_cmp_gt_u32 vcc, 512, v0")
o("    s_and_saveexec_b64 s[24:25], vcc")
o("    s_cbranch_execz K1_done")
o("    s_sub_u32 s3, s2, %d                  ; dp" % NCHUNK)
o("    v_bfe_u32 v1, v0, 8, 1                ; t")
o("    v_bfe_u32 v2, v0, 6, 2                ; s")
o("    v_bfe_u32 v3, v0, 4, 2                ; q")
o("    v_bfe_u32 v5, v0, 2, 2                ; i>>2")
o("    v_and_b32 v6, 3, v0                   ; i&3")
o("    v_lshlrev_b32 v7, 3, v3               ; q*8")
o("    v_lshl_add_u32 v7, v2, 5, v7          ; c0 = 32s + 8q")
o("    v_lshlrev_b32 v8, 3, v5")
o("    v_lshl_add_u32 v8, v1, 2, v8")
o("    v_add_u32 v8, v8, v6")
o("    s_lshl_b32 s26, s3, 5")
o("    v_add_u32 v8, s26, v8                 ; d")
o("    v_lshlrev_b32 v8, 1, v8")
o("    v_lshl_add_u32 v8, v7, 8, v8")
o("    s_waitcnt lgkmcnt(0)")
for j in range(8):
    o("    global_load_ushort v%d, v8, s[18:19] offset:%d" % (16 + j, 256 * j))
o("    s_lshl_b32 s26, s3, 13")
o("    s_add_u32 s26, s26, 0x%x" % WS_WIMG)
o("    v_lshl_add_u32 v11, v0, 4, s26")
o("    s_waitcnt vmcnt(0)")
for p in range(4):
    o("    v_lshl_or_b32 v%d, v%d, 16, v%d" % (12 + p, 17 + 2 * p, 16 + 2 * p))
o("    global_store_dwordx4 v11, v[12:15], s[22:23] sc1")
o("K1_done:")
o("    s_endpgm")

KN = NAME + "_kernel"
o(".globl %s" % KN)
o(".p2align 8")
o(".type %s,@function" % KN)
o("%s:" % KN)
vLaneOff = 1; vSoffC = 2; vSC = 3; vAggC = 4; vL8 = 5; vND = 6; vQ = 7
vP = 8; vS = 16; vCG = 20; vT = 22; vOne = 23; vA = 24
vRB = [32, 64]; vD = 96; vWR = 64
vREC = 32
vMETA = 96; vRANK = 104; vCA = 112
MM = 3
PPW = 22

TPC = 3
NSLOW = (E + 1023) // 1024
PFX = optval("pfx", 0)
PF0 = optval("pf0", 0)
TLB = optval("tlb", 0)
SPF = optval("spf", 0)
spf_u = [0]
def spf(nsl, tag):
    if nsl == 0: return
    o("    s_cmp_lt_u32 s40, 12")
    o("    s_cbranch_scc1 %s_e" % tag)
    o("    s_cmp_ge_u32 s2, 250")
    o("    s_cbranch_scc1 %s_e" % tag)
    o("    s_cmp_lg_u32 s41, 0")
    o("    s_cbranch_scc1 %s_e" % tag)
    for k in range(nsl):
        u = spf_u[0]; spf_u[0] += 1
        o("    s_mul_i32 s66, s2, %d" % (40 * 1024))
        o("    s_lshl_b32 s39, s40, 6")
        o("    s_add_u32 s66, s66, s39")
        o("    s_add_u32 s66, s66, %d" % (u * 256 - 12 * 64))
        o("    s_mov_b32 s39, 5")
        o("%s_l%d:" % (tag, k))
        for j in range(8):
            o("    s_load_dword s67, s[4:5], s66 offset:%d" % (j * 1024))
        o("    s_add_u32 s66, s66, 8192")
        o("    s_sub_u32 s39, s39, 1")
        o("    s_cmp_lg_u32 s39, 0")
        o("    s_cbranch_scc1 %s_l%d" % (tag, k))
    o("%s_e:" % tag)
PFM = optval("pfm", 0)
o("    s_cmp_ge_u32 s2, 256")
o("    s_cbranch_scc1 K2_done")
stamp()
o("    s_load_dwordx2 s[22:23], s[0:1], 80")
o("    s_load_dwordx16 s[4:19], s[0:1], 0")
o("    s_load_dwordx2 s[20:21], s[0:1], 64")
o("    v_and_b32 v8, 63, v0                  ; lane")
o("    v_lshrrev_b32 v9, 6, v0")
o("    v_min_u32 v14, %d, v8" % (PPW - 1))
o("    v_readfirstlane_b32 s40, v9")
o("    v_mad_u32_u24 v14, v9, %d, v14        ; pos" % PPW)
o("    v_min_u32 v14, 255, v14")
if KEYG:
    o("    s_and_b32 s3, s2, 7")
    o("    s_lshl_b32 s3, s3, 5")
    o("    s_lshr_b32 s43, s2, 3")
    o("    s_or_b32 s3, s3, s43")
    o("    s_lshl_b32 s3, s3, 10")
else:
    o("    s_lshl_b32 s3, s2, 10")
o("    s_add_u32 s43, s3, 0x%x               ; TAB + b*1024" % WS_TAB)
o("    v_lshl_add_u32 v15, v14, 2, s43")
o("    v_and_b32 v16, 31, v14")
o("    v_lshrrev_b32 v14, 5, v14")
o("    v_lshl_add_u32 v14, v16, 3, v14       ; chunk")
o("    v_and_b32 v9, 15, v8                  ; col")
o("    v_lshrrev_b32 v10, 4, v8              ; g")
o("    v_lshlrev_b32 v%d, 4, v9              ; laneoff = col*16" % vLaneOff)
o("    s_cmp_ge_u32 s40, 12")
o("    s_waitcnt lgkmcnt(0)")
o("    s_cbranch_scc1 K2_hiwaves")
if TLB & 1:
    o("    s_mov_b32 s47, %d" % (CHUNK * REC_BYTES))
    o("    v_mul_lo_u32 v19, v16, s47")
    o("    s_mul_i32 s3, s2, 100")
    o("    v_add_u32 v19, s3, v19")
o("    global_load_dword v16, v15, s[22:23]")
if TLB & 1:
    o("    global_load_dword v120, v19, s[22:23]")
o("    s_branch K2_tabs_issued")
o("K2_hiwaves:")
if RPF:
    o("    v_subrev_u32 v24, 768, v0")
    o("    v_lshrrev_b32 v25, 5, v24")
    o("    s_andn2_b32 s3, s2, 7")
    o("    v_add_u32 v25, s3, v25                ; chunk")
    o("    v_min_u32 v25, %d, v25" % (NCHUNK - 1))
    o("    s_mov_b32 s47, %d" % (CHUNK * REC_BYTES))
    o("    v_mul_lo_u32 v25, v25, s47")
    o("    v_and_b32 v24, 31, v24")
    o("    v_lshl_add_u32 v24, v24, 7, v25")
    o("    s_and_b32 s3, s2, 7")
    o("    s_mul_i32 s3, s3, 3200")
    o("    v_add_u32 v24, s3, v24")
    o("    v_max_u32 v24, 448, v24")
    o("    global_load_dword v123, v24, s[22:23] offset:-448")
o("    s_mov_b32 s24, s4")
o("    s_and_b32 s25, s5, 0xffff")
o("    s_mov_b32 s26, %d" % (N * 1024))
o("    s_mov_b32 s27, 0x00020000")
o("    s_cmp_eq_u32 s40, 13")
o("    s_cbranch_scc1 K2_cg_issue")
o("    s_cmp_lg_u32 s40, 14")
o("    s_cbranch_scc1 K2_pf")
for k in range(4):
    o("    global_load_dwordx4 v[%d:%d], v%d, s[16:17] offset:%d" % (96 + 4 * k, 96 + 4 * k + 3, vLaneOff, 256 * k))
o("    s_branch K2_pf")
o("K2_cg_issue:")
o("    v_lshrrev_b32 v11, 2, v9")
o("    v_lshlrev_b32 v18, 3, v10")
o("    v_lshl_add_u32 v18, v11, 1, v18")
for u in range(4):
    o("    global_load_ushort v%d, v18, s[14:15] offset:%d" % (96 + u, 32 * u))
o("K2_pf:")
NPF2 = 0
if ST:
    o("    s_cmp_eq_u32 s40, 13")
    o("    s_cbranch_scc1 K2_st_e")
    o("    s_cmp_eq_u32 s40, 14")
    o("    s_cbranch_scc1 K2_st_e")
    if ST == 1:
        o("    s_cmp_eq_u32 s40, 12")
        o("    s_cbranch_scc1 K2_st_e")
    o("    s_lshr_b32 s3, s2, 3")
    o("    s_mul_i32 s3, s3, 625")
    o("    s_add_u32 s3, s3, %d" % (256 - 768))
    o("    v_add_u32 v24, s3, v0")
    o("    v_lshrrev_b32 v25, 1, v24")
    o("    v_and_b32 v24, 1, v24")
    o("    v_lshlrev_b32 v24, 7, v24")
    o("    v_lshl_add_u32 v24, v25, 10, v24")
    o("    buffer_load_dword v125, v24, s[24:27], 0 offen")
    o("K2_st_e:")
if TLB & 2:
    o("    v_subrev_u32 v24, 768, v0")
    o("    v_lshlrev_b32 v24, 16, v24")
    o("    buffer_load_dword v121, v24, s[24:27], 0 offen")
    o("    v_min_u32 v24, 0x9c0000, v24")
    o("    global_load_dword v122, v24, s[20:21]")
    NPF2 += 2
if PFX & 1:
    o("    s_lshr_b32 s3, s2, 3")
    o("    s_mul_i32 s3, s3, 313")
    o("    s_and_b32 s44, s2, 7")
    o("    s_mul_i32 s44, s44, 1250")
    o("    s_add_u32 s3, s3, s44")
    o("    s_sub_u32 s3, s3, 768")
    o("    v_add_u32 v24, s3, v0")
    o("    v_subrev_u32 v25, 10000, v24")
    o("    v_min_u32 v24, v24, v25")
    o("    v_lshlrev_b32 v24, 10, v24")
    o("    buffer_load_dword v120, v24, s[24:27], 0 offen")
    o("    buffer_load_dword v121, v24, s[24:27], 0 offen offset:128")
    o("    v_subrev_u32 v26, 768, v0")
    o("    v_lshrrev_b32 v24, 1, v26")
    o("    v_min_u32 v24, 56, v24")
    o("    s_add_u32 s3, s3, %d" % (768 + 256))
    o("    v_add_u32 v24, s3, v24")
    o("    v_subrev_u32 v25, 10000, v24")
    o("    v_min_u32 v24, v24, v25")
    o("    v_lshlrev_b32 v24, 10, v24")
    o("    v_and_b32 v26, 1, v26")
    o("    v_lshl_add_u32 v24, v26, 7, v24")
    o("    buffer_load_dword v122, v24, s[24:27], 0 offen")
    NPF2 += 3
if PFX & 2:
    o("    s_lshl_b32 s3, s2, 8")
    o("    s_sub_u32 s3, s3, 768")
    o("    v_add_u32 v24, s3, v0")
    o("    s_mov_b32 s44, 43691")
    o("    v_mul_lo_u32 v25, v24, s44")
    o("    v_lshrrev_b32 v25, 18, v25            ; /6")
    o("    v_mul_u32_u24 v26, 6, v25")
    o("    v_sub_u32 v26, v24, v26")
    o("    v_lshlrev_b32 v26, 7, v26")
    o("    v_lshl_add_u32 v24, v25, 10, v26")
    o("    buffer_load_dword v124, v24, s[24:27], 0 offen offset:256")
    NPF2 += 1
if PFX & 4:
    o("    s_mul_i32 s3, s2, 313")
    o("    s_sub_u32 s3, s3, 768")
    o("    v_add_u32 v24, s3, v0")
    o("    v_lshlrev_b32 v24, 7, v24")
    o("    buffer_load_dword v124, v24, s[24:27], 0 offen")
    o("    v_subrev_u32 v26, 768, v0")
    o("    v_min_u32 v26, 56, v26")
    o("    s_add_u32 s3, s3, %d" % (768 + 256))
    o("    v_add_u32 v24, s3, v26")
    o("    v_lshlrev_b32 v24, 7, v24")
    o("    buffer_load_dword v125, v24, s[24:27], 0 offen")
    NPF2 += 2
o("K2_tabs_issued:")
o("    v_lshlrev_b32 v%d, 5, v10             ; g*32" % vSoffC)
o("    v_lshrrev_b32 v11, 2, v9              ; r = col>>2")
o("    v_and_b32 v12, 3, v9                  ; c = col&3")
o("    v_lshl_add_u32 v13, v11, 2, v10       ; 4r+g")
o("    v_lshlrev_b32 v13, 5, v13")
o("    v_lshlrev_b32 v13, 4, v10")
o("    v_lshl_add_u32 v%d, v11, 2, v13       ; g*16 + r*4" % vSC)
o("    v_xor_b32 v13, v9, v10                ; col ^ w")
o("    v_lshlrev_b32 v13, 4, v13")
o("    v_lshl_add_u32 v%d, v10, 8, v13       ; w*256 + (col^w)*16" % vAggC)
o("    v_lshlrev_b32 v%d, 3, v8              ; lane*8" % vL8)
o("    v_mov_b32 v%d, 1" % vOne)
o("    s_mov_b32 s32, 0x05040100")
o("    s_mov_b32 s33, 0x07060302")
o("    s_mov_b32 s41, 0")
o("    s_mov_b32 s42, 0                      ; round")
o("    s_mov_b32 s70, 160")
o("    s_cmp_ge_u32 s40, 12")
o("    s_cselect_b32 s70, %d, s70" % (FSW if FSW else 160))
o("    s_lshr_b32 s68, s2, 3")
o("    s_mul_i32 s68, s68, 313")
o("    s_min_u32 s68, s68, %d" % (N - 320))
o("    s_lshl_b32 s68, s68, 10")
o("    s_and_b32 s69, s2, 7")
o("    s_mul_i32 s69, s69, 5")
o("    s_mov_b32 s24, s4")
o("    s_and_b32 s25, s5, 0xffff")
o("    s_mov_b32 s26, %d" % (N * 1024))
o("    s_mov_b32 s27, 0x00020000")
o("    s_mov_b32 s28, s20")
o("    s_and_b32 s29, s21, 0xffff")
o("    s_mov_b32 s30, %d" % (N * 1024))
o("    s_mov_b32 s31, 0x00020000")
def round_init():
    o("    v_lshlrev_b32 v18, 4, v0")
    for i in range(4):
        o("    v_mov_b32 v%d, 0x%x" % (24 + i, OOB))
    o("    v_mov_b32 v28, 0")
    o("    v_mov_b32 v29, %d" % (16 - DPW))
    o("    v_cmp_gt_u32 vcc, 64, v0")
    o("    s_and_saveexec_b64 s[44:45], vcc")
    o("    v_lshlrev_b32 v19, 2, v0")
    o("    ds_write_b32 v19, v28 offset:%d" % L_CNT)
    o("    ds_write_b32 v19, v28 offset:%d" % L_LOCK)
    o("    ds_write_b32 v19, v28 offset:%d" % L_FLAG)
    o("    v_mov_b32 v19, 0")
    o("    ds_write_b64 v19, v[28:29] offset:%d" % L_FLAG)
    o("    s_mov_b64 exec, s[44:45]")
    o("    v_cmp_gt_u32 vcc, %d, v0" % (NKS * 128 // 16))
    o("    s_and_saveexec_b64 s[44:45], vcc")
    o("    ds_write_b128 v18, v[24:27] offset:%d" % L_SOFF)
    o("    s_mov_b64 exec, s[44:45]")
    z = (CAP * 32) | ((CAP * 32) << 16)
    for i in range(4):
        o("    v_mov_b32 v%d, 0x%x" % (24 + i, z))
    o("    v_cmp_gt_u32 vcc, %d, v0" % (NKS * 64 // 16))
    o("    s_and_saveexec_b64 s[44:45], vcc")
    o("    ds_write_b128 v18, v[24:27] offset:%d" % L_SIDX)
    o("    s_mov_b64 exec, s[44:45]")
    for m in range(MM):
        o("    s_mov_b64 s[%d:%d], 0" % (48 + 2 * m, 49 + 2 * m))
    o("    s_mov_b64 s[64:65], 0")
round_init()
def barrier1():
    o("    s_waitcnt lgkmcnt(0)")
    o("    s_barrier")
if not LB1:
    barrier1()
stamp()
def zero_big():
    o("    v_lshlrev_b32 v18, 4, v0              ; tid*16")
    for i in range(4):
        o("    v_mov_b32 v%d, 0" % (28 + i))
    Z0 = L_S + CAP * 32
    nz = (L_END - Z0) // 16
    full = nz // 1024
    rem = nz - full * 1024
    o("    v_add_u32 v25, %d, v18" % Z0)
    o("    v_add_u32 v26, %d, v18" % (Z0 + 65536))
    o("    v_add_u32 v27, %d, v18" % (Z0 + 131072))
    for i in range(full):
        off = i * 16384
        o("    ds_write_b128 v%d, v[28:31] offset:%d" % (25 + off // 65536, off % 65536))
    if rem:
        off = full * 16384
        o("    v_cmp_gt_u32 vcc, %d, v0" % rem)
        o("    s_and_saveexec_b64 s[44:45], vcc")
        o("    ds_write_b128 v%d, v[28:31] offset:%d" % (25 + off // 65536, off % 65536))
        o("    s_mov_b64 exec, s[44:45]")
o("    s_cmp_lt_u32 s40, 12")
o("    s_cbranch_scc1 K2_lowaves")
if LB1: barrier1()
zero_big()
o("    s_cmp_eq_u32 s40, 13")
o("    s_cbranch_scc1 K2_cg_build")
o("    s_cmp_lg_u32 s40, 14")
o("    s_cbranch_scc1 " + ("K2_hi_wait" if B2T else "K2_S_done"))
o("    s_waitcnt vmcnt(%d)" % NPF2)
for i in range(4):
    for k in range(4):
        o("    v_lshlrev_b32 v%d, 16, v%d" % (112 + k, 96 + 4 * k + i))
        o("    v_and_b32 v%d, 0xffff0000, v%d" % (116 + k, 96 + 4 * k + i))
    o("    ds_write_b128 v%d, v[112:115] offset:%d" % (vLaneOff, L_WR + 256 * (2 * i)))
    o("    ds_write_b128 v%d, v[116:119] offset:%d" % (vLaneOff, L_WR + 256 * (2 * i + 1)))
o("    s_branch " + ("K2_hi_wait" if B2T else "K2_S_done"))
o("K2_cg_build:")
o("    v_and_b32 v19, 1, v12")
o("    v_lshlrev_b32 v19, 4, v19             ; shift 0/16")
o("    v_cmp_gt_u32 vcc, 2, v12")
o("    s_waitcnt vmcnt(%d)" % NPF2)
for u in range(4):
    o("    v_lshlrev_b32 v20, v19, v%d" % (96 + u))
    o("    v_cndmask_b32 v%d, 0, v20, vcc" % (112 + 2 * u))
    o("    v_xor_b32 v%d, v20, v%d" % (113 + 2 * u, 112 + 2 * u))
    o("    ds_write_b64 v%d, v[%d:%d] offset:%d" % (vL8, 112 + 2 * u, 113 + 2 * u, L_CG + 512 * u))
o("    s_branch " + ("K2_hi_wait" if B2T else "K2_S_done"))
o("K2_lowaves:")
o("    s_mul_i32 s46, s40, 192")
o("    s_add_u32 s46, s46, %d" % L_MARK)
o("    v_add_u32 v20, s46, v8                ; mark[lane]")
o("    v_mov_b32 v28, 0")
for m in range(MM):
    o("    ds_write_b8 v20, v28 offset:%d" % (64 * m))
o("    v_cmp_gt_u32 vcc, %d, v14" % NCHUNK)
o("    v_cmp_gt_u32 s[44:45], %d, v8" % PPW)
o("    s_mul_i32 s3, s40, %d" % PPW)
o("    v_add_u32 v24, s3, v8")
o("    s_and_b64 vcc, vcc, s[44:45]")
o("    v_cmp_gt_u32 s[44:45], s47, v24" if False else "    v_cmp_lt_u32 s[44:45], v24, v%d" % 25 if False else "    s_nop 0")
o("    s_mov_b32 s47, %d" % (CHUNK * REC_BYTES))
o("    v_mul_lo_u32 v26, v14, s47")
o("    v_add_u32 v27, 1, v8                  ; lane+1")
o("    s_waitcnt vmcnt(0)")
if STAMP:
    o("    s_memrealtime s[72:73]")
    o("    s_waitcnt lgkmcnt(0)")
o("    v_lshrrev_b32 v18, 16, v16            ; cnt")
o("    v_cndmask_b32 v18, 0, v18, vcc")
o("    v_and_b32 v19, 0xffff, v16            ; start")
o("    v_mov_b32 v17, v18")
dpp_scan("v17")
o("    v_readlane_b32 s36, v17, 63")
o("    v_sub_u32 v17, v17, v18               ; excl")
o("    v_sub_u32 v19, v19, v17")
o("    v_mad_i32_i24 v26, v19, %d, v26       ; base = chunk*25600 + (start-excl)*20" % REC_BYTES)
o("    v_cmp_lt_u32 vcc, 0, v18")
o("    v_cmp_gt_u32 s[44:45], %d, v17" % 64 if False else "    v_min_u32 v17, %d, v17" % (64 * MM - 1))
o("    v_add_u32 v17, s46, v17")
o("    s_and_saveexec_b64 s[44:45], vcc")
o("    ds_write_b8 v17, v27")
o("    s_mov_b64 exec, s[44:45]")
for m in range(MM):
    o("    ds_read_u8 v%d, v20 offset:%d" % (28 + m, 64 * m))
o("    s_cmp_gt_u32 s36, %d" % (64 * MM))
o("    s_cselect_b64 s[64:65], -1, 0")
o("    s_cselect_b32 s36, 0, s36")
o("    s_waitcnt lgkmcnt(0)")
def max_scan(regs):
    for ctl in ["row_shr:1 row_mask:0xf bank_mask:0xf", "row_shr:2 row_mask:0xf bank_mask:0xf", "row_shr:4 row_mask:0xf bank_mask:0xf", "row_shr:8 row_mask:0xf bank_mask:0xf",
                "row_bcast:15 row_mask:0xa bank_mask:0xf", "row_bcast:31 row_mask:0xc bank_mask:0xf"]:
        for r in regs:
            o("    v_max_u32_dpp v%d, v%d, v%d %s" % (r, r, r, ctl))
    o("    s_nop 0")
max_scan([28, 29, 30])
o("    v_readlane_b32 s38, v28, 63")
o("    v_readlane_b32 s39, v29, 63")
o("    v_lshlrev_b32 v28, 2, v28")
o("    s_max_u32 s39, s39, s38")
o("    v_max_u32 v29, s38, v29")
o("    v_max_u32 v30, s39, v30")
o("    v_lshlrev_b32 v29, 2, v29")
o("    v_lshlrev_b32 v30, 2, v30")
for m in range(MM):
    o("    v_subrev_u32 v%d, 4, v%d" % (28 + m, 28 + m))
    o("    ds_bpermute_b32 v%d, v%d, v26" % (28 + m, 28 + m))
o("    v_mul_u32_u24 v17, %d, v8             ; lane*20" % REC_BYTES)
for m in range(MM):
    o("    v_add_u32 v24, %d, v8" % (64 * m))
    o("    v_cmp_gt_u32 vcc, s36, v24")
    o("    s_and_b64 exec, exec, vcc")
    o("    s_cbranch_execz K2_loads_done0")
    o("    s_mov_b64 s[%d:%d], exec" % (48 + 2 * m, 49 + 2 * m))
    o("    s_waitcnt lgkmcnt(%d)" % (MM - 1 - m))
    o("    v_add_u32 v19, v17, v%d" % (28 + m))
    o("    global_load_dwordx4 v[%d:%d], v19, s[22:23]" % (vREC + 8 * m, vREC + 8 * m + 3))
    o("    global_load_dword v%d, v19, s[22:23] offset:16" % (vMETA + m))
    o("    v_add_u32 v17, %d, v17" % (64 * REC_BYTES))
o("K2_loads_done0:")
if B2T and ARRM:
    o("    s_mov_b64 exec, 1")
    o("    ds_add_u32 v%d, v%d offset:%d" % (vLaneOff, vOne, L_ARR))
o("    s_mov_b64 exec, -1")
o("    s_waitcnt lgkmcnt(0)")
if LB1: barrier1()
if PF0 == 1:
    o("    s_lshr_b32 s3, s2, 3")
    o("    s_mul_i32 s3, s3, 625")
    o("    s_and_b32 s44, s2, 7")
    o("    s_mul_i32 s44, s44, 2500")
    o("    s_add_u32 s3, s3, s44")
    o("    v_min_u32 v24, 624, v0")
    o("    v_add_u32 v24, s3, v24")
    o("    v_subrev_u32 v25, 20000, v24")
    o("    v_min_u32 v24, v24, v25")
if PF0 == 2:
    o("    s_mul_i32 s3, s2, 79")
    o("    v_min_u32 v24, 78, v0")
    o("    v_add_u32 v24, s3, v24")
if PF0:
    o("    v_lshrrev_b32 v25, 1, v24")
    o("    v_and_b32 v24, 1, v24")
    o("    v_lshlrev_b32 v24, 7, v24")
    o("    v_lshl_add_u32 v24, v25, 10, v24")
    o("    buffer_load_dword v120, v24, s[24:27], 0 offen")
zero_big()
if PF0:
    o("    s_cmp_eq_u64 s[64:65], 0")
    o("    s_cbranch_scc1 K2_noflag0")
    o("    v_mov_b32 v19, 0")
    o("    ds_write_b32 v19, v%d offset:%d" % (vOne, L_FLAG))
    o("K2_noflag0:")
    o("    s_waitcnt vmcnt(1)")
    o("    s_branch K2_recs_ready")
else:
    o("    s_branch K2_loads_done")

o("K2_round:")
round_init()
o("    s_lshl_b32 s3, s42, 10")
o("    v_add_u32 v14, s3, v0                 ; edge")
o("    v_cmp_gt_u32 vcc, %d, v14" % E)
o("    v_min_u32 v14, %d, v14" % (E - 1))
o("    v_lshlrev_b32 v15, 2, v14")
o("    v_lshlrev_b32 v16, 3, v14")
o("    global_load_dword v17, v15, s[8:9]")
o("    global_load_dword v18, v15, s[6:7]")
o("    global_load_dwordx2 v[%d:%d], v16, s[10:11]" % (vREC, vREC + 1))
o("    global_load_dwordx2 v[%d:%d], v16, s[12:13]" % (vREC + 2, vREC + 3))
o("    s_waitcnt vmcnt(0) lgkmcnt(0)")
o("    s_barrier")
o("    v_and_b32 v19, 255, v17")
o("    v_cmp_eq_u32 s[46:47], s2, v19")
o("    v_lshrrev_b32 v17, 8, v17")
o("    v_lshl_or_b32 v%d, v17, 16, v18" % vMETA)
o("    s_and_b64 s[48:49], vcc, s[46:47]")

o("K2_loads_done:")
o("    s_bcnt1_i32_b64 s36, s[48:49]")
for m in range(1, MM):
    o("    s_bcnt1_i32_b64 s39, s[%d:%d]" % (48 + 2 * m, 49 + 2 * m))
    o("    s_add_u32 s36, s36, s39")
o("    v_mov_b32 v20, s36")
o("    s_mov_b64 exec, 1")
o("    ds_add_rtn_u32 v21, v%d, v20 offset:%d" % (vLaneOff, L_SP))
o("    s_mov_b64 exec, -1")
o("    s_waitcnt lgkmcnt(0)")
o("    v_readfirstlane_b32 s35, v21")
o("    s_add_u32 s36, s36, s35")
o("    s_cmp_le_u32 s36, %d" % CAP)
o("    s_cbranch_scc1 K2_sp_ok")
o("    s_mov_b64 s[64:65], -1")
o("    s_mov_b64 s[48:49], 0")
o("K2_sp_ok:")
o("    s_cmp_eq_u64 s[64:65], 0")
o("    s_cbranch_scc1 K2_noflag")
o("    v_mov_b32 v19, 0")
o("    ds_write_b32 v19, v%d offset:%d" % (vOne, L_FLAG))
o("K2_noflag:")
o("    s_waitcnt vmcnt(0)")
o("K2_recs_ready:")
if B2T and not ARRM:
    o("    s_mov_b64 exec, 1")
    o("    ds_add_u32 v%d, v%d offset:%d" % (vLaneOff, vOne, L_ARR))
    o("    s_mov_b64 exec, -1")
if STAMP:
    o("    s_memrealtime s[74:75]")
    o("    s_waitcnt lgkmcnt(0)")
for m in range(MM):
    o("    s_mov_b64 exec, s[%d:%d]" % (48 + 2 * m, 49 + 2 * m))
    o("    s_cbranch_execz K2_rank_done")
    o("    v_lshrrev_b32 v%d, 16, v%d" % (vCA + m, vMETA + m))
    o("    v_lshlrev_b32 v%d, 2, v%d" % (vCA + m, vCA + m))
    o("    ds_add_rtn_u32 v%d, v%d, v%d offset:%d" % (vRANK + m, vCA + m, vOne, L_CNT))
o("K2_rank_done:")
for m in range(MM):
    o("    s_mov_b64 exec, s[%d:%d]" % (48 + 2 * m, 49 + 2 * m))
    o("    s_cbranch_execz K2_S_done0")
    r = vREC + 8 * m
    o("    v_lshlrev_b32 v8, 16, v%d" % r)
    o("    v_and_b32 v9, 0xffff0000, v%d" % r)
    o("    v_lshlrev_b32 v10, 16, v%d" % (r + 1))
    o("    v_and_b32 v11, 0xffff0000, v%d" % (r + 1))
    o("    v_lshlrev_b32 v12, 16, v%d" % (r + 2))
    o("    v_and_b32 v13, 0xffff0000, v%d" % (r + 2))
    o("    v_lshlrev_b32 v14, 16, v%d" % (r + 3))
    o("    v_and_b32 v15, 0xffff0000, v%d" % (r + 3))
    for v in range(4):
        o("    v_pk_mul_f32 v[28:29], v[12:13], v[%d:%d] op_sel:[0,%d] op_sel_hi:[1,%d]" % (8 + (v & 2), 9 + (v & 2), v & 1, v & 1))
        o("    v_pk_mul_f32 v[30:31], v[14:15], v[%d:%d] op_sel:[0,%d] op_sel_hi:[1,%d]" % (8 + (v & 2), 9 + (v & 2), v & 1, v & 1))
        o("    v_cvt_pk_bf16_f32 v%d, v28, v29" % (r + 2 * v))
        o("    v_cvt_pk_bf16_f32 v%d, v30, v31" % (r + 2 * v + 1))
    o("    v_and_b32 v%d, 0xffff, v%d" % (vMETA + m, vMETA + m))
    o("    v_lshlrev_b32 v%d, 10, v%d" % (vMETA + m, vMETA + m))
    o("    v_mbcnt_lo_u32_b32 v16, exec_lo, 0")
    o("    v_mbcnt_hi_u32_b32 v16, exec_hi, v16")
    o("    v_add_lshl_u32 v%d, v16, s35, 5" % (116 + m))
    o("    ds_write_b128 v%d, v[%d:%d] offset:%d" % (116 + m, r, r + 3, L_S))
    o("    ds_write_b128 v%d, v[%d:%d] offset:%d" % (116 + m, r + 4, r + 7, L_S + 16))
    o("    s_bcnt1_i32_b64 s39, exec")
    o("    s_add_u32 s35, s35, s39")
def slot_write(m, ksreg):
    rank = vRANK + m
    o("    v_lshrrev_b32 v27, 5, v%d" % rank)
    o("    v_add_lshl_u32 v26, %s, v27, 7" % ksreg)
    o("    v_and_b32 v27, 3, v%d" % rank)
    o("    v_lshl_add_u32 v26, v27, 5, v26")
    o("    v_lshrrev_b32 v25, 1, v26             ; ks*64 + g*16")
    o("    v_and_or_b32 v25, v%d, 12, v25        ; + (j&3)*4" % rank)
    o("    v_bfe_u32 v27, v%d, 4, 1" % rank)
    o("    v_lshl_or_b32 v25, v27, 1, v25        ; + (j>>2)*2")
    o("    ds_write_b16 v25, v%d offset:%d" % (116 + m, L_SIDX))
    o("    v_and_or_b32 v26, v%d, 28, v26" % rank)
    o("    ds_write_b32 v26, v%d offset:%d" % (vMETA + m, L_SOFF))
o("K2_S_done0:")
o("    s_cmp_lg_u32 s41, 0")
o("    s_cbranch_scc1 K2_S_done")
o("    s_waitcnt lgkmcnt(0)")
for m in range(MM):
    o("    s_mov_b64 exec, s[%d:%d]" % (48 + 2 * m, 49 + 2 * m))
    o("    s_cbranch_execz K2_S_done")
    o("    v_cmp_gt_u32 vcc, 96, v%d" % (vRANK + m))
    o("    v_lshrrev_b32 v24, 2, v%d             ; node" % (vCA + m))
    o("    v_mul_u32_u24 v24, 3, v24")
    o("    s_and_b64 exec, exec, vcc")
    slot_write(m, "v24")
o("    s_branch K2_S_done")
if B2T:
    o("K2_hi_wait:")
    o("    v_mov_b32 v24, 0")
    o("    s_mov_b32 s39, 0")
    o("K2_hi_wl:")
    o("    s_sleep 1")
    o("    ds_read_b32 v25, v24 offset:%d" % L_ARR)
    o("    s_waitcnt lgkmcnt(0)")
    o("    v_readfirstlane_b32 s38, v25")
    o("    s_add_u32 s39, s39, 1")
    o("    s_cmp_ge_u32 s39, 4096")
    o("    s_cbranch_scc1 K2_S_done")
    o("    s_cmp_ge_u32 s38, %d" % ARRN)
    o("    s_cbranch_scc0 K2_hi_wl")
    o("    s_lshr_b32 s3, s2, 3")
    o("    s_mul_i32 s3, s3, 625")
    o("    s_sub_u32 s3, s3, 768")
    o("    v_add_u32 v24, s3, v0")
    o("    v_lshrrev_b32 v25, 1, v24")
    o("    v_and_b32 v24, 1, v24")
    o("    v_lshlrev_b32 v24, 7, v24")
    o("    v_lshl_add_u32 v24, v25, 10, v24")
    o("    buffer_load_dword v120, v24, s[24:27], 0 offen")
    for i in range(1, B2N):
        o("    v_add_u32 v24, 0x20000, v24")
        o("    buffer_load_dword v%d, v24, s[24:27], 0 offen" % (120 + i))
o("K2_S_done:")
o("    s_mov_b64 exec, -1")
spf(SPF // 100, "SP1")
def sp0(n0, n, tag):
    if n == 0: return
    o("    s_cmp_lt_u32 s40, 12")
    o("    s_cbranch_scc1 %s_e" % tag)
    o("    s_cmp_lg_u32 s41, 0")
    o("    s_cbranch_scc1 %s_e" % tag)
    o("    s_sub_u32 s66, s40, 12")
    o("    s_mul_i32 s66, s66, %d" % (80 * 1024))
    o("    s_add_u32 s66, s66, s68")
    o("    s_lshl_b32 s38, s69, 1")
    o("    s_add_u32 s38, s38, %d" % n0)
    o("    s_mov_b32 s39, %d" % n)
    o("%s_l:" % tag)
    o("    s_sub_u32 s36, s38, 80")
    o("    s_min_u32 s38, s38, s36")
    o("    s_lshl_b32 s36, s38, 10")
    o("    s_add_u32 s36, s36, s66")
    for sec in range(4):
        o("    s_load_dword s67, s[4:5], s36 offset:%d" % (sec * 64))
    o("    s_add_u32 s38, s38, 1")
    o("    s_sub_u32 s39, s39, 1")
    o("    s_cmp_lg_u32 s39, 0")
    o("    s_cbranch_scc1 %s_l" % tag)
    o("%s_e:" % tag)
sp0(0, SP0A, "SQ1")
o("    s_waitcnt lgkmcnt(0)")
o("    s_barrier")
stamp()
o("    v_lshrrev_b32 v19, 1, v%d             ; lane*4" % vL8)
o("    ds_read_b32 v24, v19 offset:%d" % L_CNT)
o("    v_mov_b32 v20, 0")
o("    ds_read_b32 v21, v20 offset:%d" % L_FLAG)
o("    s_waitcnt lgkmcnt(0)")
o("    s_cmp_lg_u32 s41, 0")
o("    s_cbranch_scc1 K2_slow_scan")
o("    v_cmp_lt_u32 vcc, 96, v24")
o("    v_readfirstlane_b32 s35, v21")
o("    v_mul_u32_u24 v20, 3, v19")
o("    v_lshlrev_b32 v20, 9, v20             ; (lane*3) << 11")
o("    v_lshl_or_b32 v%d, v24, 18, v20" % vND)
o("    s_or_b32 s35, s35, vcc_lo")
o("    s_or_b32 s35, s35, vcc_hi")
o("    s_cmp_eq_u32 s35, 0")
o("    s_cbranch_scc1 K2_main_start")
o("    s_mov_b32 s41, 1")
o("    s_barrier")
o("    s_branch K2_round")
o("K2_slow_scan:")
o("    v_add_u32 v25, 31, v24")
o("    v_lshrrev_b32 v25, 5, v25             ; nks")
o("    v_lshl_or_b32 v26, v25, 16, v24       ; packed")
o("    v_mov_b32 v27, v26")
dpp_scan("v27")
o("    v_readlane_b32 s34, v27, 63")
o("    v_readfirstlane_b32 s35, v21")
o("    v_sub_u32 v27, v27, v26")
o("    ds_write_b32 v19, v27 offset:%d" % L_TABS)
o("    s_and_b32 s36, s34, 0xffff            ; total")
o("    s_lshr_b32 s34, s34, 16               ; nK")
o("    s_cmp_gt_u32 s36, %d" % CAP)
o("    s_cselect_b32 s36, 1, 0")
o("    s_or_b32 s35, s35, s36")
o("    s_cmp_eq_u32 s35, 0")
o("    s_cbranch_scc1 K2_ok")
o("    s_mov_b32 s41, 1")
o("    s_waitcnt lgkmcnt(0)")
o("    s_barrier")
o("    s_branch K2_round")
o("K2_ok:")
o("    v_and_b32 v20, 0xffff, v27")
o("    v_lshrrev_b32 v21, 16, v27")
o("    v_lshl_or_b32 v20, v21, 11, v20")
o("    v_lshl_or_b32 v%d, v24, 18, v20       ; node desc: Sstart | kstart<<11 | cnt<<18" % vND)
for m in range(MM):
    o("    s_mov_b64 exec, s[%d:%d]" % (48 + 2 * m, 49 + 2 * m))
    o("    s_cbranch_execz K2_tabs_done")
    o("    ds_read_b32 v%d, v%d offset:%d" % (vCA + m, vCA + m, L_TABS))
o("K2_tabs_done:")
o("    s_waitcnt lgkmcnt(0)")
for m in range(MM):
    o("    s_mov_b64 exec, s[%d:%d]" % (48 + 2 * m, 49 + 2 * m))
    o("    s_cbranch_execz K2_scatter_done")
    r = vREC + 8 * m
    rank = vRANK + m
    tb = vCA + m
    o("    v_lshrrev_b32 v24, 16, v%d" % tb)
    slot_write(m, "v24")
o("K2_scatter_done:")
o("    s_mov_b64 exec, -1")
spf((SPF // 10) % 10, "SP2")
sp0(SP0A, SP0B, "SQ2")
o("    s_waitcnt lgkmcnt(0)")
o("    s_barrier")
o("K2_main_start:")
stamp()
if STAMP:
    o("    s_memtime s[76:77]")
    o("    s_waitcnt lgkmcnt(0)")

NITEM = 160
uid = [0]
def dequeue():
    o("    s_mov_b64 exec, 1")
    o("    ds_add_rtn_u32 v%d, v%d, v%d offset:%d" % (vQ, vLaneOff, vOne, L_Q))
    o("    s_mov_b64 exec, -1")

def gen_next(first_id_in_s38=False):
    t = "G%d" % uid[0]; uid[0] += 1
    if first_id_in_s38:
        o("    s_branch %s_dec" % t)
    else:
        o("    s_cmp_eq_u32 s62, 0")
        o("    s_cbranch_scc1 %s_retry" % t)
        o("    s_add_u32 s63, s63, 1")
        o("    s_add_u32 s64, s64, 1024")
        o("    s_mov_b32 s65, 0")
        o("    s_branch %s_cnt" % t)
    o("%s_retry:" % t)
    if SYNCQ:
        if FSW:
            o("    s_cmp_ge_u32 s71, s70")
            o("    s_mov_b32 s38, 1000")
            o("    s_cbranch_scc1 %s_dec" % t)
        dequeue()
        o("    s_waitcnt lgkmcnt(0)")
        o("    v_readfirstlane_b32 s38, v%d" % vQ)
        if FSW:
            o("    s_mov_b32 s71, s38")
    else:
        o("    s_waitcnt lgkmcnt(0)")
        o("    v_readfirstlane_b32 s38, v%d" % vQ)
        if FSW:
            o("    s_cmp_ge_u32 s38, s70")
            o("    s_cbranch_scc0 %s_dq" % t)
            o("    v_mov_b32 v%d, 1000" % vQ)
            o("    s_branch %s_dec" % t)
            o("%s_dq:" % t)
        dequeue()
    o("%s_dec:" % t)
    o("    s_cmp_lt_u32 s38, %d" % NITEM)
    o("    s_cbranch_scc1 %s_valid" % t)
    o("    s_mov_b32 s65, 0")
    o("    s_mov_b32 s62, 0")
    o("    s_branch %s_end" % t)
    o("%s_valid:" % t)
    if SKEW:
        o("    s_lshr_b32 s39, s38, 2")
        o("    v_readlane_b32 s39, v%d, s39" % vT)
        o("    s_lshl_b32 s60, s38, 3")
        o("    s_lshr_b32 s39, s39, s60")
        o("    s_bfe_u32 s60, s39, 0x20006           ; u")
        o("    s_and_b32 s61, s39, 63                ; node")
    else:
        o("    s_mul_i32 s60, s38, 1639")
        o("    s_lshr_b32 s60, s60, 16               ; u = id / 40")
        o("    s_mul_i32 s61, s60, 40")
        o("    s_sub_u32 s61, s38, s61               ; node")
        if ROT:
            o("    s_lshr_b32 s39, s2, %d" % (ROT - 1))
            o("    s_add_u32 s60, s60, s39")
            o("    s_and_b32 s60, s60, 3")
    if PFM:
        o("    s_andn2_b32 s39, s61, 1")
        o("    s_cmp_lg_u32 s39, %d" % (PFM & ~1))
        o("    s_cbranch_scc1 %s_nopf" % t)
        o("    s_and_b32 s39, s61, 1")
        o("    s_mul_i32 s39, s39, 40")
        o("    s_mul_i32 s36, s2, 80")
        o("    s_add_u32 s39, s39, s36")
        o("    v_lshrrev_b32 v0, 3, v%d" % vL8)
        o("    v_min_u32 v0, 39, v0")
        o("    v_add_u32 v0, s39, v0")
        o("    v_lshrrev_b32 v%d, 1, v0" % vCG)
        o("    v_and_b32 v0, 1, v0")
        o("    v_lshlrev_b32 v0, 7, v0")
        o("    v_lshl_add_u32 v0, v%d, 10, v0" % vCG)
        o("    s_lshl_b32 s36, s60, 8")
        o("    s_cmp_eq_u32 s60, 3")
        o("    s_cbranch_scc1 %s_nopf" % t)
        o("    buffer_load_dword v%d, v0, s[24:27], s36 offen offset:256" % vT)
        o("%s_nopf:" % t)
    o("    v_readlane_b32 s39, v%d, s61" % vND)
    o("    s_lshr_b32 s62, s39, 18               ; cnt")
    if DF:
        o("    s_cbranch_scc1 %s_ne" % t)
        o("    s_andn2_b32 s39, s61, 3")
        o("    v_mov_b32 v0, s39")
        o("    s_mov_b64 exec, 1")
        o("    ds_add_u32 v0, v%d offset:%d" % (vOne, L_TC))
        o("    s_mov_b64 exec, -1")
        o("    s_branch %s_retry" % t)
        o("%s_ne:" % t)
    else:
        o("    s_cbranch_scc0 %s_retry" % t)
    o("    s_bfe_u32 s63, s39, 0x7000b           ; kstart")
    o("    s_and_b32 s64, s39, 0x7ff")
    o("    s_lshl_b32 s64, s64, 5")
    o("    s_mov_b32 s65, 16")
    o("%s_cnt:" % t)
    o("    s_min_u32 s39, s62, 32")
    o("    s_sub_u32 s62, s62, s39")
    o("    s_add_u32 s39, s39, 3")
    o("    s_lshr_b32 s39, s39, 2")
    o("    s_or_b32 s65, s65, s39")
    o("    s_cmp_eq_u32 s62, 0")
    o("    s_cselect_b32 s39, 32, 0")
    o("    s_or_b32 s65, s65, s39")
    o("    s_lshl_b32 s39, s63, 7")
    o("    v_add_u32 v0, s39, v%d" % vSoffC)
    o("    ds_read_b128 v[%d:%d], v0 offset:%d" % (vA, vA + 3, L_SOFF))
    o("    ds_read_b128 v[%d:%d], v0 offset:%d" % (vA + 4, vA + 7, L_SOFF + 16))
    o("    s_lshl_b32 s39, s63, 6")
    o("    v_add_u32 v0, s39, v%d" % vSC)
    o("    ds_read_b32 v%d, v0 offset:%d" % (vT, L_SIDX))
    o("%s_end:" % t)

def issue_loads(b):
    t = "L%d" % uid[0]; uid[0] += 1
    o("    s_lshl_b32 s37, s60, 8")
    if "--u0" in opts: o("    s_mov_b32 s37, 0")
    o("    s_and_b32 s39, s65, 15")
    o("    s_cbranch_scc0 %s_e" % t)
    for j in range(8):
        o("    v_add_u32 v%d, v%d, v%d" % (vA + j, vA + j, vLaneOff))
        if j < 7:
            o("    s_cmp_eq_u32 s39, %d" % (j + 1))
        o("    buffer_load_dwordx4 v[%d:%d], v%d, s[24:27], s37 offen" % (vRB[b] + 4 * j, vRB[b] + 4 * j + 3, vA + j))
        if j < 7:
            o("    s_cbranch_scc1 %s_e" % t)
    o("%s_e:" % t)

def gen_to_slot(b):
    sb = 48 + 4 * b
    o("    s_mov_b64 s[%d:%d], s[60:61]" % (sb, sb + 1))
    o("    s_mov_b64 s[%d:%d], s[64:65]" % (sb + 2, sb + 3))

def perms(b, j, pbase, npair):
    i = j >> 1
    sel = "s32" if (j & 1) == 0 else "s33"
    for jj in range(npair):
        a = vRB[b] + 4 * (2 * jj) + i
        c = vRB[b] + 4 * (2 * jj + 1) + i
        o("    v_perm_b32 v%d, v%d, v%d, %s" % (pbase + jj, c, a, sel))
def mm(b, acc, npair):
    if "--nomm" in opts: return
    sb = 48 + 4 * b
    t = "Z%d" % uid[0]; uid[0] += 1
    o("    s_bitcmp0_b32 s%d, 0" % (sb + 3))
    o("    s_cbranch_scc1 %s" % t)
    for i in range(4):
        o("    v_mov_b32 v%d, 0" % (vRB[b] + 4 * (2 * npair - 1) + i))
    o("%s:" % t)
    k16 = npair <= 2
    if npair in (1, 3):
        o("    v_mov_b32 v%d, 0" % (vP + npair))
        o("    v_mov_b32 v%d, 0" % (vP + 4 + npair))
    perms(b, 0, vP, npair)
    for j in range(8):
        if j + 1 < 8:
            perms(b, j + 1, vP + 4 * ((j + 1) & 1), npair)
        if npair == 1 or j == 7:
            o("    s_nop 0")
        pb = vP + 4 * (j & 1)
        c = "v[%d:%d]" % (vD + 4 * j, vD + 4 * j + 3) if acc else "0"
        if k16:
            o("    v_mfma_f32_16x16x16_bf16 v[%d:%d], v[%d:%d], v[%d:%d], %s" % (vD + 4 * j, vD + 4 * j + 3, vS, vS + 1, pb, pb + 1, c))
        else:
            o("    v_mfma_f32_16x16x32_bf16 v[%d:%d], v[%d:%d], v[%d:%d], %s" % (vD + 4 * j, vD + 4 * j + 3, vS, vS + 3, pb, pb + 3, c))

def mm_all(b):
    sb = 48 + 4 * b
    o("    s_and_b32 s39, s%d, 15" % (sb + 3))
    o("    s_bitcmp0_b32 s%d, 4" % (sb + 3))
    o("    s_cbranch_scc1 M%d_acc" % b)
    for acc in (False, True):
        a = "a" if acc else "f"
        if acc: o("M%d_acc:" % b)
        o("    s_cmp_gt_u32 s39, 6")
        o("    s_cbranch_scc1 M%d%s4" % (b, a))
        o("    s_cmp_gt_u32 s39, 4")
        o("    s_cbranch_scc1 M%d%s3" % (b, a))
        o("    s_cmp_gt_u32 s39, 2")
        o("    s_cbranch_scc1 M%d%s2" % (b, a))
        for npair in (1, 2, 3, 4):
            o("M%d%s%d:" % (b, a, npair))
            mm(b, acc, npair)
            if not (acc and npair == 4):
                o("    s_branch M%d_done" % b)
    o("M%d_done:" % b)

def vm_wait(other):
    if NBUF == 1:
        o("    s_waitcnt vmcnt(0) lgkmcnt(0)")
        return
    t = "W%d" % uid[0]; uid[0] += 1
    sb = 48 + 4 * other
    o("    s_and_b32 s39, s%d, 15" % (sb + 3))
    o("    s_cmp_eq_u32 s39, 8")
    o("    s_cbranch_scc1 %s_8" % t)
    o("    s_cmp_ge_u32 s39, 4")
    o("    s_cbranch_scc1 %s_hi" % t)
    o("    s_cmp_ge_u32 s39, 2")
    o("    s_cbranch_scc1 %s_2" % t)
    o("    s_waitcnt vmcnt(0)")
    o("%s_2:" % t)
    o("    s_waitcnt vmcnt(2)")
    o("%s_hi:" % t)
    o("    s_cmp_ge_u32 s39, 6")
    o("    s_cbranch_scc1 %s_6" % t)
    o("    s_waitcnt vmcnt(4)")
    o("%s_6:" % t)
    o("    s_waitcnt vmcnt(6)")
    o("%s_8:" % t)
    o("    s_waitcnt vmcnt(8) lgkmcnt(0)")

def tile_fma(j, w):
    d = vD + 4 * j
    o("    v_mul_f32 v%d, v%d, v%d" % (d, d, w))
    for k in range(1, 4):
        o("    v_fmac_f32 v%d, v%d, v%d" % (d, d + k, w + k))
def wr_read(j, w):
    o("    ds_read_b128 v[%d:%d], v%d offset:%d" % (w, w + 3, vLaneOff, L_WR + 256 * j))
def lock_try():
    o("    s_mov_b64 exec, 1")
    o("    ds_wrxchg_rtn_b32 v%d, v%d, v%d offset:%d" % (vS + 2, vS, vOne, L_LOCK))
    o("    s_mov_b64 exec, -1")
    o("    ds_read_b128 v[%d:%d], v%d" % (vP, vP + 3, vS + 1))
    o("    ds_read_b128 v[%d:%d], v%d offset:1024" % (vP + 4, vP + 7, vS + 1))

def post(b):
    if "--nopost" in opts: return
    sb = 48 + 4 * b
    t = "P%d" % b
    if NBUF == 2:
        wr_read(0, vP); wr_read(1, vP + 4); wr_read(2, vA); wr_read(3, vA + 4)
    o("    s_lshl_b32 s38, s%d, 9" % sb)
    o("    v_add_u32 v0, s38, v%d" % vL8)
    o("    ds_read_b64 v[%d:%d], v0 offset:%d" % (vCG, vCG + 1, L_CG))
    o("    s_lshl_b32 s38, s%d, 2" % (sb + 1))
    o("    v_mov_b32 v%d, s38                    ; lock addr" % vS)
    o("    s_and_b32 s38, s%d, 3" % (sb + 1))
    o("    s_lshl_b32 s38, s38, 6")
    o("    s_lshl_b32 s39, s%d, 11" % (sb + 1))
    o("    s_add_u32 s39, s39, %d" % L_AGG)
    o("    s_or_b32 s38, s38, s39")
    o("    v_xor_b32 v%d, s38, v%d               ; agg addr" % (vS + 1, vAggC))
    o("    v_mov_b32 v%d, 0" % (vS + 3))
    if NBUF == 2:
        o("    s_waitcnt lgkmcnt(4)")
        tile_fma(0, vP)
        o("    s_waitcnt lgkmcnt(3)")
        tile_fma(1, vP + 4)
        wr_read(4, vP); wr_read(5, vP + 4)
        o("    s_waitcnt lgkmcnt(4)")
        tile_fma(2, vA)
        o("    s_waitcnt lgkmcnt(3)")
        tile_fma(3, vA + 4)
        wr_read(6, vA); wr_read(7, vA + 4)
        o("    v_cvt_pk_bf16_f32 v%d, v%d, v%d" % (vD + 2, vD, vD + 4))
        o("    v_cvt_pk_bf16_f32 v%d, v%d, v%d" % (vD + 3, vD + 8, vD + 12))
        o("    s_waitcnt lgkmcnt(3)")
        tile_fma(4, vP)
        o("    s_waitcnt lgkmcnt(2)")
        tile_fma(5, vP + 4)
        lock_try()
        o("    s_waitcnt lgkmcnt(4)")
        tile_fma(6, vA)
        o("    s_waitcnt lgkmcnt(3)")
        tile_fma(7, vA + 4)
    else:
        for j in range(4):
            tile_fma(j, vWR + 4 * j)
        o("    v_cvt_pk_bf16_f32 v%d, v%d, v%d" % (vD + 2, vD, vD + 4))
        o("    v_cvt_pk_bf16_f32 v%d, v%d, v%d" % (vD + 3, vD + 8, vD + 12))
        lock_try()
        for j in range(4, 8):
            tile_fma(j, vWR + 4 * j)
    o("    v_cvt_pk_bf16_f32 v%d, v%d, v%d" % (vD + 6, vD + 16, vD + 20))
    o("    v_cvt_pk_bf16_f32 v%d, v%d, v%d" % (vD + 7, vD + 24, vD + 28))
    o("%s_chk:" % t)
    o("    s_waitcnt lgkmcnt(0)")
    o("    v_readfirstlane_b32 s38, v%d" % (vS + 2))
    o("    s_cmp_eq_u32 s38, 0")
    o("    s_cbranch_scc1 %s_got" % t)
    lock_try()
    o("    s_branch %s_chk" % t)
    o("%s_got:" % t)
    o("    v_mfma_f32_16x16x16_bf16 v[%d:%d], v[%d:%d], v[%d:%d], v[%d:%d]" % (vP, vP + 3, vCG, vCG + 1, vD + 2, vD + 3, vP, vP + 3))
    o("    v_mfma_f32_16x16x16_bf16 v[%d:%d], v[%d:%d], v[%d:%d], v[%d:%d]" % (vP + 4, vP + 7, vCG, vCG + 1, vD + 6, vD + 7, vP + 4, vP + 7))
    o("    s_nop 7")
    o("    ds_write_b128 v%d, v[%d:%d]" % (vS + 1, vP, vP + 3))
    o("    ds_write_b128 v%d, v[%d:%d] offset:1024" % (vS + 1, vP + 4, vP + 7))
    o("    s_mov_b64 exec, 1")
    o("    ds_write_b32 v%d, v%d offset:%d" % (vS, vS + 3, L_LOCK))
    if DF:
        o("    s_andn2_b32 s38, s%d, 3" % (sb + 1))
        o("    v_mov_b32 v%d, s38" % (vS + 2))
        o("    ds_add_u32 v%d, v%d offset:%d" % (vS + 2, vOne, L_TC))
    o("    s_mov_b64 exec, -1")

spf(SPF % 10, "SP3")
if DPW:
    per = 320 // DPW
    assert DPN <= per
    o("    s_cmp_lt_u32 s40, %d" % (16 - DPW))
    o("    s_cbranch_scc1 DP_e")
    o("    s_cmp_lg_u32 s41, 0")
    o("    s_cbranch_scc1 DP_e")
    o("    s_sub_u32 s66, s40, %d" % (16 - DPW))
    o("    s_mul_i32 s66, s66, %d" % (per * 1024))
    o("    s_add_u32 s66, s66, s68")
    o("    v_mov_b32 v0, 0")
    for u in range(1, 4):
        if u > 1:
            o("DP_g%d:" % u)
            o("    ds_read_b32 v%d, v0 offset:%d" % (vQ, L_Q))
            o("    s_waitcnt lgkmcnt(0)")
            o("    v_readfirstlane_b32 s38, v%d" % vQ)
            o("    s_cmp_ge_u32 s38, %d" % (40 * (u - 1) + DPG + 16))
            o("    s_cbranch_scc1 DP_go%d" % u)
            o("    s_sleep 4")
            o("    s_branch DP_g%d" % u)
            o("DP_go%d:" % u)
        o("    s_and_b32 s38, s2, 7")
        o("    s_mul_i32 s38, s38, %d" % (DPN // 8))
        o("    s_mov_b32 s39, %d" % DPN)
        o("DP_l%d:" % u)
        o("    s_sub_u32 s36, s38, %d" % DPN)
        o("    s_min_u32 s38, s38, s36")
        o("    s_lshl_b32 s36, s38, 10")
        o("    s_add_u32 s36, s36, s66")
        for sec in range(4):
            o("    s_load_dword s67, s[4:5], s36 offset:%d" % (u * 256 + sec * 64))
        o("    s_add_u32 s38, s38, 1")
        o("    s_sub_u32 s39, s39, 1")
        o("    s_cmp_lg_u32 s39, 0")
        o("    s_cbranch_scc1 DP_l%d" % u)
    o("    s_mov_b64 exec, 1")
    o("    ds_add_rtn_u32 v%d, v%d, v%d offset:%d" % (vQ, vLaneOff, vOne, L_Q))
    o("    s_mov_b64 exec, -1")
    o("    s_waitcnt lgkmcnt(0)")
    o("    v_readfirstlane_b32 s38, v%d" % vQ)
    o("    s_branch DP_join")
    o("DP_e:")
o("    s_mov_b32 s38, s40")
o("    s_mov_b32 s71, 0")
o("    s_mov_b32 s34, 0xffff")
if DPW:
    o("    s_cmp_lt_u32 s40, %d" % (16 - DPW))
    o("    s_cbranch_scc1 DP_join")
    o("    s_mov_b64 exec, 1")
    o("    ds_add_rtn_u32 v%d, v%d, v%d offset:%d" % (vQ, vLaneOff, vOne, L_Q))
    o("    s_mov_b64 exec, -1")
    o("    s_waitcnt lgkmcnt(0)")
    o("    v_readfirstlane_b32 s38, v%d" % vQ)
    o("DP_join:")
if not SYNCQ: dequeue()
o("    s_mov_b32 s60, 0")
gen_next(True)
o("    s_waitcnt lgkmcnt(0)")
issue_loads(0)
gen_to_slot(0)
if NBUF == 2:
    gen_next()
    o("    s_waitcnt lgkmcnt(0)")
    issue_loads(1)
    gen_to_slot(1)
else:
    for j in range(8):
        wr_read(j, vWR + 4 * j)
o("K2_loop:")
for b in range(NBUF):
    sb = 48 + 4 * b
    o("    s_and_b32 s39, s%d, 15" % (sb + 3))
    o("    s_cbranch_scc0 K2_main_done")
    o("    v_and_b32 v%d, 24, v%d" % (vCG, vL8))
    o("    v_and_or_b32 v0, v%d, s34, v%d" % (vT, vCG))
    o("    v_lshrrev_b32 v%d, 16, v%d" % (vT, vT))
    o("    v_or_b32 v%d, v%d, v%d" % (vCG, vT, vCG))
    o("    ds_read_b64_tr_b16 v[%d:%d], v0 offset:%d" % (vS, vS + 1, L_S))
    o("    ds_read_b64_tr_b16 v[%d:%d], v%d offset:%d" % (vS + 2, vS + 3, vCG, L_S))
    if LATE:
        vm_wait(1 - b)
        mm_all(b)
        gen_next()
        o("    s_waitcnt lgkmcnt(0)")
    else:
        gen_next()
        if SPM:
            o("    s_cmp_ge_u32 s%d, 3" % sb)
            o("    s_cbranch_scc1 SPM_e")
            o("    s_add_u32 s66, s%d, s69" % (sb + 1))
            o("    s_sub_u32 s39, s66, 40")
            o("    s_min_u32 s66, s66, s39")
            o("    s_lshl_b32 s39, s%d, 8" % sb)
            o("    s_add_u32 s39, s39, s68")
            o("    s_bitcmp0_b32 s%d, 4" % (sb + 3))
            o("    s_cbranch_scc1 SPM_2")
            o("    s_mul_i32 s66, s66, %d" % (SPM * 1024))
            o("    s_add_u32 s66, s66, s39")
            for n in range(SPM):
                for sec in range(4):
                    o("    s_load_dword s67, s[4:5], s66 offset:%d" % (n * 1024 + 256 + sec * 64))
            o("    s_branch SPM_e")
            o("SPM_2:")
            if SPM2:
                assert 40 * (SPM + SPM2) <= 320
                o("    s_mul_i32 s66, s66, %d" % (SPM2 * 1024))
                o("    s_add_u32 s66, s66, s39")
                for n in range(SPM2):
                    for sec in range(4):
                        o("    s_load_dword s67, s[4:5], s66 offset:%d" % ((40 * SPM + n) * 1024 + 256 + sec * 64))
            o("SPM_e:")
        vm_wait(1 - b)
        if PRIO: o("    s_setprio %d" % PRIO)
        mm_all(b)
    issue_loads(b)
    if PRIO: o("    s_setprio 0")
    o("    s_bitcmp0_b32 s%d, 5" % (sb + 3))
    o("    s_cbranch_scc1 K2_cont%d" % b)
    post(b)
    o("K2_cont%d:" % b)
    gen_to_slot(b)
o("    s_branch K2_loop")
o("K2_main_done:")
o("    s_cmp_eq_u32 s41, 0")
o("    s_cbranch_scc1 K2_final")
o("    s_add_u32 s42, s42, 1")
o("    s_cmp_ge_u32 s42, %d" % NSLOW)
o("    s_cbranch_scc1 K2_final")
o("    s_waitcnt vmcnt(0) lgkmcnt(0)")
o("    s_barrier")
o("    s_lshl_b32 s39, s40, 6")
o("    v_lshrrev_b32 v0, 3, v%d" % vL8)
o("    v_add_u32 v0, s39, v0")
o("    s_branch K2_round")

o("K2_final:")
stamp()
if STAMP:
    o("    s_memtime s[78:79]")
    o("    s_waitcnt lgkmcnt(0)")
    o("    s_sub_u32 s78, s78, s76")
vW = 32
vB = 64
vC = 96
if FSW:
    o("    s_cmp_lt_u32 s40, 12")
    o("    s_cbranch_scc1 K2_fin_end")
o("    s_and_b32 s44, s40, 3                 ; dp")
o("    s_lshr_b32 s45, s40, 2                ; rg")
if LAZYW:
    o("    s_lshl_b32 s39, s44, 2")
    o("    v_mov_b32 v8, s39")
    o("    ds_read_b32 v9, v8 offset:%d" % L_FQ)
    o("    s_waitcnt lgkmcnt(0)")
    o("    v_readfirstlane_b32 s39, v9")
    o("    s_cmp_ge_u32 s39, %d" % LAZYW)
    o("    s_cbranch_scc1 K2_fin_end")
o("    s_lshl_b32 s39, s44, 13")
o("    s_add_u32 s39, s39, 0x%x" % WS_WIMG)
o("    v_lshlrev_b32 v8, 1, v%d              ; lane*16" % vL8)
o("    v_add_u32 v8, s39, v8")
o("    v_add_u32 v9, 0x1000, v8")
o("    s_waitcnt vmcnt(0)")
for ts in range(8):
    base = "v8" if ts < 4 else "v9"
    o("    global_load_dwordx4 v[%d:%d], %s, s[22:23] offset:%d" % (vW + 4 * ts, vW + 4 * ts + 3, base, (ts & 3) * 1024))
o("    v_lshrrev_b32 v10, 3, v%d             ; lane" % vL8)
o("    v_bfe_u32 v11, v10, 2, 2              ; nl")
o("    v_and_b32 v12, 3, v10                 ; w")
o("    v_lshrrev_b32 v17, 4, v10             ; q")
o("    v_and_b32 v13, 15, v10")
o("    v_xor_b32 v13, v13, v17               ; q ^ col")
o("    v_lshlrev_b32 v15, 11, v11")
o("    v_lshl_add_u32 v15, v12, 8, v15")
o("    v_lshl_add_u32 v15, v13, 4, v15")
o("    v_lshlrev_b32 v16, 18, v11")
o("    v_lshl_add_u32 v16, v12, 8, v16")
o("    v_lshl_add_u32 v16, v17, 4, v16")
o("    s_lshl_b32 s39, s2, 10")
o("    s_lshl_b32 s46, s44, 6")
o("    s_add_u32 s39, s39, s46")
o("    v_add_u32 v16, s39, v16")
if DF:
    o("    s_lshl_b32 s39, s44, 2")
    o("    v_mov_b32 v8, s39")
    o("    v_mov_b32 v14, 1")
    o("    s_mov_b64 exec, 1")
    o("    ds_add_rtn_u32 v9, v8, v14 offset:%d" % L_FQ)
    o("    s_mov_b64 exec, -1")
    stamp()
    o("    s_waitcnt vmcnt(0)")
    o("K2_fin_loop:")
    o("    s_waitcnt lgkmcnt(0)")
    o("    v_readfirstlane_b32 s45, v9")
    o("    s_cmp_ge_u32 s45, 10")
    o("    s_cbranch_scc1 K2_fin_end")
    o("    s_lshl_b32 s39, s45, 2")
    o("    v_mov_b32 v10, s39")
    o("K2_fin_wait:")
    o("    ds_read_b32 v11, v10 offset:%d" % L_TC)
    o("    s_waitcnt lgkmcnt(0)")
    o("    v_readfirstlane_b32 s39, v11")
    o("    s_cmp_ge_u32 s39, 16")
    o("    s_cbranch_scc1 K2_fin_go")
    o("    s_sleep 2")
    o("    s_branch K2_fin_wait")
    o("K2_fin_go:")
else:
    o("    s_waitcnt lgkmcnt(0)")
    o("    s_barrier")
    stamp()
    o("    s_waitcnt vmcnt(0)")
    o("K2_fin_loop:")
o("    s_lshl_b32 s39, s45, 13               ; rt*8192")
o("    s_add_u32 s39, s39, %d" % L_AGG)
o("    v_add_u32 v18, s39, v15")
for s in range(4):
    if s:
        o("    v_xor_b32 v19, %d, v18" % (64 * s))
    a = "v19" if s else "v18"
    o("    ds_read_b128 v[%d:%d], %s" % (vB + 8 * s, vB + 8 * s + 3, a))
    o("    ds_read_b128 v[%d:%d], %s offset:1024" % (vB + 8 * s + 4, vB + 8 * s + 7, a))
if DF:
    o("    s_mov_b64 exec, 1")
    o("    ds_add_rtn_u32 v9, v8, v14 offset:%d" % L_FQ)
    o("    s_mov_b64 exec, -1")
for s in range(4):
    o("    s_waitcnt lgkmcnt(%d)" % (6 - 2 * s + (1 if DF else 0)))
    for p in range(4):
        o("    v_cvt_pk_bf16_f32 v%d, v%d, v%d" % (vC + 4 * s + p, vB + 8 * s + 2 * p, vB + 8 * s + 2 * p + 1))
o("    s_nop 1")
for s in range(4):
    for t in range(2):
        a = vW + 4 * (t * 4 + s)
        acc = 20 + 4 * t
        c = "0" if s == 0 else "v[%d:%d]" % (acc, acc + 3)
        o("    v_mfma_f32_16x16x32_bf16 v[%d:%d], v[%d:%d], v[%d:%d], %s" % (acc, acc + 3, a, a + 3, vC + 4 * s, vC + 4 * s + 3, c))
o("    s_lshl_b32 s39, s45, 20               ; rt*4*256*1024")
o("    s_nop 7")
for p in range(4):
    o("    v_cvt_pk_bf16_f32 v%d, v%d, v%d" % (28 + p, 20 + 2 * p, 21 + 2 * p))
o("    buffer_store_dwordx4 v[28:31], v16, s[28:31], s39 offen" + OST)
if DF:
    o("    s_branch K2_fin_loop")
    o("K2_fin_end:")
else:
    o("    s_add_u32 s45, s45, 4")
    o("    s_cmp_lt_u32 s45, 10")
    o("    s_cbranch_scc1 K2_fin_loop")
if STAMP:
    stamp()
    o("    s_waitcnt vmcnt(0)")
    stamp()
    o("    s_lshl_b32 s39, s2, 4")
    o("    s_add_u32 s39, s39, s40")
    o("    s_lshl_b32 s39, s39, 6")
    o("    s_add_u32 s39, s39, 0x8000000")
    o("    v_mov_b32 v1, s39")
    for i in range(nstamp[0]):
        o("    v_mov_b32 v2, s%d" % (84 + 2 * i))
        o("    global_store_dword v1, v2, s[22:23] offset:%d" % (4 * i))
    if "--dbgstamp" in opts:
        o("    s_load_dwordx2 s[66:67], s[0:1], 72")
        o("    s_waitcnt lgkmcnt(0)")
        o("    s_cmp_lg_u32 s40, 0")
        o("    s_cbranch_scc1 DBG_skip")
        o("    v_mov_b32 v3, 0")
        o("    s_mov_b64 exec, 1")
        for i in range(nstamp[0]):
            o("    v_mov_b32 v2, s%d" % (84 + 2 * i))
            o("    global_atomic_umax v3, v2, s[66:67] offset:%d" % (20 + 4 * i))
        o("    s_not_b32 s39, s84")
        o("    v_mov_b32 v2, s39")
        o("    global_atomic_umax v3, v2, s[66:67] offset:%d" % (16))
        o("    s_mov_b64 exec, -1")
        o("DBG_skip:")
    o("    v_mov_b32 v2, s72")
    o("    global_store_dword v1, v2, s[22:23] offset:%d" % (4 * 11))
    o("    v_mov_b32 v2, s74")
    o("    global_store_dword v1, v2, s[22:23] offset:%d" % (4 * 12))
    o("    v_mov_b32 v2, s78")
    o("    global_store_dword v1, v2, s[22:23] offset:%d" % (4 * 13))
    o("    v_mov_b32 v2, s41")
    o("    global_store_dword v1, v2, s[22:23] offset:%d" % (4 * 14))
    o("    v_mov_b32 v2, s34")
    o("    global_store_dword v1, v2, s[22:23] offset:%d" % (4 * 15))
o("K2_done:")
o("    s_endpgm")

o('.section .rodata,"a"')
for kn, vg, sg in (("gs_bin_kernel", 48, 64 if STAMP else 32), (KN, 128, 102 if STAMP else 72)):
    o(".p2align 6")
    o(".amdhsa_kernel %s" % kn)
    o("  .amdhsa_next_free_vgpr %d" % vg)
    o("  .amdhsa_next_free_sgpr %d" % sg)
    o("  .amdhsa_accum_offset %d" % vg)
    o("  .amdhsa_group_segment_fixed_size 0")
    o("  .amdhsa_kernarg_size 88")
    o("  .amdhsa_user_sgpr_count 2")
    o("  .amdhsa_user_sgpr_kernarg_segment_ptr 1")
    o("  .amdhsa_system_sgpr_workgroup_id_x 1")
    o("  .amdhsa_float_denorm_mode_32 3")
    o(".end_amdhsa_kernel")

path = args[0] if args else "cdna_kernels/%s.s" % NAME
open(path, "w").write("\n".join(out) + "\n")
print("wrote", path, "K2_LDS", K2_LDS, "K1_LDS", K1_LDS, "L_S", L_S, "L_AGG", L_AGG)
```
